```python
import torch

def _softmax(x, axis=-1):
    return torch.softmax(x, dim=axis)
def _gelu(x):
    return torch.nn.functional.gelu(x, approximate="tanh")
def _silu(x):
    return torch.nn.functional.silu(x)
def _sigmoid(x):
    return torch.sigmoid(x)
def _layernorm(x, axis=-1, eps=1e-5):
    m = x.mean(dim=axis, keepdim=True)
    v = x.var(dim=axis, keepdim=True, unbiased=False)
    return (x - m) / torch.sqrt(v + eps)
def _scatter_add(tgt, idx, src, axis=0):
    return tgt.clone().index_add_(axis, idx, src)
def _segment_sum(src, seg, n):
    out = torch.zeros((n,) + src.shape[1:], dtype=src.dtype)
    return out.index_add_(0, seg, src)
def _pad(x, pw):
    flat = tuple(v for pair in reversed(pw) for v in pair)
    return torch.nn.functional.pad(x, flat)

kernel_name = 'standalone__weight_only_int_quip__prompt'

def setup_inputs():

    _w = (lambda a: (lambda t: t.to(torch.bfloat16) if t.is_floating_point() else t)(torch.as_tensor(a)))
    B, S, D, F = 1, 2048, 640, 1536
    G = 32 if 32 > 0 else D
    D = (D // G) * G
    ng = D // G
    bits = 3 if 3 > 0 else 4
    qmax = 1 << bits
    qw = torch.randint(0, qmax, (D, F)).to(torch.int32)
    U, _ = (lambda *_a, **_k: torch.linalg.qr(*[torch.as_tensor(_x).float() for _x in _a], **_k))((lambda *s: torch.randn(*s, dtype=torch.bfloat16) * 0.05)(D, D))
    V, _ = (lambda *_a, **_k: torch.linalg.qr(*[torch.as_tensor(_x).float() for _x in _a], **_k))((lambda *s: torch.randn(*s, dtype=torch.bfloat16) * 0.05)(F, F))
    return {
        "x": _w((lambda *s: torch.randn(*s, dtype=torch.bfloat16) * 0.05)(B, S, D)),
        "qw": _w(qw),
        "scales": _w(torch.abs((lambda *s: torch.randn(*s, dtype=torch.bfloat16) * 0.05)(ng, F)) * 0.02 + 0.005),
        "zeros": _w(torch.full((ng, F), qmax / 2.0, dtype=float)),
        "U": _w(U.to(float)),
        "V": _w(V.to(float)),
    }

def reference(x, qw, scales, zeros, U, V):
    B, S, D = x.shape
    ng, F = scales.shape
    G = D // ng
    s = (lambda x, n, axis: torch.repeat_interleave(x, n, dim=axis))(scales, G, axis=0)
    z = (lambda x, n, axis: torch.repeat_interleave(x, n, dim=axis))(zeros, G, axis=0)
    wq = ((lambda x, dt: x.to(dt))(qw, x.dtype) - z) * s
    xr = torch.einsum("bsd,de->bse", x, U)
    h  = torch.einsum("bse,ef->bsf", xr, wq)
    y  = torch.einsum("bsf,fg->bsg", h, V)
    return y
```

```python
import sys

HEADER = open("standalone__weight_only_int_quip__prompt.s.ref").read().split("; Override launch")[0]

XR_OFF = 0
TT_OFF = 0x300000
WS_BYTES = 0x500000

class Asm:
    def __init__(self):
        self.lines = []
    def I(self, s):
        self.lines.append("    " + s)
    def L(self, s):
        self.lines.append(s + ":")
    def C(self, s):
        self.lines.append("    ; " + s)
    def text(self):
        return "\n".join(self.lines) + "\n"

def vr(b, n=4, p="v"):
    return f"{p}[{b}:{b+n-1}]" if n > 1 else f"{p}{b}"

def srd(a, d, base, nbytes):
    a.I(f"s_mov_b32 s{d}, s{base}")
    a.I(f"s_and_b32 s{d+1}, s{base+1}, 0xffff")
    a.I(f"s_mov_b32 s{d+2}, {nbytes}")
    a.I(f"s_mov_b32 s{d+3}, 0x00020000")

def rolling(a, items, depth, slots, pre_outstanding=0):
    n = len(items)
    issued = 0
    nreads = []
    for k in range(n):
        while issued < min(n, k + depth):
            it = items[issued]
            if it.get("gate"):
                for g in it["gate"]:
                    a.I(g)
            rd = it["reads"](slots[issued % len(slots)])
            for r in rd:
                a.I(r)
            nreads.append(len(rd))
            issued += 1
        cnt = sum(nreads[k + 1:issued])
        assert cnt <= 15
        a.I(f"s_waitcnt lgkmcnt({cnt})")
        for m in items[k]["mfma"](slots[k % len(slots)]):
            a.I(m)

def gen_k1(a, cfg):
    K = "quip_s1_kernel"
    a.lines.append(f".globl {K}\n.p2align 8\n.type {K},@function")
    a.L(K)
    a.I("s_lshr_b32 s21, s2, 3")
    a.I("s_cmp_ge_u32 s21, 30")
    a.I("s_cbranch_scc1 L_k1_exit")
    a.I("s_load_dwordx8 s[4:11], s[0:1], 0")
    a.I("s_load_dwordx4 s[12:15], s[0:1], 32")
    a.I("s_load_dwordx2 s[16:17], s[0:1], 64")
    a.I("s_and_b32 s20, s2, 7")
    a.I("s_lshr_b32 s22, s20, 1")
    a.I("s_and_b32 s23, s20, 1")
    a.I("v_and_b32 v1, 63, v0")
    a.I("v_lshrrev_b32 v2, 6, v0")
    a.I("s_nop 0")
    a.I("v_readfirstlane_b32 s24, v2")
    a.I("v_lshrrev_b32 v2, 4, v1")
    a.I("v_and_b32 v3, 15, v1")
    a.I("v_bfe_u32 v4, v1, 2, 2")
    a.I("v_and_b32 v5, 1, v2")
    a.I("s_cmp_ge_u32 s21, 20")
    a.I("s_cbranch_scc1 L_k1_roleA")
    gen_k1_b(a, cfg)
    a.L("L_k1_roleA")
    gen_k1_a(a, cfg)
    a.L("L_k1_exit")
    a.I("s_endpgm")

def dma_lane_part(a, dst, rowstride_sgpr, tmp):
    a.I(f"v_lshl_add_u32 v{tmp}, v2, 3, v4")
    a.I(f"v_mul_lo_u32 v{dst}, v{tmp}, s{rowstride_sgpr}")
    a.I(f"v_bfe_u32 v{tmp}, v1, 1, 1")
    a.I(f"v_xor_b32 v{tmp}, v{tmp}, v5")
    a.I(f"v_lshl_add_u32 v{dst}, v{tmp}, 5, v{dst}")
    a.I(f"v_and_b32 v{tmp}, 1, v1")
    a.I(f"v_lshl_add_u32 v{dst}, v{tmp}, 4, v{dst}")

def tr_lane_part(a, dst0, dst1, tmp):
    a.I(f"v_lshrrev_b32 v{tmp}, 2, v1")
    a.I(f"v_lshlrev_b32 v{dst0}, 6, v{tmp}")
    a.I(f"v_and_b32 v{tmp}, 3, v1")
    a.I(f"v_lshl_add_u32 v{dst0}, v{tmp}, 3, v{dst0}")
    a.I(f"v_lshl_add_u32 v{dst0}, v5, 5, v{dst0}")
    a.I(f"v_xor_b32 v{dst1}, 32, v{dst0}")

def gen_k1_a(a, cfg):
    nt_x = " nt" if cfg.get("nt_x") else ""
    nt_u = " nt" if cfg.get("nt_u") else ""
    a.C("role A: xr = x @ U, tile 128(m) x 128(e), wave tile 16 x 128")
    a.I("s_sub_u32 s25, s21, 20")
    a.I("s_and_b32 s26, s25, 1")
    a.I("s_lshr_b32 s27, s25, 1")
    a.I("s_lshl_b32 s40, s22, 2")
    a.I("s_lshl_b32 s41, s23, 1")
    a.I("s_add_u32 s40, s40, s41")
    a.I("s_add_u32 s40, s40, s26")
    a.I("s_lshl_b32 s40, s40, 3")
    a.I("s_add_u32 s40, s40, s24")
    a.I("s_movk_i32 s41, 1280")
    a.I("s_lshl_b32 s42, s40, 4")
    a.I("v_add_u32 v6, s42, v3")
    a.I("v_mul_lo_u32 v10, v6, s41")
    a.I("v_lshl_add_u32 v10, v2, 4, v10")
    dma_lane_part(a, 11, 41, 6)
    a.I("s_and_b32 s42, s24, 1")
    a.I("s_mul_i32 s42, s42, 5120")
    a.I("s_lshr_b32 s43, s24, 1")
    a.I("s_lshl_b32 s43, s43, 6")
    a.I("s_add_u32 s42, s42, s43")
    a.I("s_lshl_b32 s43, s27, 8")
    a.I("s_add_u32 s42, s42, s43")
    a.I("v_add_u32 v11, s42, v11")
    tr_lane_part(a, 12, 13, 6)
    a.I("v_add_u32 v14, 0x10000, v12")
    a.I("v_add_u32 v15, 0x10000, v13")
    a.I("v_add_u32 v16, 0x20000, v12")
    a.I("v_add_u32 v17, 0x20000, v13")
    a.I("s_mul_i32 s42, s40, 20")
    a.I("s_lshl_b32 s43, s27, 2")
    a.I("s_add_u32 s42, s42, s43")
    a.I("s_lshl_b32 s42, s42, 10")
    if XR_OFF:
        a.I(f"s_add_u32 s42, s42, {XR_OFF}")
    a.I("v_lshlrev_b32 v18, 4, v1")
    a.I("v_add_u32 v18, s42, v18")
    a.I("s_lshl_b32 s44, s24, 10")
    a.I("s_mov_b32 s45, 0")
    a.I("s_waitcnt lgkmcnt(0)")
    srd(a, 28, 4, 2621440)
    srd(a, 32, 12, 819200)
    srd(a, 36, 16, WS_BYTES)
    XF = 32; ACC = 112; RING = 144
    for p in range(20):
        a.I("s_mov_b32 m0, s44")
        a.I(f"s_add_u32 s44, s44, 8192")
        a.I(f"buffer_load_dwordx4 v11, s[32:35], s45 offen{nt_u} lds")
        a.I(f"buffer_load_dwordx4 {vr(XF+4*p)}, v10, s[28:31], 0 offen offset:{p*64}{nt_x}")
        a.I(f"s_add_u32 s45, s45, 40960")
    items = []
    CH = 2
    for p in range(20):
        for t in range(8):
            it = {}
            if p % CH == 0 and t == 0:
                c = p // CH
                it["gate"] = [f"s_waitcnt vmcnt({2*(20-CH*(c+1))})", "s_barrier"]
            def reads(reg, p=p, t=t):
                sc, tp = t >> 1, t & 1
                base = 12 + 2 * (p // 8) + tp
                off = (p % 8) * 8192 + sc * 2048
                return [f"ds_read_b64_tr_b16 {vr(reg,2)}, v{base} offset:{off}",
                        f"ds_read_b64_tr_b16 {vr(reg+2,2)}, v{base} offset:{off+1024}"]
            def mfma(reg, p=p, t=t):
                c = "0" if p == 0 else vr(ACC+4*t)
                return [f"v_mfma_f32_16x16x32_bf16 {vr(ACC+4*t)}, {vr(reg)}, {vr(XF+4*p)}, {c}"]
            it["reads"] = reads; it["mfma"] = mfma
            items.append(it)
    rolling(a, items, depth=7, slots=[RING + 4*i for i in range(8)])
    a.I("s_nop 7")
    for s in range(4):
        o = RING + 4*s
        a.I(f"v_cvt_pk_bf16_f32 v{o}, v{ACC+8*s}, v{ACC+8*s+1}")
        a.I(f"v_cvt_pk_bf16_f32 v{o+1}, v{ACC+8*s+2}, v{ACC+8*s+3}")
        a.I(f"v_cvt_pk_bf16_f32 v{o+2}, v{ACC+8*s+4}, v{ACC+8*s+5}")
        a.I(f"v_cvt_pk_bf16_f32 v{o+3}, v{ACC+8*s+6}, v{ACC+8*s+7}")
        a.I(f"buffer_store_dwordx4 {vr(o)}, v18, s[36:39], 0 offen offset:{s*1024}")
    a.I("s_endpgm")

def gen_k1_b(a, cfg):
    nt_q = " nt" if cfg.get("nt_q") else ""
    nt_v = " nt" if cfg.get("nt_v") else ""
    a.C("role B: T = dequant(qw) @ V, tile 64(d) x 96(g), 8 waves")
    NS = 5; VBASE = 32768; VSLOT = 24576; NCH = 12; PD = 4
    a.I("s_and_b32 s25, s22, 1")
    a.I("s_mul_i32 s25, s25, 5")
    a.I("s_lshr_b32 s26, s21, 2")
    a.I("s_add_u32 s25, s25, s26")
    a.I("s_lshl_b32 s26, s23, 1")
    a.I("s_lshr_b32 s27, s22, 1")
    a.I("s_add_u32 s26, s26, s27")
    a.I("s_lshl_b32 s26, s26, 2")
    a.I("s_and_b32 s27, s21, 3")
    a.I("s_add_u32 s26, s26, s27")
    VQ = 10
    VS = 14
    VV = 15
    VAW = 18
    VAR = 22
    VBR = 24
    VST = 30
    RAW = 32
    SZ = 96
    ACC = 112
    RING = 136
    TMP = 176
    a.I("v_lshrrev_b32 v6, 5, v1")
    a.I("v_and_b32 v7, 31, v1")
    a.I("s_movk_i32 s41, 6144")
    a.I("s_lshl_b32 s42, s24, 3")
    a.I("v_add_u32 v8, s42, v6")
    a.I(f"v_mul_lo_u32 v{VQ}, v8, s41")
    a.I(f"v_lshl_add_u32 v{VQ}, v7, 4, v{VQ}")
    for n in range(1, 4):
        a.I(f"v_add_u32 v{VQ+n}, {12288*n}, v{VQ}")
    a.I("s_mul_i32 s46, s25, 393216")
    a.I("s_add_u32 s47, s46, 4096")
    a.I("s_lshl_b32 s42, s25, 1")
    a.I("s_lshr_b32 s43, s24, 2")
    a.I("s_add_u32 s42, s42, s43")
    a.I("s_mul_i32 s42, s42, 3072")
    a.I(f"v_lshlrev_b32 v{VS}, 3, v7")
    a.I(f"v_add_u32 v{VS}, s42, v{VS}")
    a.I("s_movk_i32 s41, 3072")
    dma_lane_part(a, 9, 41, 8)
    a.I("s_mul_i32 s42, s26, 192")
    a.I("v_add_u32 v9, s42, v9")
    for jj in range(3):
        a.I(f"s_mul_i32 s42, s24, 3")
        a.I(f"s_add_u32 s42, s42, {jj}")
        a.I(f"s_mul_i32 s43, s42, 43")
        a.I(f"s_lshr_b32 s43, s43, 8")
        a.I(f"s_mul_i32 s44, s43, 6")
        a.I(f"s_sub_u32 s44, s42, s44")
        a.I(f"s_and_b32 s45, s44, 1")
        a.I(f"s_lshr_b32 s44, s44, 1")
        a.I(f"s_lshl_b32 s43, s43, 5")
        a.I(f"s_lshl_b32 s45, s45, 2")
        a.I(f"s_add_u32 s43, s43, s45")
        a.I(f"s_mul_i32 s43, s43, 3072")
        a.I(f"s_lshl_b32 s44, s44, 6")
        a.I(f"s_add_u32 s43, s43, s44")
        a.I(f"v_add_u32 v{VV+jj}, s43, v9")
    a.I("v_lshrrev_b32 v8, 1, v7")
    a.I("v_lshlrev_b32 v9, 8, v8")
    a.I("v_and_b32 v8, 7, v8")
    a.I("v_and_b32 v31, 1, v7")
    a.I("v_lshl_add_u32 v9, v31, 3, v9")
    a.I("s_lshr_b32 s42, s24, 1")
    a.I("s_lshl_b32 s42, s42, 12")
    a.I("v_add_u32 v9, s42, v9")
    a.I("s_and_b32 s42, s24, 1")
    a.I("s_lshl_b32 s42, s42, 3")
    for n in range(4):
        a.I(f"s_add_u32 s43, s42, {2*n}")
        a.I(f"v_add_u32 v31, s43, v6")
        a.I(f"v_xor_b32 v31, v31, v8")
        a.I(f"v_lshl_add_u32 v{VAW+n}, v31, 4, v9")
    a.I("s_lshr_b32 s42, s24, 2")
    a.I("s_bfe_u32 s43, s24, 0x10001")
    a.I("s_lshl_b32 s44, s42, 11")
    a.I("s_lshl_b32 s45, s43, 13")
    a.I("s_add_u32 s44, s44, s45")
    a.I("v_lshlrev_b32 v8, 8, v2")
    a.I("v_add_u32 v8, s44, v8")
    a.I("v_xor_b32 v9, v3, v2")
    a.I(f"v_lshl_add_u32 v{VAR}, v9, 4, v8")
    a.I("v_xor_b32 v9, 4, v9")
    a.I(f"v_lshl_add_u32 v{VAR+1}, v9, 4, v8")
    a.I(f"v_add_u32 v{VAR+1}, 1024, v{VAR+1}")
    tr_lane_part(a, 8, 9, 31)
    a.I("s_and_b32 s45, s24, 1")
    a.I("s_mul_i32 s44, s42, 12288")
    a.I(f"s_add_u32 s44, s44, {VBASE}")
    a.I("s_cmp_eq_u32 s45, 0")
    a.I("s_cselect_b32 s48, 0, 32")
    a.I("s_cselect_b32 s49, 0, 2048")
    a.I("s_cselect_b32 s50, 0, 4096")
    a.I("s_add_u32 s51, s49, 2048")
    a.I("s_add_u32 s49, s49, s44")
    a.I("s_add_u32 s50, s50, s44")
    a.I("s_add_u32 s51, s51, s44")
    a.I(f"v_xor_b32 v{VBR}, s48, v8")
    a.I(f"v_xor_b32 v{VBR+1}, s48, v9")
    a.I(f"v_add_u32 v{VBR+2}, s51, v{VBR}")
    a.I(f"v_add_u32 v{VBR}, s49, v{VBR}")
    a.I(f"v_add_u32 v{VBR+1}, s50, v{VBR+1}")
    for tt in range(3):
        a.I(f"v_add_u32 v{VBR+3+tt}, {2*VSLOT}, v{VBR+tt}")
    a.I("s_mul_i32 s44, s26, 20")
    a.I("s_lshl_b32 s48, s25, 1")
    a.I("s_add_u32 s44, s44, s48")
    a.I("s_add_u32 s44, s44, s43")
    a.I("s_mul_i32 s44, s44, 6")
    a.I("s_mul_i32 s48, s45, 3")
    a.I("s_add_u32 s44, s44, s48")
    a.I("s_lshl_b32 s44, s44, 10")
    a.I(f"s_add_u32 s44, s44, {TT_OFF}")
    a.I(f"v_lshlrev_b32 v{VST}, 4, v1")
    a.I(f"v_add_u32 v{VST}, s44, v{VST}")
    a.I("s_mul_i32 s52, s24, 3072")
    a.I(f"s_add_u32 s52, s52, {VBASE}")
    a.I("s_waitcnt lgkmcnt(0)")
    srd(a, 28, 6, 3932160)
    srd(a, 32, 14, 4718592)
    srd(a, 36, 16, WS_BYTES)
    srd(a, 56, 8, 61440)
    srd(a, 60, 10, 61440)

    def issue(c):
        r = RAW + 16 * (c % 4); z = SZ + 4 * (c % 4)
        so = 46 + (c // 8)
        a.I(f"s_mov_b32 s54, {c * 128 * 3072}")
        for n in range(4):
            a.I(f"buffer_load_dwordx4 {vr(r+4*n)}, v{VQ+n}, s[28:31], s{so} offen offset:{(c % 8) * 512}{nt_q}")
        a.I(f"buffer_load_dwordx2 {vr(z,2)}, v{VS}, s[56:59], 0 offen offset:{c*256}")
        a.I(f"buffer_load_dwordx2 {vr(z+2,2)}, v{VS}, s[60:63], 0 offen offset:{c*256}")
        for jj in range(3):
            a.I(f"s_add_u32 m0, s52, {(c % NS) * VSLOT + 1024*jj}")
            a.I(f"s_nop 0")
            a.I(f"buffer_load_dwordx4 v{VV+jj}, s[32:35], s54 offen{nt_v} lds")

    def dequant(c):
        r = RAW + 16 * (c % 4); z = SZ + 4 * (c % 4)
        S = TMP; NZ = TMP + 4; F = TMP + 8; PK = TMP + 24
        buf = (c & 1) * 16384
        a.I(f"v_lshlrev_b32 v{S}, 16, v{z}")
        a.I(f"v_and_b32 v{S+1}, 0xffff0000, v{z}")
        a.I(f"v_lshlrev_b32 v{S+2}, 16, v{z+1}")
        a.I(f"v_and_b32 v{S+3}, 0xffff0000, v{z+1}")
        a.I(f"v_lshlrev_b32 v{NZ}, 16, v{z+2}")
        a.I(f"v_and_b32 v{NZ+1}, 0xffff0000, v{z+2}")
        a.I(f"v_lshlrev_b32 v{NZ+2}, 16, v{z+3}")
        a.I(f"v_and_b32 v{NZ+3}, 0xffff0000, v{z+3}")
        for n in range(4):
            for j in range(4):
                a.I(f"v_cvt_f32_i32 v{F+4*n+j}, v{r+4*n+j}")
        for n in range(4):
            for j in range(4):
                a.I(f"v_sub_f32 v{F+4*n+j}, v{F+4*n+j}, v{NZ+j}")
        for n in range(4):
            for j in range(4):
                a.I(f"v_mul_f32 v{F+4*n+j}, v{F+4*n+j}, v{S+j}")
        for n in range(4):
            a.I(f"v_cvt_pk_bf16_f32 v{PK+2*n}, v{F+4*n}, v{F+4*n+1}")
            a.I(f"v_cvt_pk_bf16_f32 v{PK+2*n+1}, v{F+4*n+2}, v{F+4*n+3}")
            a.I(f"ds_write_b64 v{VAW+n}, {vr(PK+2*n,2)} offset:{buf}")

    def mma(c):
        buf = (c & 1) * 16384
        slot = c % NS
        bset = 0 if slot < 2 else 1
        if slot >= 4:
            pass
        soff = (slot - 2 * bset) * VSLOT
        ops = []
        for pp in range(2):
            base = RING + 20 * pp
            for ta in range(2):
                ops.append(f"ds_read_b128 {vr(base+4*ta)}, v{VAR+pp} offset:{buf + ta*4096}")
            for tt in range(3):
                o = soff + pp * 6144
                ops.append(f"ds_read_b64_tr_b16 {vr(base+8+4*tt,2)}, v{VBR+3*bset+tt} offset:{o}")
                ops.append(f"ds_read_b64_tr_b16 {vr(base+10+4*tt,2)}, v{VBR+3*bset+tt} offset:{o+1024}")
        for o in ops[:14]:
            a.I(o)
        issued = 14
        for pp in range(2):
            base = RING + 20 * pp
            for tt in range(3):
                need = 8 * pp + 4 + 2 * tt
                a.I(f"s_waitcnt lgkmcnt({issued - need})")
                for ta in range(2):
                    acc = ACC + 4 * (ta * 3 + tt)
                    cc = "0" if (c == 0 and pp == 0) else vr(acc)
                    a.I(f"v_mfma_f32_16x16x32_bf16 {vr(acc)}, {vr(base+4*ta)}, {vr(base+8+4*tt)}, {cc}")
                if issued == 14:
                    for o in ops[14:]:
                        a.I(o)
                    issued = 16

    for c in range(PD):
        issue(c)
    a.I(f"s_waitcnt vmcnt({9*(PD-1)})")
    dequant(0)
    a.I("s_waitcnt lgkmcnt(0)")
    a.I("s_barrier")
    for c in range(NCH):
        if c + PD < NCH:
            issue(c + PD)
        mma(c)
        if c + 1 < NCH:
            newer = min(NCH, c + PD + 1) - (c + 2)
            a.I(f"s_waitcnt vmcnt({9*newer})")
            dequant(c + 1)
            a.I("s_waitcnt lgkmcnt(0)")
            a.I("s_barrier")
    a.I("s_barrier")
    a.I("s_and_b32 s44, s24, 3")
    a.I("s_mul_i32 s44, s44, 6144")
    a.I("v_lshlrev_b32 v8, 4, v1")
    a.I("v_add_u32 v8, s44, v8")
    a.I("s_nop 4")
    a.I("s_cmp_lt_u32 s24, 4")
    a.I("s_cbranch_scc1 L_k1b_lo")
    for t in range(6):
        a.I(f"ds_write_b128 v8, {vr(ACC+4*t)} offset:{t*1024}")
    a.I("s_waitcnt lgkmcnt(0)")
    a.I("s_barrier")
    a.I("s_endpgm")
    a.L("L_k1b_lo")
    a.I("s_barrier")
    for t in range(6):
        a.I(f"ds_read_b128 {vr(RING+4*t)}, v8 offset:{t*1024}")
    for tt in range(3):
        a.I(f"s_waitcnt lgkmcnt({2-tt})")
        for ta in range(2):
            t = ta * 3 + tt
            for j in range(4):
                a.I(f"v_add_f32 v{ACC+4*t+j}, v{ACC+4*t+j}, v{RING+4*t+j}")
        o = TMP + 4 * tt
        a.I(f"v_cvt_pk_bf16_f32 v{o}, v{ACC+4*tt}, v{ACC+4*tt+1}")
        a.I(f"v_cvt_pk_bf16_f32 v{o+1}, v{ACC+4*tt+2}, v{ACC+4*tt+3}")
        a.I(f"v_cvt_pk_bf16_f32 v{o+2}, v{ACC+12+4*tt}, v{ACC+12+4*tt+1}")
        a.I(f"v_cvt_pk_bf16_f32 v{o+3}, v{ACC+12+4*tt+2}, v{ACC+12+4*tt+3}")
        a.I(f"buffer_store_dwordx4 {vr(o)}, v{VST}, s[36:39], 0 offen offset:{tt*1024}")
    a.I("s_endpgm")

def gen_k2(a, cfg):
    K = "quip_s2_kernel"
    a.lines.append(f".globl {K}\n.p2align 8\n.type {K},@function")
    a.L(K)
    a.I("s_cmp_ge_u32 s2, 256")
    a.I("s_cbranch_scc1 L_k2_exit")
    a.I("s_load_dwordx2 s[4:5], s[0:1], 48")
    a.I("s_load_dwordx2 s[6:7], s[0:1], 64")
    a.I("s_and_b32 s20, s2, 7")
    a.I("s_lshr_b32 s21, s2, 3")
    a.I("s_lshr_b32 s22, s20, 1")
    a.I("s_and_b32 s23, s20, 1")
    a.I("s_and_b32 s25, s21, 3")
    a.I("s_lshl_b32 s26, s22, 2")
    a.I("s_add_u32 s25, s25, s26")
    a.I("s_lshr_b32 s26, s21, 2")
    a.I("s_lshl_b32 s27, s23, 3")
    a.I("s_add_u32 s26, s26, s27")
    a.I("v_and_b32 v1, 63, v0")
    a.I("v_lshrrev_b32 v2, 6, v0")
    a.I("s_nop 0")
    a.I("v_readfirstlane_b32 s24, v2")
    a.I("v_lshlrev_b32 v3, 4, v1")
    a.I("s_lshl_b32 s40, s25, 3")
    a.I("s_lshl_b32 s41, s24, 1")
    a.I("s_add_u32 s40, s40, s41")
    a.I("s_mul_i32 s41, s40, 20480")
    if XR_OFF:
        a.I(f"s_add_u32 s41, s41, {XR_OFF}")
    a.I("v_add_u32 v4, s41, v3")
    a.I("v_add_u32 v5, 20480, v4")
    a.I("s_mul_i32 s42, s24, 3072")
    a.I("v_add_u32 v6, s42, v3")
    a.I("s_mul_i32 s43, s26, 122880")
    a.I(f"s_add_u32 s43, s43, {TT_OFF}")
    a.I("v_add_u32 v8, 61440, v3")
    a.I("v_and_b32 v9, 15, v1")
    a.I("s_lshl_b32 s41, s40, 4")
    a.I("v_add_u32 v9, s41, v9")
    a.I("s_movk_i32 s41, 3072")
    a.I("v_mul_lo_u32 v9, v9, s41")
    a.I("v_bfe_u32 v10, v1, 4, 1")
    a.I("v_lshl_add_u32 v9, v10, 5, v9")
    a.I("v_lshrrev_b32 v10, 5, v1")
    a.I("v_lshl_add_u32 v9, v10, 4, v9")
    a.I("s_mul_i32 s41, s26, 192")
    a.I("v_add_u32 v9, s41, v9")
    a.I("v_add_u32 v10, 49152, v9")
    for n in range(1, 5):
        a.I(f"s_movk_i32 s{44+n}, {4096*n}")
    a.I("s_waitcnt lgkmcnt(0)")
    srd(a, 28, 6, WS_BYTES)
    srd(a, 32, 4, 6291456)
    ACC = 16; RING = 64; NR = 12
    NCH = 10
    def issue(c):
        a.I("s_mov_b32 m0, s42")
        a.I("s_add_u32 s42, s42, 12288")
        for jj in range(3):
            a.I(f"buffer_load_dwordx4 v6, s[28:31], s43 offen offset:{1024*jj} lds")
        a.I("s_add_u32 s43, s43, 12288")
        for pp in range(2):
            p = 2 * c + pp
            so = "0" if p < 4 else f"s{44 + p // 4}"
            for u in range(2):
                a.I(f"buffer_load_dwordx4 {vr(8*p+4*u, 4, 'a')}, v{4+u}, s[28:31], {so} offen offset:{(p % 4) * 1024}")
    UP = 8
    for c in range(UP):
        issue(c)
    items = []
    class G: pass
    issued_chunks = [UP]
    for p in range(20):
        for t in range(6):
            it = {}
            if p % 2 == 0 and t == 0:
                c = p // 2
                ic = min(NCH, UP + c)
                it["gate"] = [f"s_waitcnt vmcnt({7*(ic-c-1)})", "s_barrier"]
                it["post_issue"] = UP + c if UP + c < NCH else None
            def reads(reg, p=p, t=t):
                off = (p * 6 + t) * 1024
                if off >= 61440:
                    return [f"ds_read_b128 {vr(reg)}, v8 offset:{off-61440}"]
                return [f"ds_read_b128 {vr(reg)}, v3 offset:{off}"]
            def mfma(reg, p=p, t=t):
                out = []
                for u in range(2):
                    acc = ACC + 4 * (t * 2 + u)
                    cc = "0" if p == 0 else vr(acc)
                    out.append(f"v_mfma_f32_16x16x32_bf16 {vr(acc)}, {vr(reg)}, {vr(8*p+4*u,4,'a')}, {cc}")
                return out
            it["reads"] = reads; it["mfma"] = mfma
            items.append(it)
    for it in items:
        if it.get("post_issue") is not None:
            sub = Asm()
            a_save = a
            c = it["post_issue"]
            tmp = []
            sub_a = Asm()
            def issue_to(sa, c=c):
                sa.I("s_mov_b32 m0, s42")
                sa.I("s_add_u32 s42, s42, 12288")
                for jj in range(3):
                    sa.I(f"buffer_load_dwordx4 v6, s[28:31], s43 offen offset:{1024*jj} lds")
                sa.I("s_add_u32 s43, s43, 12288")
                for pp in range(2):
                    p = 2 * c + pp
                    so = "0" if p < 4 else f"s{44 + p // 4}"
                    for u in range(2):
                        sa.I(f"buffer_load_dwordx4 {vr(8*p+4*u, 4, 'a')}, v{4+u}, s[28:31], {so} offen offset:{(p % 4) * 1024}")
            issue_to(sub_a)
            it["gate"] = it["gate"] + [l.strip() for l in sub_a.lines]
    rolling(a, items, depth=8, slots=[RING + 4*i for i in range(NR)])
    a.I("s_nop 7")
    O = RING
    k = 0
    for u in range(2):
        for s in range(3):
            o = O + 4 * k; k += 1
            a0 = ACC + 4 * ((2*s) * 2 + u); a1 = ACC + 4 * ((2*s+1) * 2 + u)
            a.I(f"v_cvt_pk_bf16_f32 v{o}, v{a0}, v{a0+1}")
            a.I(f"v_cvt_pk_bf16_f32 v{o+1}, v{a0+2}, v{a0+3}")
            a.I(f"v_cvt_pk_bf16_f32 v{o+2}, v{a1}, v{a1+1}")
            a.I(f"v_cvt_pk_bf16_f32 v{o+3}, v{a1+2}, v{a1+3}")
            a.I("s_nop 1")
            a.I(f"v_permlane16_swap_b32 v{o}, v{o+2}")
            a.I(f"v_permlane16_swap_b32 v{o+1}, v{o+3}")
            a.I(f"buffer_store_dwordx4 {vr(o)}, v{9+u}, s[32:35], 0 offen offset:{64*s}")
    a.L("L_k2_exit")
    a.I("s_endpgm")

def kd(name, nfv, acc_off, sgpr=96):
    return f""".p2align 6
.amdhsa_kernel {name}
  .amdhsa_next_free_vgpr {nfv}
  .amdhsa_next_free_sgpr {sgpr}
  .amdhsa_accum_offset {acc_off}
  .amdhsa_group_segment_fixed_size 0
  .amdhsa_kernarg_size 72
  .amdhsa_user_sgpr_count 2
  .amdhsa_user_sgpr_kernarg_segment_ptr 1
  .amdhsa_system_sgpr_workgroup_id_x 1
.end_amdhsa_kernel
"""

def gen(cfg):
    a = Asm()
    out = HEADER
    out += "; @launch kernel=quip_s1_kernel grid=(256,1,1) block=(512,1,1) lds=163840\n"
    out += "; @launch kernel=quip_s2_kernel grid=(256,1,1) block=(256,1,1) lds=122880\n"
    out += '.amdgcn_target "amdgcn-amd-amdhsa--gfx950"\n.text\n'
    gen_k1(a, cfg)
    gen_k2(a, cfg)
    out += a.text()
    out += '.section .rodata,"a"\n'
    out += kd("quip_s1_kernel", 256, 256)
    out += kd("quip_s2_kernel", 288, 128)
    return out

if __name__ == "__main__":
    cfg = {}
    outp = sys.argv[1] if len(sys.argv) > 1 else "standalone__weight_only_int_quip__prompt.s"
    for kv in sys.argv[2:]:
        k, v = kv.split("=")
        cfg[k] = int(v)
    open(outp, "w").write(gen(cfg))
```

```python
import sys

HEADER = open("standalone__weight_only_int_quip__prompt.s.ref").read().split("; Override launch")[0]

XR_OFF = 0
TT_OFF = 0x300000
WS_BYTES = 0x500000

class Asm:
    def __init__(self):
        self.lines = []
    def I(self, s):
        self.lines.append("    " + s)
    def L(self, s):
        self.lines.append(s + ":")
    def C(self, s):
        self.lines.append("    ; " + s)
    def text(self):
        return "\n".join(self.lines) + "\n"

def vr(b, n=4, p="v"):
    return f"{p}[{b}:{b+n-1}]" if n > 1 else f"{p}{b}"

STAMP_OFF = 0x600000
def stamp_begin(a, cfg):
    if cfg.get("stamp"):
        a.I("s_memrealtime s[80:81]")
        a.I("s_memtime s[82:83]")

def stamp_end(a, cfg, kidx, ws_lo, wave_sgpr):
    if cfg.get("stamp"):
        a.I("s_waitcnt vmcnt(0) lgkmcnt(0)")
        a.I("s_memrealtime s[84:85]")
        a.I("s_memtime s[86:87]")
        a.I("s_lshl_b32 s88, s2, 3")
        a.I(f"s_add_u32 s88, s88, s{wave_sgpr}")
        a.I("s_lshl_b32 s88, s88, 5")
        a.I(f"s_add_u32 s88, s88, {STAMP_OFF + kidx*0x40000}")
        a.I("s_getreg_b32 s89, hwreg(HW_REG_XCC_ID)")
        a.I("s_waitcnt lgkmcnt(0)")
        a.I("v_mov_b32 v0, s88")
        for k in range(8):
            a.I(f"v_mov_b32 v{2+k}, s{80+k}")
        a.I("v_mov_b32 v5, s89")
        a.I(f"global_store_dwordx4 v0, v[2:5], s[{ws_lo}:{ws_lo+1}]")
        a.I(f"global_store_dwordx4 v0, v[6:9], s[{ws_lo}:{ws_lo+1}] offset:16")

def srd(a, d, base, nbytes):
    a.I(f"s_mov_b32 s{d}, s{base}")
    a.I(f"s_and_b32 s{d+1}, s{base+1}, 0xffff")
    a.I(f"s_mov_b32 s{d+2}, {nbytes}")
    a.I(f"s_mov_b32 s{d+3}, 0x00020000")

def rolling(a, items, depth, slots, pre_outstanding=0):
    n = len(items)
    issued = 0
    nreads = []
    for k in range(n):
        while issued < min(n, k + depth):
            it = items[issued]
            if it.get("gate"):
                for g in it["gate"]:
                    a.I(g)
            rd = it["reads"](slots[issued % len(slots)])
            for r in rd:
                a.I(r)
            nreads.append(len(rd))
            issued += 1
        cnt = sum(nreads[k + 1:issued])
        assert cnt <= 15
        a.I(f"s_waitcnt lgkmcnt({cnt})")
        for m in items[k]["mfma"](slots[k % len(slots)]):
            a.I(m)

def gen_k1(a, cfg):
    K = "quip_s1_kernel"
    a.lines.append(f".globl {K}\n.p2align 8\n.type {K},@function")
    a.L(K)
    a.I("s_lshr_b32 s21, s2, 3")
    a.I("s_cmp_ge_u32 s21, 30")
    a.I("s_cbranch_scc1 L_k1_exit")
    stamp_begin(a, cfg)
    a.I("s_load_dwordx8 s[4:11], s[0:1], 0")
    a.I("s_load_dwordx4 s[12:15], s[0:1], 32")
    a.I("s_load_dwordx2 s[16:17], s[0:1], 64")
    a.I("s_and_b32 s20, s2, 7")
    a.I("s_lshr_b32 s22, s20, 1")
    a.I("s_and_b32 s23, s20, 1")
    a.I("v_and_b32 v1, 63, v0")
    a.I("v_lshrrev_b32 v2, 6, v0")
    a.I("s_nop 0")
    a.I("v_readfirstlane_b32 s24, v2")
    a.I("v_lshrrev_b32 v2, 4, v1")
    a.I("v_and_b32 v3, 15, v1")
    a.I("v_bfe_u32 v4, v1, 2, 2")
    a.I("v_and_b32 v5, 1, v2")
    a.I("s_cmp_ge_u32 s21, 20")
    a.I("s_cbranch_scc1 L_k1_roleA")
    gen_k1_b(a, cfg)
    a.L("L_k1_roleA")
    gen_k1_a(a, cfg)
    a.L("L_k1_exit")
    a.I("s_endpgm")

def dma_lane_part(a, dst, rowstride_sgpr, tmp):
    a.I(f"v_lshl_add_u32 v{tmp}, v2, 3, v4")
    a.I(f"v_mul_lo_u32 v{dst}, v{tmp}, s{rowstride_sgpr}")
    a.I(f"v_bfe_u32 v{tmp}, v1, 1, 1")
    a.I(f"v_xor_b32 v{tmp}, v{tmp}, v5")
    a.I(f"v_lshl_add_u32 v{dst}, v{tmp}, 5, v{dst}")
    a.I(f"v_and_b32 v{tmp}, 1, v1")
    a.I(f"v_lshl_add_u32 v{dst}, v{tmp}, 4, v{dst}")

def tr_lane_part(a, dst0, dst1, tmp):
    a.I(f"v_lshrrev_b32 v{tmp}, 2, v1")
    a.I(f"v_lshlrev_b32 v{dst0}, 6, v{tmp}")
    a.I(f"v_and_b32 v{tmp}, 3, v1")
    a.I(f"v_lshl_add_u32 v{dst0}, v{tmp}, 3, v{dst0}")
    a.I(f"v_lshl_add_u32 v{dst0}, v5, 5, v{dst0}")
    a.I(f"v_xor_b32 v{dst1}, 32, v{dst0}")

def gen_k1_a(a, cfg):
    nt_x = " nt" if cfg.get("nt_x") else ""
    nt_u = " nt" if cfg.get("nt_u") else ""
    a.C("role A: xr = x @ U, tile 128(m) x 128(e), wave tile 16 x 128")
    a.I("s_sub_u32 s25, s21, 20")
    a.I("s_and_b32 s26, s25, 1")
    a.I("s_lshr_b32 s27, s25, 1")
    a.I("s_lshl_b32 s40, s22, 2")
    a.I("s_lshl_b32 s41, s23, 1")
    a.I("s_add_u32 s40, s40, s41")
    a.I("s_add_u32 s40, s40, s26")
    a.I("s_lshl_b32 s40, s40, 3")
    a.I("s_add_u32 s40, s40, s24")
    a.I("s_movk_i32 s41, 1280")
    a.I("s_lshl_b32 s42, s40, 4")
    a.I("v_add_u32 v6, s42, v3")
    a.I("v_mul_lo_u32 v10, v6, s41")
    a.I("v_lshl_add_u32 v10, v2, 4, v10")
    dma_lane_part(a, 11, 41, 6)
    a.I("s_and_b32 s42, s24, 1")
    a.I("s_mul_i32 s42, s42, 5120")
    a.I("s_lshr_b32 s43, s24, 1")
    a.I("s_lshl_b32 s43, s43, 6")
    a.I("s_add_u32 s42, s42, s43")
    a.I("s_lshl_b32 s43, s27, 8")
    a.I("s_add_u32 s42, s42, s43")
    a.I("v_add_u32 v11, s42, v11")
    tr_lane_part(a, 12, 13, 6)
    a.I("v_add_u32 v14, 0x10000, v12")
    a.I("v_add_u32 v15, 0x10000, v13")
    a.I("v_add_u32 v16, 0x20000, v12")
    a.I("v_add_u32 v17, 0x20000, v13")
    a.I("s_mul_i32 s42, s40, 20")
    a.I("s_lshl_b32 s43, s27, 2")
    a.I("s_add_u32 s42, s42, s43")
    a.I("s_lshl_b32 s42, s42, 10")
    if XR_OFF:
        a.I(f"s_add_u32 s42, s42, {XR_OFF}")
    a.I("v_lshlrev_b32 v18, 4, v1")
    a.I("v_add_u32 v18, s42, v18")
    a.I("s_lshl_b32 s44, s24, 10")
    a.I("s_mov_b32 s45, 0")
    a.I("s_waitcnt lgkmcnt(0)")
    srd(a, 28, 4, 2621440)
    srd(a, 32, 12, 819200)
    srd(a, 36, 16, WS_BYTES)
    XF = 32; ACC = 112; RING = 144
    for p in range(20):
        a.I("s_mov_b32 m0, s44")
        a.I(f"s_add_u32 s44, s44, 8192")
        a.I(f"buffer_load_dwordx4 v11, s[32:35], s45 offen{nt_u} lds")
        a.I(f"buffer_load_dwordx4 {vr(XF+4*p)}, v10, s[28:31], 0 offen offset:{p*64}{nt_x}")
        a.I(f"s_add_u32 s45, s45, 40960")
    items = []
    CH = 2
    for p in range(20):
        for t in range(8):
            it = {}
            if p % CH == 0 and t == 0:
                c = p // CH
                it["gate"] = [f"s_waitcnt vmcnt({2*(20-CH*(c+1))})", "s_barrier"]
            def reads(reg, p=p, t=t):
                sc, tp = t >> 1, t & 1
                base = 12 + 2 * (p // 8) + tp
                off = (p % 8) * 8192 + sc * 2048
                return [f"ds_read_b64_tr_b16 {vr(reg,2)}, v{base} offset:{off}",
                        f"ds_read_b64_tr_b16 {vr(reg+2,2)}, v{base} offset:{off+1024}"]
            def mfma(reg, p=p, t=t):
                c = "0" if p == 0 else vr(ACC+4*t)
                return [f"v_mfma_f32_16x16x32_bf16 {vr(ACC+4*t)}, {vr(reg)}, {vr(XF+4*p)}, {c}"]
            it["reads"] = reads; it["mfma"] = mfma
            items.append(it)
    rolling(a, items, depth=7, slots=[RING + 4*i for i in range(8)])
    a.I("s_nop 7")
    for s in range(4):
        o = RING + 4*s
        a.I(f"v_cvt_pk_bf16_f32 v{o}, v{ACC+8*s}, v{ACC+8*s+1}")
        a.I(f"v_cvt_pk_bf16_f32 v{o+1}, v{ACC+8*s+2}, v{ACC+8*s+3}")
        a.I(f"v_cvt_pk_bf16_f32 v{o+2}, v{ACC+8*s+4}, v{ACC+8*s+5}")
        a.I(f"v_cvt_pk_bf16_f32 v{o+3}, v{ACC+8*s+6}, v{ACC+8*s+7}")
        a.I(f"buffer_store_dwordx4 {vr(o)}, v18, s[36:39], 0 offen offset:{s*1024}")
    stamp_end(a, cfg, 0, 16, 24)
    a.I("s_endpgm")

def gen_k1_b(a, cfg):
    nt_q = " nt" if cfg.get("nt_q") else ""
    nt_v = " nt" if cfg.get("nt_v") else ""
    a.C("role B: T = dequant(qw) @ V, tile 64(d) x 96(g), 8 waves")
    NS = 5; VBASE = 32768; VSLOT = 24576; NCH = 12; PD = 4
    a.I("s_and_b32 s25, s22, 1")
    a.I("s_mul_i32 s25, s25, 5")
    a.I("s_lshr_b32 s26, s21, 2")
    a.I("s_add_u32 s25, s25, s26")
    a.I("s_lshl_b32 s26, s23, 1")
    a.I("s_lshr_b32 s27, s22, 1")
    a.I("s_add_u32 s26, s26, s27")
    a.I("s_lshl_b32 s26, s26, 2")
    a.I("s_and_b32 s27, s21, 3")
    a.I("s_add_u32 s26, s26, s27")
    VQ = 10
    VS = 14
    VV = 15
    VAW = 18
    VAR = 22
    VBR = 24
    VST = 30
    RAW = 32
    SZ = 96
    ACC = 112
    RING = 136
    TMP = 176
    a.I("v_lshrrev_b32 v6, 5, v1")
    a.I("v_and_b32 v7, 31, v1")
    a.I("s_movk_i32 s41, 6144")
    a.I("s_lshl_b32 s42, s24, 3")
    a.I("v_add_u32 v8, s42, v6")
    a.I(f"v_mul_lo_u32 v{VQ}, v8, s41")
    a.I(f"v_lshl_add_u32 v{VQ}, v7, 4, v{VQ}")
    for n in range(1, 4):
        a.I(f"v_add_u32 v{VQ+n}, {12288*n}, v{VQ}")
    a.I("s_mul_i32 s46, s25, 393216")
    a.I("s_add_u32 s47, s46, 4096")
    a.I("s_lshl_b32 s42, s25, 1")
    a.I("s_lshr_b32 s43, s24, 2")
    a.I("s_add_u32 s42, s42, s43")
    a.I("s_mul_i32 s42, s42, 3072")
    a.I(f"v_lshlrev_b32 v{VS}, 3, v7")
    a.I(f"v_add_u32 v{VS}, s42, v{VS}")
    a.I("s_movk_i32 s41, 3072")
    dma_lane_part(a, 9, 41, 8)
    a.I("s_mul_i32 s42, s26, 192")
    a.I("v_add_u32 v9, s42, v9")
    for jj in range(3):
        a.I(f"s_mul_i32 s42, s24, 3")
        a.I(f"s_add_u32 s42, s42, {jj}")
        a.I(f"s_mul_i32 s43, s42, 43")
        a.I(f"s_lshr_b32 s43, s43, 8")
        a.I(f"s_mul_i32 s44, s43, 6")
        a.I(f"s_sub_u32 s44, s42, s44")
        a.I(f"s_and_b32 s45, s44, 1")
        a.I(f"s_lshr_b32 s44, s44, 1")
        a.I(f"s_lshl_b32 s43, s43, 5")
        a.I(f"s_lshl_b32 s45, s45, 2")
        a.I(f"s_add_u32 s43, s43, s45")
        a.I(f"s_mul_i32 s43, s43, 3072")
        a.I(f"s_lshl_b32 s44, s44, 6")
        a.I(f"s_add_u32 s43, s43, s44")
        a.I(f"v_add_u32 v{VV+jj}, s43, v9")
    a.I("v_lshrrev_b32 v8, 1, v7")
    a.I("v_lshlrev_b32 v9, 8, v8")
    a.I("v_and_b32 v8, 7, v8")
    a.I("v_and_b32 v31, 1, v7")
    a.I("v_lshl_add_u32 v9, v31, 3, v9")
    a.I("s_lshr_b32 s42, s24, 1")
    a.I("s_lshl_b32 s42, s42, 12")
    a.I("v_add_u32 v9, s42, v9")
    a.I("s_and_b32 s42, s24, 1")
    a.I("s_lshl_b32 s42, s42, 3")
    for n in range(4):
        a.I(f"s_add_u32 s43, s42, {2*n}")
        a.I(f"v_add_u32 v31, s43, v6")
        a.I(f"v_xor_b32 v31, v31, v8")
        a.I(f"v_lshl_add_u32 v{VAW+n}, v31, 4, v9")
    a.I("s_lshr_b32 s42, s24, 2")
    a.I("s_bfe_u32 s43, s24, 0x10001")
    a.I("s_lshl_b32 s44, s42, 11")
    a.I("s_lshl_b32 s45, s43, 13")
    a.I("s_add_u32 s44, s44, s45")
    a.I("v_lshlrev_b32 v8, 8, v2")
    a.I("v_add_u32 v8, s44, v8")
    a.I("v_xor_b32 v9, v3, v2")
    a.I(f"v_lshl_add_u32 v{VAR}, v9, 4, v8")
    a.I("v_xor_b32 v9, 4, v9")
    a.I(f"v_lshl_add_u32 v{VAR+1}, v9, 4, v8")
    a.I(f"v_add_u32 v{VAR+1}, 1024, v{VAR+1}")
    tr_lane_part(a, 8, 9, 31)
    a.I("s_and_b32 s45, s24, 1")
    a.I("s_mul_i32 s44, s42, 12288")
    a.I(f"s_add_u32 s44, s44, {VBASE}")
    a.I("s_cmp_eq_u32 s45, 0")
    a.I("s_cselect_b32 s48, 0, 32")
    a.I("s_cselect_b32 s49, 0, 2048")
    a.I("s_cselect_b32 s50, 0, 4096")
    a.I("s_add_u32 s51, s49, 2048")
    a.I("s_add_u32 s49, s49, s44")
    a.I("s_add_u32 s50, s50, s44")
    a.I("s_add_u32 s51, s51, s44")
    a.I(f"v_xor_b32 v{VBR}, s48, v8")
    a.I(f"v_xor_b32 v{VBR+1}, s48, v9")
    a.I(f"v_add_u32 v{VBR+2}, s51, v{VBR}")
    a.I(f"v_add_u32 v{VBR}, s49, v{VBR}")
    a.I(f"v_add_u32 v{VBR+1}, s50, v{VBR+1}")
    for tt in range(3):
        a.I(f"v_add_u32 v{VBR+3+tt}, {2*VSLOT}, v{VBR+tt}")
    a.I("s_mul_i32 s44, s26, 20")
    a.I("s_lshl_b32 s48, s25, 1")
    a.I("s_add_u32 s44, s44, s48")
    a.I("s_add_u32 s44, s44, s43")
    a.I("s_mul_i32 s44, s44, 6")
    a.I("s_mul_i32 s48, s45, 3")
    a.I("s_add_u32 s44, s44, s48")
    a.I("s_lshl_b32 s44, s44, 10")
    a.I(f"s_add_u32 s44, s44, {TT_OFF}")
    a.I(f"v_lshlrev_b32 v{VST}, 4, v1")
    a.I(f"v_add_u32 v{VST}, s44, v{VST}")
    a.I("s_mul_i32 s52, s24, 3072")
    a.I(f"s_add_u32 s52, s52, {VBASE}")
    a.I("s_waitcnt lgkmcnt(0)")
    srd(a, 28, 6, 3932160)
    srd(a, 32, 14, 4718592)
    srd(a, 36, 16, WS_BYTES)
    srd(a, 56, 8, 61440)
    srd(a, 60, 10, 61440)

    def issue(c):
        r = RAW + 16 * (c % 4); z = SZ + 4 * (c % 4)
        so = 46 + (c // 8)
        a.I(f"s_mov_b32 s54, {c * 128 * 3072}")
        for n in range(4):
            a.I(f"buffer_load_dwordx4 {vr(r+4*n)}, v{VQ+n}, s[28:31], s{so} offen offset:{(c % 8) * 512}{nt_q}")
        a.I(f"buffer_load_dwordx2 {vr(z,2)}, v{VS}, s[56:59], 0 offen offset:{c*256}")
        a.I(f"buffer_load_dwordx2 {vr(z+2,2)}, v{VS}, s[60:63], 0 offen offset:{c*256}")
        for jj in range(3):
            a.I(f"s_add_u32 m0, s52, {(c % NS) * VSLOT + 1024*jj}")
            a.I(f"s_nop 0")
            a.I(f"buffer_load_dwordx4 v{VV+jj}, s[32:35], s54 offen{nt_v} lds")

    def dequant(c):
        r = RAW + 16 * (c % 4); z = SZ + 4 * (c % 4)
        S = TMP; NZ = TMP + 4; F = TMP + 8; PK = TMP + 24
        buf = (c & 1) * 16384
        a.I(f"v_lshlrev_b32 v{S}, 16, v{z}")
        a.I(f"v_and_b32 v{S+1}, 0xffff0000, v{z}")
        a.I(f"v_lshlrev_b32 v{S+2}, 16, v{z+1}")
        a.I(f"v_and_b32 v{S+3}, 0xffff0000, v{z+1}")
        a.I(f"v_lshlrev_b32 v{NZ}, 16, v{z+2}")
        a.I(f"v_and_b32 v{NZ+1}, 0xffff0000, v{z+2}")
        a.I(f"v_lshlrev_b32 v{NZ+2}, 16, v{z+3}")
        a.I(f"v_and_b32 v{NZ+3}, 0xffff0000, v{z+3}")
        for n in range(4):
            for j in range(4):
                a.I(f"v_cvt_f32_i32 v{F+4*n+j}, v{r+4*n+j}")
        for n in range(4):
            for j in range(4):
                a.I(f"v_sub_f32 v{F+4*n+j}, v{F+4*n+j}, v{NZ+j}")
        for n in range(4):
            for j in range(4):
                a.I(f"v_mul_f32 v{F+4*n+j}, v{F+4*n+j}, v{S+j}")
        for n in range(4):
            a.I(f"v_cvt_pk_bf16_f32 v{PK+2*n}, v{F+4*n}, v{F+4*n+1}")
            a.I(f"v_cvt_pk_bf16_f32 v{PK+2*n+1}, v{F+4*n+2}, v{F+4*n+3}")
            a.I(f"ds_write_b64 v{VAW+n}, {vr(PK+2*n,2)} offset:{buf}")

    def mma(c):
        buf = (c & 1) * 16384
        slot = c % NS
        bset = 0 if slot < 2 else 1
        if slot >= 4:
            pass
        soff = (slot - 2 * bset) * VSLOT
        ops = []
        for pp in range(2):
            base = RING + 20 * pp
            for ta in range(2):
                ops.append(f"ds_read_b128 {vr(base+4*ta)}, v{VAR+pp} offset:{buf + ta*4096}")
            for tt in range(3):
                o = soff + pp * 6144
                ops.append(f"ds_read_b64_tr_b16 {vr(base+8+4*tt,2)}, v{VBR+3*bset+tt} offset:{o}")
                ops.append(f"ds_read_b64_tr_b16 {vr(base+10+4*tt,2)}, v{VBR+3*bset+tt} offset:{o+1024}")
        for o in ops[:14]:
            a.I(o)
        issued = 14
        for pp in range(2):
            base = RING + 20 * pp
            for tt in range(3):
                need = 8 * pp + 4 + 2 * tt
                a.I(f"s_waitcnt lgkmcnt({issued - need})")
                for ta in range(2):
                    acc = ACC + 4 * (ta * 3 + tt)
                    cc = "0" if (c == 0 and pp == 0) else vr(acc)
                    a.I(f"v_mfma_f32_16x16x32_bf16 {vr(acc)}, {vr(base+4*ta)}, {vr(base+8+4*tt)}, {cc}")
                if issued == 14:
                    for o in ops[14:]:
                        a.I(o)
                    issued = 16

    for c in range(PD):
        issue(c)
    a.I(f"s_waitcnt vmcnt({9*(PD-1)})")
    dequant(0)
    a.I("s_waitcnt lgkmcnt(0)")
    a.I("s_barrier")
    for c in range(NCH):
        if c + PD < NCH:
            issue(c + PD)
        mma(c)
        if c + 1 < NCH:
            newer = min(NCH, c + PD + 1) - (c + 2)
            a.I(f"s_waitcnt vmcnt({9*newer})")
            dequant(c + 1)
            a.I("s_waitcnt lgkmcnt(0)")
            a.I("s_barrier")
    a.I("s_barrier")
    a.I("s_and_b32 s44, s24, 3")
    a.I("s_mul_i32 s44, s44, 6144")
    a.I("v_lshlrev_b32 v8, 4, v1")
    a.I("v_add_u32 v8, s44, v8")
    a.I("s_nop 4")
    a.I("s_cmp_lt_u32 s24, 4")
    a.I("s_cbranch_scc1 L_k1b_lo")
    for t in range(6):
        a.I(f"ds_write_b128 v8, {vr(ACC+4*t)} offset:{t*1024}")
    a.I("s_waitcnt lgkmcnt(0)")
    a.I("s_barrier")
    stamp_end(a, cfg, 0, 16, 24)
    a.I("s_endpgm")
    a.L("L_k1b_lo")
    a.I("s_barrier")
    for t in range(6):
        a.I(f"ds_read_b128 {vr(RING+4*t)}, v8 offset:{t*1024}")
    for tt in range(3):
        a.I(f"s_waitcnt lgkmcnt({2-tt})")
        for ta in range(2):
            t = ta * 3 + tt
            for j in range(4):
                a.I(f"v_add_f32 v{ACC+4*t+j}, v{ACC+4*t+j}, v{RING+4*t+j}")
        o = TMP + 4 * tt
        a.I(f"v_cvt_pk_bf16_f32 v{o}, v{ACC+4*tt}, v{ACC+4*tt+1}")
        a.I(f"v_cvt_pk_bf16_f32 v{o+1}, v{ACC+4*tt+2}, v{ACC+4*tt+3}")
        a.I(f"v_cvt_pk_bf16_f32 v{o+2}, v{ACC+12+4*tt}, v{ACC+12+4*tt+1}")
        a.I(f"v_cvt_pk_bf16_f32 v{o+3}, v{ACC+12+4*tt+2}, v{ACC+12+4*tt+3}")
        a.I(f"buffer_store_dwordx4 {vr(o)}, v{VST}, s[36:39], 0 offen offset:{tt*1024}")
    stamp_end(a, cfg, 0, 16, 24)
    a.I("s_endpgm")

def gen_k2(a, cfg):
    K = "quip_s2_kernel"
    a.lines.append(f".globl {K}\n.p2align 8\n.type {K},@function")
    a.L(K)
    a.I("s_cmp_ge_u32 s2, 256")
    a.I("s_cbranch_scc1 L_k2_exit")
    stamp_begin(a, cfg)
    a.I("s_load_dwordx2 s[4:5], s[0:1], 48")
    a.I("s_load_dwordx2 s[6:7], s[0:1], 64")
    a.I("s_and_b32 s20, s2, 7")
    a.I("s_lshr_b32 s21, s2, 3")
    a.I("s_lshr_b32 s22, s20, 1")
    a.I("s_and_b32 s23, s20, 1")
    a.I("s_and_b32 s25, s21, 3")
    a.I("s_lshl_b32 s26, s22, 2")
    a.I("s_add_u32 s25, s25, s26")
    a.I("s_lshr_b32 s26, s21, 2")
    a.I("s_lshl_b32 s27, s23, 3")
    a.I("s_add_u32 s26, s26, s27")
    a.I("v_and_b32 v1, 63, v0")
    a.I("v_lshrrev_b32 v2, 6, v0")
    a.I("s_nop 0")
    a.I("v_readfirstlane_b32 s24, v2")
    a.I("v_lshlrev_b32 v3, 4, v1")
    a.I("s_lshl_b32 s40, s25, 3")
    a.I("s_lshl_b32 s41, s24, 1")
    a.I("s_add_u32 s40, s40, s41")
    a.I("s_mul_i32 s41, s40, 20480")
    if XR_OFF:
        a.I(f"s_add_u32 s41, s41, {XR_OFF}")
    a.I("v_add_u32 v4, s41, v3")
    a.I("v_add_u32 v5, 20480, v4")
    a.I("s_mul_i32 s42, s24, 3072")
    a.I("v_add_u32 v6, s42, v3")
    a.I("s_mul_i32 s43, s26, 122880")
    a.I(f"s_add_u32 s43, s43, {TT_OFF}")
    a.I("v_add_u32 v8, 61440, v3")
    a.I("v_and_b32 v9, 15, v1")
    a.I("s_lshl_b32 s41, s40, 4")
    a.I("v_add_u32 v9, s41, v9")
    a.I("s_movk_i32 s41, 3072")
    a.I("v_mul_lo_u32 v9, v9, s41")
    a.I("v_bfe_u32 v10, v1, 4, 1")
    a.I("v_lshl_add_u32 v9, v10, 5, v9")
    a.I("v_lshrrev_b32 v10, 5, v1")
    a.I("v_lshl_add_u32 v9, v10, 4, v9")
    a.I("s_mul_i32 s41, s26, 192")
    a.I("v_add_u32 v9, s41, v9")
    a.I("v_add_u32 v10, 49152, v9")
    for n in range(1, 5):
        a.I(f"s_movk_i32 s{44+n}, {4096*n}")
    a.I("s_waitcnt lgkmcnt(0)")
    srd(a, 28, 6, WS_BYTES)
    srd(a, 32, 4, 6291456)
    ACC = 16; RING = 64; NR = 12
    NCH = 10
    def issue(c):
        a.I("s_mov_b32 m0, s42")
        a.I("s_add_u32 s42, s42, 12288")
        for jj in range(3):
            a.I(f"buffer_load_dwordx4 v6, s[28:31], s43 offen offset:{1024*jj} lds")
        a.I("s_add_u32 s43, s43, 12288")
        for pp in range(2):
            p = 2 * c + pp
            so = "0" if p < 4 else f"s{44 + p // 4}"
            for u in range(2):
                a.I(f"buffer_load_dwordx4 {vr(8*p+4*u, 4, 'a')}, v{4+u}, s[28:31], {so} offen offset:{(p % 4) * 1024}")
    UP = 8
    for c in range(UP):
        issue(c)
    items = []
    class G: pass
    issued_chunks = [UP]
    for p in range(20):
        for t in range(6):
            it = {}
            if p % 2 == 0 and t == 0:
                c = p // 2
                ic = min(NCH, UP + c)
                it["gate"] = [f"s_waitcnt vmcnt({7*(ic-c-1)})", "s_barrier"]
                if cfg.get("stamp2"):
                    it["gate"] += [f"s_memtime s[{56+2*c}:{57+2*c}]"]
                it["post_issue"] = UP + c if UP + c < NCH else None
            def reads(reg, p=p, t=t):
                off = (p * 6 + t) * 1024
                if off >= 61440:
                    return [f"ds_read_b128 {vr(reg)}, v8 offset:{off-61440}"]
                return [f"ds_read_b128 {vr(reg)}, v3 offset:{off}"]
            def mfma(reg, p=p, t=t):
                out = []
                for u in range(2):
                    acc = ACC + 4 * (t * 2 + u)
                    cc = "0" if p == 0 else vr(acc)
                    out.append(f"v_mfma_f32_16x16x32_bf16 {vr(acc)}, {vr(reg)}, {vr(8*p+4*u,4,'a')}, {cc}")
                if cfg.get("k2_nomfma") and p > 0: out = []
                return out
            it["reads"] = reads; it["mfma"] = mfma
            items.append(it)
    for it in items:
        if it.get("post_issue") is not None:
            sub = Asm()
            a_save = a
            c = it["post_issue"]
            tmp = []
            sub_a = Asm()
            def issue_to(sa, c=c):
                sa.I("s_mov_b32 m0, s42")
                sa.I("s_add_u32 s42, s42, 12288")
                for jj in range(3):
                    sa.I(f"buffer_load_dwordx4 v6, s[28:31], s43 offen offset:{1024*jj} lds")
                sa.I("s_add_u32 s43, s43, 12288")
                for pp in range(2):
                    p = 2 * c + pp
                    so = "0" if p < 4 else f"s{44 + p // 4}"
                    for u in range(2):
                        sa.I(f"buffer_load_dwordx4 {vr(8*p+4*u, 4, 'a')}, v{4+u}, s[28:31], {so} offen offset:{(p % 4) * 1024}")
            issue_to(sub_a)
            it["gate"] = it["gate"] + [l.strip() for l in sub_a.lines]
    rolling(a, items, depth=8, slots=[RING + 4*i for i in range(NR)])
    a.I("s_nop 7")
    O = RING
    k = 0
    for u in range(2):
        for s in range(3):
            o = O + 4 * k; k += 1
            a0 = ACC + 4 * ((2*s) * 2 + u); a1 = ACC + 4 * ((2*s+1) * 2 + u)
            a.I(f"v_cvt_pk_bf16_f32 v{o}, v{a0}, v{a0+1}")
            a.I(f"v_cvt_pk_bf16_f32 v{o+1}, v{a0+2}, v{a0+3}")
            a.I(f"v_cvt_pk_bf16_f32 v{o+2}, v{a1}, v{a1+1}")
            a.I(f"v_cvt_pk_bf16_f32 v{o+3}, v{a1+2}, v{a1+3}")
            a.I("s_nop 1")
            a.I(f"v_permlane16_swap_b32 v{o}, v{o+2}")
            a.I(f"v_permlane16_swap_b32 v{o+1}, v{o+3}")
            a.I(f"buffer_store_dwordx4 {vr(o)}, v{9+u}, s[32:35], 0 offen offset:{64*s}")
    stamp_end(a, cfg, 1, 6, 24)
    if cfg.get("stamp2"):
        a.I("s_lshl_b32 s88, s2, 2")
        a.I("s_add_u32 s88, s88, s24")
        a.I("s_lshl_b32 s88, s88, 6")
        a.I(f"s_add_u32 s88, s88, {STAMP_OFF + 0x80000}")
        a.I("v_mov_b32 v0, s88")
        for c in range(10):
            a.I(f"s_sub_u32 s89, s{56+2*c}, s82")
            a.I(f"v_mov_b32 v2, s89")
            a.I(f"global_store_dword v0, v2, s[6:7] offset:{4*c}")
        a.I(f"s_sub_u32 s89, s86, s82")
        a.I(f"v_mov_b32 v2, s89")
        a.I(f"global_store_dword v0, v2, s[6:7] offset:40")
    a.L("L_k2_exit")
    a.I("s_endpgm")

def kd(name, nfv, acc_off, sgpr=96):
    return f""".p2align 6
.amdhsa_kernel {name}
  .amdhsa_next_free_vgpr {nfv}
  .amdhsa_next_free_sgpr {sgpr}
  .amdhsa_accum_offset {acc_off}
  .amdhsa_group_segment_fixed_size 0
  .amdhsa_kernarg_size 72
  .amdhsa_user_sgpr_count 2
  .amdhsa_user_sgpr_kernarg_segment_ptr 1
  .amdhsa_system_sgpr_workgroup_id_x 1
.end_amdhsa_kernel
"""

def gen(cfg):
    a = Asm()
    out = HEADER
    for _ in range(cfg.get("empty_pre", 0)):
        out += "; @launch kernel=quip_empty_kernel grid=(1,1,1) block=(64,1,1) lds=0\n"
    out += "; @launch kernel=quip_s1_kernel grid=(256,1,1) block=(512,1,1) lds=163840\n"
    out += "; @launch kernel=quip_s2_kernel grid=(256,1,1) block=(256,1,1) lds=122880\n"
    for _ in range(cfg.get("empty_post", 0)):
        out += "; @launch kernel=quip_empty_kernel grid=(1,1,1) block=(64,1,1) lds=0\n"
    out += '.amdgcn_target "amdgcn-amd-amdhsa--gfx950"\n.text\n'
    gen_k1(a, cfg)
    gen_k2(a, cfg)
    if cfg.get("empty_pre") or cfg.get("empty_post"):
        a.lines.append(".globl quip_empty_kernel\n.p2align 8\n.type quip_empty_kernel,@function\nquip_empty_kernel:\n    s_endpgm")
    out += a.text()
    out += '.section .rodata,"a"\n'
    if cfg.get("empty_pre") or cfg.get("empty_post"):
        out += kd("quip_empty_kernel", 8, 8, 16)
    out += kd("quip_s1_kernel", 256, 256)
    out += kd("quip_s2_kernel", 288, 128)
    return out

if __name__ == "__main__":
    cfg = {}
    outp = sys.argv[1] if len(sys.argv) > 1 else "standalone__weight_only_int_quip__prompt.s"
    for kv in sys.argv[2:]:
        k, v = kv.split("=")
        cfg[k] = int(v)
    open(outp, "w").write(gen(cfg))
```

```python
import sys

HEADER = open("standalone__weight_only_int_quip__prompt.s.ref").read().split("; Override launch")[0]

XR_OFF = 0
TT_OFF = 0x300000
WS_BYTES = 0x500000

class Asm:
    def __init__(self):
        self.lines = []
    def I(self, s):
        self.lines.append("    " + s)
    def L(self, s):
        self.lines.append(s + ":")
    def C(self, s):
        self.lines.append("    ; " + s)
    def text(self):
        return "\n".join(self.lines) + "\n"

def vr(b, n=4, p="v"):
    return f"{p}[{b}:{b+n-1}]" if n > 1 else f"{p}{b}"

STAMP_OFF = 0x600000
def stamp_begin(a, cfg):
    if cfg.get("stamp"):
        a.I("s_memrealtime s[80:81]")
        a.I("s_memtime s[82:83]")

def stamp_end(a, cfg, kidx, ws_lo, wave_sgpr):
    if cfg.get("stamp") == 2:
        a.I("s_waitcnt vmcnt(0) lgkmcnt(0)")
        a.I("s_memrealtime s[84:85]")
        a.I("s_memtime s[86:87]")
        a.I("s_load_dwordx2 s[90:91], s[0:1], 56")
        a.I("s_waitcnt lgkmcnt(0)")
        if kidx:
            a.I(f"s_sub_u32 s90, s90, {512*kidx}")
            a.I(f"s_subb_u32 s91, s91, 0")
        a.I("s_not_b32 s80, s80")
        a.I("s_sub_u32 s86, s86, s82")
        a.I("v_mov_b32 v0, 0")
        a.I("v_mov_b32 v2, s80")
        a.I("v_mov_b32 v3, s84")
        a.I("v_mov_b32 v4, s86")
        a.I("s_not_b32 s80, s80")
        a.I("v_mov_b32 v5, s80")
        a.I("s_mov_b64 exec, 1")
        a.I(f"global_atomic_umax v0, v2, s[90:91] offset:{16*kidx}")
        a.I(f"global_atomic_umax v0, v3, s[90:91] offset:{16*kidx+4}")
        a.I(f"global_atomic_umax v0, v4, s[90:91] offset:{16*kidx+8}")
        a.I(f"global_atomic_umax v0, v5, s[90:91] offset:{16*kidx+12}")
        return
    if cfg.get("stamp"):
        a.I("s_waitcnt vmcnt(0) lgkmcnt(0)")
        a.I("s_memrealtime s[84:85]")
        a.I("s_memtime s[86:87]")
        a.I("s_lshl_b32 s88, s2, 3")
        a.I(f"s_add_u32 s88, s88, s{wave_sgpr}")
        a.I("s_lshl_b32 s88, s88, 5")
        a.I(f"s_add_u32 s88, s88, {STAMP_OFF + kidx*0x40000}")
        a.I("s_getreg_b32 s89, hwreg(HW_REG_XCC_ID)")
        a.I("s_waitcnt lgkmcnt(0)")
        a.I("v_mov_b32 v0, s88")
        for k in range(8):
            a.I(f"v_mov_b32 v{2+k}, s{80+k}")
        a.I("v_mov_b32 v5, s89")
        a.I(f"global_store_dwordx4 v0, v[2:5], s[{ws_lo}:{ws_lo+1}]")
        a.I(f"global_store_dwordx4 v0, v[6:9], s[{ws_lo}:{ws_lo+1}] offset:16")

def srd(a, d, base, nbytes):
    a.I(f"s_mov_b32 s{d}, s{base}")
    a.I(f"s_and_b32 s{d+1}, s{base+1}, 0xffff")
    a.I(f"s_mov_b32 s{d+2}, {nbytes}")
    a.I(f"s_mov_b32 s{d+3}, 0x00020000")

def rolling(a, items, depth, slots, pre_outstanding=0):
    n = len(items)
    issued = 0
    nreads = []
    for k in range(n):
        while issued < min(n, k + depth):
            it = items[issued]
            if it.get("gate"):
                for g in it["gate"]:
                    a.I(g)
            rd = it["reads"](slots[issued % len(slots)])
            for r in rd:
                a.I(r)
            nreads.append(len(rd))
            issued += 1
        cnt = sum(nreads[k + 1:issued])
        assert cnt <= 15
        a.I(f"s_waitcnt lgkmcnt({cnt})")
        for m in items[k]["mfma"](slots[k % len(slots)]):
            a.I(m)

def gen_k1(a, cfg):
    K = "quip_s1_kernel"
    a.lines.append(f".globl {K}\n.p2align 8\n.type {K},@function")
    a.L(K)
    a.I("s_lshr_b32 s21, s2, 3")
    a.I("s_cmp_ge_u32 s21, 30")
    a.I("s_cbranch_scc1 L_k1_exit")
    stamp_begin(a, cfg)
    a.I("s_load_dwordx8 s[4:11], s[0:1], 0")
    a.I("s_load_dwordx4 s[12:15], s[0:1], 32")
    a.I("s_load_dwordx2 s[16:17], s[0:1], 64")
    a.I("s_and_b32 s20, s2, 7")
    a.I("s_lshr_b32 s22, s20, 1")
    a.I("s_and_b32 s23, s20, 1")
    a.I("v_and_b32 v1, 63, v0")
    a.I("v_lshrrev_b32 v2, 6, v0")
    a.I("s_nop 0")
    a.I("v_readfirstlane_b32 s24, v2")
    a.I("v_lshrrev_b32 v2, 4, v1")
    a.I("v_and_b32 v3, 15, v1")
    a.I("v_bfe_u32 v4, v1, 2, 2")
    a.I("v_and_b32 v5, 1, v2")
    a.I("s_cmp_ge_u32 s21, 20")
    a.I("s_cbranch_scc1 L_k1_roleA")
    gen_k1_b(a, cfg)
    a.L("L_k1_roleA")
    gen_k1_a(a, cfg)
    a.L("L_k1_exit")
    a.I("s_endpgm")

def dma_lane_part(a, dst, rowstride_sgpr, tmp):
    a.I(f"v_lshl_add_u32 v{tmp}, v2, 3, v4")
    a.I(f"v_mul_lo_u32 v{dst}, v{tmp}, s{rowstride_sgpr}")
    a.I(f"v_bfe_u32 v{tmp}, v1, 1, 1")
    a.I(f"v_xor_b32 v{tmp}, v{tmp}, v5")
    a.I(f"v_lshl_add_u32 v{dst}, v{tmp}, 5, v{dst}")
    a.I(f"v_and_b32 v{tmp}, 1, v1")
    a.I(f"v_lshl_add_u32 v{dst}, v{tmp}, 4, v{dst}")

def tr_lane_part(a, dst0, dst1, tmp):
    a.I(f"v_lshrrev_b32 v{tmp}, 2, v1")
    a.I(f"v_lshlrev_b32 v{dst0}, 6, v{tmp}")
    a.I(f"v_and_b32 v{tmp}, 3, v1")
    a.I(f"v_lshl_add_u32 v{dst0}, v{tmp}, 3, v{dst0}")
    a.I(f"v_lshl_add_u32 v{dst0}, v5, 5, v{dst0}")
    a.I(f"v_xor_b32 v{dst1}, 32, v{dst0}")

def gen_k1_a(a, cfg):
    nt_x = " nt" if cfg.get("nt_x") else ""
    nt_u = " nt" if cfg.get("nt_u") else ""
    a.C("role A: xr = x @ U, tile 128(m) x 128(e), wave tile 16 x 128")
    a.I("s_sub_u32 s25, s21, 20")
    a.I("s_and_b32 s26, s25, 1")
    a.I("s_lshr_b32 s27, s25, 1")
    a.I("s_lshl_b32 s40, s22, 2")
    a.I("s_lshl_b32 s41, s23, 1")
    a.I("s_add_u32 s40, s40, s41")
    a.I("s_add_u32 s40, s40, s26")
    a.I("s_lshl_b32 s40, s40, 3")
    a.I("s_add_u32 s40, s40, s24")
    a.I("s_movk_i32 s41, 1280")
    a.I("s_lshl_b32 s42, s40, 4")
    a.I("v_add_u32 v6, s42, v3")
    a.I("v_mul_lo_u32 v10, v6, s41")
    a.I("v_lshl_add_u32 v10, v2, 4, v10")
    dma_lane_part(a, 11, 41, 6)
    a.I("s_and_b32 s42, s24, 1")
    a.I("s_mul_i32 s42, s42, 5120")
    a.I("s_lshr_b32 s43, s24, 1")
    a.I("s_lshl_b32 s43, s43, 6")
    a.I("s_add_u32 s42, s42, s43")
    a.I("s_lshl_b32 s43, s27, 8")
    a.I("s_add_u32 s42, s42, s43")
    a.I("v_add_u32 v11, s42, v11")
    tr_lane_part(a, 12, 13, 6)
    a.I("v_add_u32 v14, 0x10000, v12")
    a.I("v_add_u32 v15, 0x10000, v13")
    a.I("v_add_u32 v16, 0x20000, v12")
    a.I("v_add_u32 v17, 0x20000, v13")
    a.I("s_mul_i32 s42, s40, 20")
    a.I("s_lshl_b32 s43, s27, 2")
    a.I("s_add_u32 s42, s42, s43")
    a.I("s_lshl_b32 s42, s42, 10")
    if XR_OFF:
        a.I(f"s_add_u32 s42, s42, {XR_OFF}")
    a.I("v_lshlrev_b32 v18, 4, v1")
    a.I("v_add_u32 v18, s42, v18")
    a.I("s_lshl_b32 s44, s24, 10")
    a.I("s_mov_b32 s45, 0")
    a.I("s_waitcnt lgkmcnt(0)")
    srd(a, 28, 4, 2621440)
    srd(a, 32, 12, 819200)
    srd(a, 36, 16, WS_BYTES)
    XF = 32; ACC = 112; RING = 144
    for p in range(20):
        a.I("s_mov_b32 m0, s44")
        a.I(f"s_add_u32 s44, s44, 8192")
        a.I(f"buffer_load_dwordx4 v11, s[32:35], s45 offen{nt_u} lds")
        a.I(f"buffer_load_dwordx4 {vr(XF+4*p)}, v10, s[28:31], 0 offen offset:{p*64}{nt_x}")
        a.I(f"s_add_u32 s45, s45, 40960")
    items = []
    CH = 2
    for p in range(20):
        for t in range(8):
            it = {}
            if p % CH == 0 and t == 0:
                c = p // CH
                it["gate"] = [f"s_waitcnt vmcnt({2*(20-CH*(c+1))})", "s_barrier"]
            def reads(reg, p=p, t=t):
                sc, tp = t >> 1, t & 1
                base = 12 + 2 * (p // 8) + tp
                off = (p % 8) * 8192 + sc * 2048
                return [f"ds_read_b64_tr_b16 {vr(reg,2)}, v{base} offset:{off}",
                        f"ds_read_b64_tr_b16 {vr(reg+2,2)}, v{base} offset:{off+1024}"]
            def mfma(reg, p=p, t=t):
                c = "0" if p == 0 else vr(ACC+4*t)
                return [f"v_mfma_f32_16x16x32_bf16 {vr(ACC+4*t)}, {vr(reg)}, {vr(XF+4*p)}, {c}"]
            it["reads"] = reads; it["mfma"] = mfma
            items.append(it)
    rolling(a, items, depth=7, slots=[RING + 4*i for i in range(8)])
    a.I("s_nop 7")
    for s in range(4):
        o = RING + 4*s
        a.I(f"v_cvt_pk_bf16_f32 v{o}, v{ACC+8*s}, v{ACC+8*s+1}")
        a.I(f"v_cvt_pk_bf16_f32 v{o+1}, v{ACC+8*s+2}, v{ACC+8*s+3}")
        a.I(f"v_cvt_pk_bf16_f32 v{o+2}, v{ACC+8*s+4}, v{ACC+8*s+5}")
        a.I(f"v_cvt_pk_bf16_f32 v{o+3}, v{ACC+8*s+6}, v{ACC+8*s+7}")
        a.I(f"buffer_store_dwordx4 {vr(o)}, v18, s[36:39], 0 offen offset:{s*1024}")
    stamp_end(a, cfg, 0, 16, 24)
    a.I("s_endpgm")

def gen_k1_b(a, cfg):
    nt_q = " nt" if cfg.get("nt_q") else ""
    nt_v = " nt" if cfg.get("nt_v") else ""
    a.C("role B: T = dequant(qw) @ V, tile 64(d) x 96(g), 8 waves")
    NS = 5; VBASE = 32768; VSLOT = 24576; NCH = 12; PD = 4
    a.I("s_and_b32 s25, s22, 1")
    a.I("s_mul_i32 s25, s25, 5")
    a.I("s_lshr_b32 s26, s21, 2")
    a.I("s_add_u32 s25, s25, s26")
    a.I("s_lshl_b32 s26, s23, 1")
    a.I("s_lshr_b32 s27, s22, 1")
    a.I("s_add_u32 s26, s26, s27")
    a.I("s_lshl_b32 s26, s26, 2")
    a.I("s_and_b32 s27, s21, 3")
    a.I("s_add_u32 s26, s26, s27")
    VQ = 10
    VS = 14
    VV = 15
    VAW = 18
    VAR = 22
    VBR = 24
    VST = 30
    RAW = 32
    SZ = 96
    ACC = 112
    RING = 136
    TMP = 176
    a.I("v_lshrrev_b32 v6, 5, v1")
    a.I("v_and_b32 v7, 31, v1")
    a.I("s_movk_i32 s41, 6144")
    a.I("s_lshl_b32 s42, s24, 3")
    a.I("v_add_u32 v8, s42, v6")
    a.I(f"v_mul_lo_u32 v{VQ}, v8, s41")
    a.I(f"v_lshl_add_u32 v{VQ}, v7, 4, v{VQ}")
    for n in range(1, 4):
        a.I(f"v_add_u32 v{VQ+n}, {12288*n}, v{VQ}")
    a.I("s_mul_i32 s46, s25, 393216")
    a.I("s_add_u32 s47, s46, 4096")
    a.I("s_lshl_b32 s42, s25, 1")
    a.I("s_lshr_b32 s43, s24, 2")
    a.I("s_add_u32 s42, s42, s43")
    a.I("s_mul_i32 s42, s42, 3072")
    a.I(f"v_lshlrev_b32 v{VS}, 3, v7")
    a.I(f"v_add_u32 v{VS}, s42, v{VS}")
    a.I("s_movk_i32 s41, 3072")
    dma_lane_part(a, 9, 41, 8)
    a.I("s_mul_i32 s42, s26, 192")
    a.I("v_add_u32 v9, s42, v9")
    for jj in range(3):
        a.I(f"s_mul_i32 s42, s24, 3")
        a.I(f"s_add_u32 s42, s42, {jj}")
        a.I(f"s_mul_i32 s43, s42, 43")
        a.I(f"s_lshr_b32 s43, s43, 8")
        a.I(f"s_mul_i32 s44, s43, 6")
        a.I(f"s_sub_u32 s44, s42, s44")
        a.I(f"s_and_b32 s45, s44, 1")
        a.I(f"s_lshr_b32 s44, s44, 1")
        a.I(f"s_lshl_b32 s43, s43, 5")
        a.I(f"s_lshl_b32 s45, s45, 2")
        a.I(f"s_add_u32 s43, s43, s45")
        a.I(f"s_mul_i32 s43, s43, 3072")
        a.I(f"s_lshl_b32 s44, s44, 6")
        a.I(f"s_add_u32 s43, s43, s44")
        a.I(f"v_add_u32 v{VV+jj}, s43, v9")
    a.I("v_lshrrev_b32 v8, 1, v7")
    a.I("v_lshlrev_b32 v9, 8, v8")
    a.I("v_and_b32 v8, 7, v8")
    a.I("v_and_b32 v31, 1, v7")
    a.I("v_lshl_add_u32 v9, v31, 3, v9")
    a.I("s_lshr_b32 s42, s24, 1")
    a.I("s_lshl_b32 s42, s42, 12")
    a.I("v_add_u32 v9, s42, v9")
    a.I("s_and_b32 s42, s24, 1")
    a.I("s_lshl_b32 s42, s42, 3")
    for n in range(4):
        a.I(f"s_add_u32 s43, s42, {2*n}")
        a.I(f"v_add_u32 v31, s43, v6")
        a.I(f"v_xor_b32 v31, v31, v8")
        a.I(f"v_lshl_add_u32 v{VAW+n}, v31, 4, v9")
    a.I("s_lshr_b32 s42, s24, 2")
    a.I("s_bfe_u32 s43, s24, 0x10001")
    a.I("s_lshl_b32 s44, s42, 11")
    a.I("s_lshl_b32 s45, s43, 13")
    a.I("s_add_u32 s44, s44, s45")
    a.I("v_lshlrev_b32 v8, 8, v2")
    a.I("v_add_u32 v8, s44, v8")
    a.I("v_xor_b32 v9, v3, v2")
    a.I(f"v_lshl_add_u32 v{VAR}, v9, 4, v8")
    a.I("v_xor_b32 v9, 4, v9")
    a.I(f"v_lshl_add_u32 v{VAR+1}, v9, 4, v8")
    a.I(f"v_add_u32 v{VAR+1}, 1024, v{VAR+1}")
    tr_lane_part(a, 8, 9, 31)
    a.I("s_and_b32 s45, s24, 1")
    a.I("s_mul_i32 s44, s42, 12288")
    a.I(f"s_add_u32 s44, s44, {VBASE}")
    a.I("s_cmp_eq_u32 s45, 0")
    a.I("s_cselect_b32 s48, 0, 32")
    a.I("s_cselect_b32 s49, 0, 2048")
    a.I("s_cselect_b32 s50, 0, 4096")
    a.I("s_add_u32 s51, s49, 2048")
    a.I("s_add_u32 s49, s49, s44")
    a.I("s_add_u32 s50, s50, s44")
    a.I("s_add_u32 s51, s51, s44")
    a.I(f"v_xor_b32 v{VBR}, s48, v8")
    a.I(f"v_xor_b32 v{VBR+1}, s48, v9")
    a.I(f"v_add_u32 v{VBR+2}, s51, v{VBR}")
    a.I(f"v_add_u32 v{VBR}, s49, v{VBR}")
    a.I(f"v_add_u32 v{VBR+1}, s50, v{VBR+1}")
    for tt in range(3):
        a.I(f"v_add_u32 v{VBR+3+tt}, {2*VSLOT}, v{VBR+tt}")
    a.I("s_mul_i32 s44, s26, 20")
    a.I("s_lshl_b32 s48, s25, 1")
    a.I("s_add_u32 s44, s44, s48")
    a.I("s_add_u32 s44, s44, s43")
    a.I("s_mul_i32 s44, s44, 6")
    a.I("s_mul_i32 s48, s45, 3")
    a.I("s_add_u32 s44, s44, s48")
    a.I("s_lshl_b32 s44, s44, 10")
    a.I(f"s_add_u32 s44, s44, {TT_OFF}")
    a.I(f"v_lshlrev_b32 v{VST}, 4, v1")
    a.I(f"v_add_u32 v{VST}, s44, v{VST}")
    a.I("s_mul_i32 s52, s24, 3072")
    a.I(f"s_add_u32 s52, s52, {VBASE}")
    a.I("s_waitcnt lgkmcnt(0)")
    srd(a, 28, 6, 3932160)
    srd(a, 32, 14, 4718592)
    srd(a, 36, 16, WS_BYTES)
    srd(a, 56, 8, 61440)
    srd(a, 60, 10, 61440)

    def issue(c):
        r = RAW + 16 * (c % 4); z = SZ + 4 * (c % 4)
        so = 46 + (c // 8)
        a.I(f"s_mov_b32 s54, {c * 128 * 3072}")
        for n in range(4):
            a.I(f"buffer_load_dwordx4 {vr(r+4*n)}, v{VQ+n}, s[28:31], s{so} offen offset:{(c % 8) * 512}{nt_q}")
        a.I(f"buffer_load_dwordx2 {vr(z,2)}, v{VS}, s[56:59], 0 offen offset:{c*256}")
        a.I(f"buffer_load_dwordx2 {vr(z+2,2)}, v{VS}, s[60:63], 0 offen offset:{c*256}")
        for jj in range(3):
            a.I(f"s_add_u32 m0, s52, {(c % NS) * VSLOT + 1024*jj}")
            a.I(f"s_nop 0")
            a.I(f"buffer_load_dwordx4 v{VV+jj}, s[32:35], s54 offen{nt_v} lds")

    def dequant(c):
        r = RAW + 16 * (c % 4); z = SZ + 4 * (c % 4)
        S = TMP; NZ = TMP + 4; F = TMP + 8; PK = TMP + 24
        buf = (c & 1) * 16384
        a.I(f"v_lshlrev_b32 v{S}, 16, v{z}")
        a.I(f"v_and_b32 v{S+1}, 0xffff0000, v{z}")
        a.I(f"v_lshlrev_b32 v{S+2}, 16, v{z+1}")
        a.I(f"v_and_b32 v{S+3}, 0xffff0000, v{z+1}")
        a.I(f"v_lshlrev_b32 v{NZ}, 16, v{z+2}")
        a.I(f"v_and_b32 v{NZ+1}, 0xffff0000, v{z+2}")
        a.I(f"v_lshlrev_b32 v{NZ+2}, 16, v{z+3}")
        a.I(f"v_and_b32 v{NZ+3}, 0xffff0000, v{z+3}")
        for n in range(4):
            for j in range(4):
                a.I(f"v_cvt_f32_i32 v{F+4*n+j}, v{r+4*n+j}")
        for n in range(4):
            for j in range(4):
                a.I(f"v_sub_f32 v{F+4*n+j}, v{F+4*n+j}, v{NZ+j}")
        for n in range(4):
            for j in range(4):
                a.I(f"v_mul_f32 v{F+4*n+j}, v{F+4*n+j}, v{S+j}")
        for n in range(4):
            a.I(f"v_cvt_pk_bf16_f32 v{PK+2*n}, v{F+4*n}, v{F+4*n+1}")
            a.I(f"v_cvt_pk_bf16_f32 v{PK+2*n+1}, v{F+4*n+2}, v{F+4*n+3}")
            a.I(f"ds_write_b64 v{VAW+n}, {vr(PK+2*n,2)} offset:{buf}")

    def mma(c):
        buf = (c & 1) * 16384
        slot = c % NS
        bset = 0 if slot < 2 else 1
        if slot >= 4:
            pass
        soff = (slot - 2 * bset) * VSLOT
        ops = []
        for pp in range(2):
            base = RING + 20 * pp
            for ta in range(2):
                ops.append(f"ds_read_b128 {vr(base+4*ta)}, v{VAR+pp} offset:{buf + ta*4096}")
            for tt in range(3):
                o = soff + pp * 6144
                ops.append(f"ds_read_b64_tr_b16 {vr(base+8+4*tt,2)}, v{VBR+3*bset+tt} offset:{o}")
                ops.append(f"ds_read_b64_tr_b16 {vr(base+10+4*tt,2)}, v{VBR+3*bset+tt} offset:{o+1024}")
        for o in ops[:14]:
            a.I(o)
        issued = 14
        for pp in range(2):
            base = RING + 20 * pp
            for tt in range(3):
                need = 8 * pp + 4 + 2 * tt
                a.I(f"s_waitcnt lgkmcnt({issued - need})")
                for ta in range(2):
                    acc = ACC + 4 * (ta * 3 + tt)
                    cc = "0" if (c == 0 and pp == 0) else vr(acc)
                    a.I(f"v_mfma_f32_16x16x32_bf16 {vr(acc)}, {vr(base+4*ta)}, {vr(base+8+4*tt)}, {cc}")
                if issued == 14:
                    for o in ops[14:]:
                        a.I(o)
                    issued = 16

    for c in range(PD):
        issue(c)
    a.I(f"s_waitcnt vmcnt({9*(PD-1)})")
    dequant(0)
    a.I("s_waitcnt lgkmcnt(0)")
    a.I("s_barrier")
    for c in range(NCH):
        if c + PD < NCH:
            issue(c + PD)
        mma(c)
        if c + 1 < NCH:
            newer = min(NCH, c + PD + 1) - (c + 2)
            a.I(f"s_waitcnt vmcnt({9*newer})")
            dequant(c + 1)
            a.I("s_waitcnt lgkmcnt(0)")
            a.I("s_barrier")
    a.I("s_barrier")
    a.I("s_and_b32 s44, s24, 3")
    a.I("s_mul_i32 s44, s44, 6144")
    a.I("v_lshlrev_b32 v8, 4, v1")
    a.I("v_add_u32 v8, s44, v8")
    a.I("s_nop 4")
    a.I("s_cmp_lt_u32 s24, 4")
    a.I("s_cbranch_scc1 L_k1b_lo")
    for t in range(6):
        a.I(f"ds_write_b128 v8, {vr(ACC+4*t)} offset:{t*1024}")
    a.I("s_waitcnt lgkmcnt(0)")
    a.I("s_barrier")
    stamp_end(a, cfg, 0, 16, 24)
    a.I("s_endpgm")
    a.L("L_k1b_lo")
    a.I("s_barrier")
    for t in range(6):
        a.I(f"ds_read_b128 {vr(RING+4*t)}, v8 offset:{t*1024}")
    for tt in range(3):
        a.I(f"s_waitcnt lgkmcnt({2-tt})")
        for ta in range(2):
            t = ta * 3 + tt
            for j in range(4):
                a.I(f"v_add_f32 v{ACC+4*t+j}, v{ACC+4*t+j}, v{RING+4*t+j}")
        o = TMP + 4 * tt
        a.I(f"v_cvt_pk_bf16_f32 v{o}, v{ACC+4*tt}, v{ACC+4*tt+1}")
        a.I(f"v_cvt_pk_bf16_f32 v{o+1}, v{ACC+4*tt+2}, v{ACC+4*tt+3}")
        a.I(f"v_cvt_pk_bf16_f32 v{o+2}, v{ACC+12+4*tt}, v{ACC+12+4*tt+1}")
        a.I(f"v_cvt_pk_bf16_f32 v{o+3}, v{ACC+12+4*tt+2}, v{ACC+12+4*tt+3}")
        a.I(f"buffer_store_dwordx4 {vr(o)}, v{VST}, s[36:39], 0 offen offset:{tt*1024}")
    stamp_end(a, cfg, 0, 16, 24)
    a.I("s_endpgm")

def gen_k2(a, cfg):
    K = "quip_s2_kernel"
    a.lines.append(f".globl {K}\n.p2align 8\n.type {K},@function")
    a.L(K)
    a.I("s_cmp_ge_u32 s2, 256")
    a.I("s_cbranch_scc1 L_k2_exit")
    stamp_begin(a, cfg)
    a.I("s_load_dwordx2 s[4:5], s[0:1], 48")
    a.I("s_load_dwordx2 s[6:7], s[0:1], 64")
    a.I("s_and_b32 s20, s2, 7")
    a.I("s_lshr_b32 s21, s2, 3")
    a.I("s_lshr_b32 s22, s20, 1")
    a.I("s_and_b32 s23, s20, 1")
    a.I("s_and_b32 s25, s21, 3")
    a.I("s_lshl_b32 s26, s22, 2")
    a.I("s_add_u32 s25, s25, s26")
    a.I("s_lshr_b32 s26, s21, 2")
    a.I("s_lshl_b32 s27, s23, 3")
    a.I("s_add_u32 s26, s26, s27")
    a.I("v_and_b32 v1, 63, v0")
    a.I("v_lshrrev_b32 v2, 6, v0")
    a.I("s_nop 0")
    a.I("v_readfirstlane_b32 s24, v2")
    a.I("v_lshlrev_b32 v3, 4, v1")
    a.I("s_lshl_b32 s40, s25, 3")
    a.I("s_lshl_b32 s41, s24, 1")
    a.I("s_add_u32 s40, s40, s41")
    a.I("s_mul_i32 s41, s40, 20480")
    if XR_OFF:
        a.I(f"s_add_u32 s41, s41, {XR_OFF}")
    a.I("v_add_u32 v4, s41, v3")
    a.I("v_add_u32 v5, 20480, v4")
    a.I("s_mul_i32 s42, s24, 3072")
    a.I("v_add_u32 v6, s42, v3")
    a.I("s_mul_i32 s43, s26, 122880")
    a.I(f"s_add_u32 s43, s43, {TT_OFF}")
    a.I("v_add_u32 v8, 61440, v3")
    a.I("v_and_b32 v9, 15, v1")
    a.I("s_lshl_b32 s41, s40, 4")
    a.I("v_add_u32 v9, s41, v9")
    a.I("s_movk_i32 s41, 3072")
    a.I("v_mul_lo_u32 v9, v9, s41")
    a.I("v_bfe_u32 v10, v1, 4, 1")
    a.I("v_lshl_add_u32 v9, v10, 5, v9")
    a.I("v_lshrrev_b32 v10, 5, v1")
    a.I("v_lshl_add_u32 v9, v10, 4, v9")
    a.I("s_mul_i32 s41, s26, 192")
    a.I("v_add_u32 v9, s41, v9")
    a.I("v_add_u32 v10, 49152, v9")
    for n in range(1, 5):
        a.I(f"s_movk_i32 s{44+n}, {4096*n}")
    a.I("s_waitcnt lgkmcnt(0)")
    srd(a, 28, 6, WS_BYTES)
    srd(a, 32, 4, 6291456)
    ACC = 16; RING = 64; NR = 12
    NCH = 10
    def issue(c):
        a.I("s_mov_b32 m0, s42")
        a.I("s_add_u32 s42, s42, 12288")
        for jj in range(3):
            a.I(f"buffer_load_dwordx4 v6, s[28:31], s43 offen offset:{1024*jj} lds")
        a.I("s_add_u32 s43, s43, 12288")
        for pp in range(2):
            p = 2 * c + pp
            so = "0" if p < 4 else f"s{44 + p // 4}"
            for u in range(2):
                a.I(f"buffer_load_dwordx4 {vr(8*p+4*u, 4, 'a')}, v{4+u}, s[28:31], {so} offen offset:{(p % 4) * 1024}")
    UP = 8
    for c in range(UP):
        issue(c)
    items = []
    class G: pass
    issued_chunks = [UP]
    for p in range(20):
        for t in range(6):
            it = {}
            if p % 2 == 0 and t == 0:
                c = p // 2
                ic = min(NCH, UP + c)
                it["gate"] = [f"s_waitcnt vmcnt({7*(ic-c-1)})", "s_barrier"]
                if cfg.get("stamp2"):
                    it["gate"] += [f"s_memtime s[{56+2*c}:{57+2*c}]"]
                it["post_issue"] = UP + c if UP + c < NCH else None
            def reads(reg, p=p, t=t):
                off = (p * 6 + t) * 1024
                if off >= 61440:
                    return [f"ds_read_b128 {vr(reg)}, v8 offset:{off-61440}"]
                return [f"ds_read_b128 {vr(reg)}, v3 offset:{off}"]
            def mfma(reg, p=p, t=t):
                out = []
                for u in range(2):
                    acc = ACC + 4 * (t * 2 + u)
                    cc = "0" if p == 0 else vr(acc)
                    out.append(f"v_mfma_f32_16x16x32_bf16 {vr(acc)}, {vr(reg)}, {vr(8*p+4*u,4,'a')}, {cc}")
                if cfg.get("k2_nomfma") and p > 0: out = []
                return out
            it["reads"] = reads; it["mfma"] = mfma
            items.append(it)
    for it in items:
        if it.get("post_issue") is not None:
            sub = Asm()
            a_save = a
            c = it["post_issue"]
            tmp = []
            sub_a = Asm()
            def issue_to(sa, c=c):
                sa.I("s_mov_b32 m0, s42")
                sa.I("s_add_u32 s42, s42, 12288")
                for jj in range(3):
                    sa.I(f"buffer_load_dwordx4 v6, s[28:31], s43 offen offset:{1024*jj} lds")
                sa.I("s_add_u32 s43, s43, 12288")
                for pp in range(2):
                    p = 2 * c + pp
                    so = "0" if p < 4 else f"s{44 + p // 4}"
                    for u in range(2):
                        sa.I(f"buffer_load_dwordx4 {vr(8*p+4*u, 4, 'a')}, v{4+u}, s[28:31], {so} offen offset:{(p % 4) * 1024}")
            issue_to(sub_a)
            it["gate"] = it["gate"] + [l.strip() for l in sub_a.lines]
    rolling(a, items, depth=8, slots=[RING + 4*i for i in range(NR)])
    a.I("s_nop 7")
    O = RING
    k = 0
    for u in range(2):
        for s in range(3):
            o = O + 4 * k; k += 1
            a0 = ACC + 4 * ((2*s) * 2 + u); a1 = ACC + 4 * ((2*s+1) * 2 + u)
            a.I(f"v_cvt_pk_bf16_f32 v{o}, v{a0}, v{a0+1}")
            a.I(f"v_cvt_pk_bf16_f32 v{o+1}, v{a0+2}, v{a0+3}")
            a.I(f"v_cvt_pk_bf16_f32 v{o+2}, v{a1}, v{a1+1}")
            a.I(f"v_cvt_pk_bf16_f32 v{o+3}, v{a1+2}, v{a1+3}")
            a.I("s_nop 1")
            a.I(f"v_permlane16_swap_b32 v{o}, v{o+2}")
            a.I(f"v_permlane16_swap_b32 v{o+1}, v{o+3}")
            a.I(f"buffer_store_dwordx4 {vr(o)}, v{9+u}, s[32:35], 0 offen offset:{64*s}")
    stamp_end(a, cfg, 1, 6, 24)
    if cfg.get("stamp2"):
        a.I("s_lshl_b32 s88, s2, 2")
        a.I("s_add_u32 s88, s88, s24")
        a.I("s_lshl_b32 s88, s88, 6")
        a.I(f"s_add_u32 s88, s88, {STAMP_OFF + 0x80000}")
        a.I("v_mov_b32 v0, s88")
        for c in range(10):
            a.I(f"s_sub_u32 s89, s{56+2*c}, s82")
            a.I(f"v_mov_b32 v2, s89")
            a.I(f"global_store_dword v0, v2, s[6:7] offset:{4*c}")
        a.I(f"s_sub_u32 s89, s86, s82")
        a.I(f"v_mov_b32 v2, s89")
        a.I(f"global_store_dword v0, v2, s[6:7] offset:40")
    a.L("L_k2_exit")
    a.I("s_endpgm")

def kd(name, nfv, acc_off, sgpr=96):
    return f""".p2align 6
.amdhsa_kernel {name}
  .amdhsa_next_free_vgpr {nfv}
  .amdhsa_next_free_sgpr {sgpr}
  .amdhsa_accum_offset {acc_off}
  .amdhsa_group_segment_fixed_size 0
  .amdhsa_kernarg_size 72
  .amdhsa_user_sgpr_count 2
  .amdhsa_user_sgpr_kernarg_segment_ptr 1
  .amdhsa_system_sgpr_workgroup_id_x 1
.end_amdhsa_kernel
"""

def gen(cfg):
    a = Asm()
    out = HEADER
    for _ in range(cfg.get("empty_pre", 0)):
        out += "; @launch kernel=quip_empty_kernel grid=(1,1,1) block=(64,1,1) lds=0\n"
    out += "; @launch kernel=quip_s1_kernel grid=(256,1,1) block=(512,1,1) lds=163840\n"
    out += "; @launch kernel=quip_s2_kernel grid=(256,1,1) block=(256,1,1) lds=122880\n"
    for _ in range(cfg.get("empty_post", 0)):
        out += "; @launch kernel=quip_empty_kernel grid=(1,1,1) block=(64,1,1) lds=0\n"
    out += '.amdgcn_target "amdgcn-amd-amdhsa--gfx950"\n.text\n'
    gen_k1(a, cfg)
    gen_k2(a, cfg)
    if cfg.get("empty_pre") or cfg.get("empty_post"):
        a.lines.append(".globl quip_empty_kernel\n.p2align 8\n.type quip_empty_kernel,@function\nquip_empty_kernel:\n    s_endpgm")
    out += a.text()
    out += '.section .rodata,"a"\n'
    if cfg.get("empty_pre") or cfg.get("empty_post"):
        out += kd("quip_empty_kernel", 8, 8, 16)
    out += kd("quip_s1_kernel", 256, 256)
    out += kd("quip_s2_kernel", 288, 128)
    return out

if __name__ == "__main__":
    cfg = {}
    outp = sys.argv[1] if len(sys.argv) > 1 else "standalone__weight_only_int_quip__prompt.s"
    for kv in sys.argv[2:]:
        k, v = kv.split("=")
        cfg[k] = int(v)
    open(outp, "w").write(gen(cfg))
```

```python
import sys

HEADER = open("standalone__weight_only_int_quip__prompt.s.ref").read().split("; Override launch")[0]

XR_OFF = 0
TT_OFF = 0x300000
WS_BYTES = 0x500000

class Asm:
    def __init__(self):
        self.lines = []
    def I(self, s):
        self.lines.append("    " + s)
    def L(self, s):
        self.lines.append(s + ":")
    def C(self, s):
        self.lines.append("    ; " + s)
    def text(self):
        return "\n".join(self.lines) + "\n"

def vr(b, n=4, p="v"):
    return f"{p}[{b}:{b+n-1}]" if n > 1 else f"{p}{b}"

STAMP_OFF = 0x600000
def stamp_begin(a, cfg):
    if cfg.get("stamp"):
        a.I("s_memrealtime s[80:81]")
        a.I("s_memtime s[82:83]")

def stamp_end(a, cfg, kidx, ws_lo, wave_sgpr):
    if cfg.get("stamp") == 2:
        a.I("s_waitcnt vmcnt(0) lgkmcnt(0)")
        a.I("s_memrealtime s[84:85]")
        a.I("s_memtime s[86:87]")
        a.I("s_load_dwordx2 s[90:91], s[0:1], 56")
        a.I("s_waitcnt lgkmcnt(0)")
        if kidx == 0:
            a.I(f"s_add_u32 s90, s90, 512")
            a.I(f"s_addc_u32 s91, s91, 0")
        lbl = f"L_stamp_skip_{len(a.lines)}"
        a.I(f"s_cmp_lg_u32 s{wave_sgpr}, 0")
        a.I(f"s_cbranch_scc1 {lbl}")
        a.I("s_not_b32 s80, s80")
        a.I("s_sub_u32 s86, s86, s82")
        a.I("v_mov_b32 v0, 0")
        a.I("v_mov_b32 v2, s80")
        a.I("v_mov_b32 v3, s84")
        a.I("v_mov_b32 v4, s86")
        a.I("s_not_b32 s80, s80")
        a.I("v_mov_b32 v5, s80")
        a.I("s_mov_b64 exec, 1")
        a.I(f"global_atomic_umax v0, v2, s[90:91] offset:{16*kidx}")
        a.I(f"global_atomic_umax v0, v3, s[90:91] offset:{16*kidx+4}")
        a.I(f"global_atomic_umax v0, v4, s[90:91] offset:{16*kidx+8}")
        a.I(f"global_atomic_umax v0, v5, s[90:91] offset:{16*kidx+12}")
        a.L(lbl)
        return
    if cfg.get("stamp"):
        a.I("s_waitcnt vmcnt(0) lgkmcnt(0)")
        a.I("s_memrealtime s[84:85]")
        a.I("s_memtime s[86:87]")
        a.I("s_lshl_b32 s88, s2, 3")
        a.I(f"s_add_u32 s88, s88, s{wave_sgpr}")
        a.I("s_lshl_b32 s88, s88, 5")
        a.I(f"s_add_u32 s88, s88, {STAMP_OFF + kidx*0x40000}")
        a.I("s_getreg_b32 s89, hwreg(HW_REG_XCC_ID)")
        a.I("s_waitcnt lgkmcnt(0)")
        a.I("v_mov_b32 v0, s88")
        for k in range(8):
            a.I(f"v_mov_b32 v{2+k}, s{80+k}")
        a.I("v_mov_b32 v5, s89")
        a.I(f"global_store_dwordx4 v0, v[2:5], s[{ws_lo}:{ws_lo+1}]")
        a.I(f"global_store_dwordx4 v0, v[6:9], s[{ws_lo}:{ws_lo+1}] offset:16")

def srd(a, d, base, nbytes):
    a.I(f"s_mov_b32 s{d}, s{base}")
    a.I(f"s_and_b32 s{d+1}, s{base+1}, 0xffff")
    a.I(f"s_mov_b32 s{d+2}, {nbytes}")
    a.I(f"s_mov_b32 s{d+3}, 0x00020000")

def rolling(a, items, depth, slots, pre_outstanding=0):
    n = len(items)
    issued = 0
    nreads = []
    for k in range(n):
        while issued < min(n, k + depth):
            it = items[issued]
            if it.get("gate"):
                for g in it["gate"]:
                    a.I(g)
            rd = it["reads"](slots[issued % len(slots)])
            for r in rd:
                a.I(r)
            nreads.append(len(rd))
            issued += 1
        cnt = sum(nreads[k + 1:issued])
        assert cnt <= 15
        a.I(f"s_waitcnt lgkmcnt({cnt})")
        for m in items[k]["mfma"](slots[k % len(slots)]):
            a.I(m)

def gen_k1(a, cfg):
    K = "quip_s1_kernel"
    a.lines.append(f".globl {K}\n.p2align 8\n.type {K},@function")
    a.L(K)
    a.I("s_lshr_b32 s21, s2, 3")
    a.I("s_cmp_ge_u32 s21, 30")
    a.I("s_cbranch_scc1 L_k1_exit")
    stamp_begin(a, cfg)
    a.I("s_load_dwordx8 s[4:11], s[0:1], 0")
    a.I("s_load_dwordx4 s[12:15], s[0:1], 32")
    a.I("s_load_dwordx2 s[16:17], s[0:1], 64")
    a.I("s_and_b32 s20, s2, 7")
    a.I("s_lshr_b32 s22, s20, 1")
    a.I("s_and_b32 s23, s20, 1")
    a.I("v_and_b32 v1, 63, v0")
    a.I("v_lshrrev_b32 v2, 6, v0")
    a.I("s_nop 0")
    a.I("v_readfirstlane_b32 s24, v2")
    a.I("v_lshrrev_b32 v2, 4, v1")
    a.I("v_and_b32 v3, 15, v1")
    a.I("v_bfe_u32 v4, v1, 2, 2")
    a.I("v_and_b32 v5, 1, v2")
    a.I("s_cmp_ge_u32 s21, 20")
    a.I("s_cbranch_scc1 L_k1_roleA")
    gen_k1_b(a, cfg)
    a.L("L_k1_roleA")
    gen_k1_a(a, cfg)
    a.L("L_k1_exit")
    a.I("s_endpgm")

def dma_lane_part(a, dst, rowstride_sgpr, tmp):
    a.I(f"v_lshl_add_u32 v{tmp}, v2, 3, v4")
    a.I(f"v_mul_lo_u32 v{dst}, v{tmp}, s{rowstride_sgpr}")
    a.I(f"v_bfe_u32 v{tmp}, v1, 1, 1")
    a.I(f"v_xor_b32 v{tmp}, v{tmp}, v5")
    a.I(f"v_lshl_add_u32 v{dst}, v{tmp}, 5, v{dst}")
    a.I(f"v_and_b32 v{tmp}, 1, v1")
    a.I(f"v_lshl_add_u32 v{dst}, v{tmp}, 4, v{dst}")

def tr_lane_part(a, dst0, dst1, tmp):
    a.I(f"v_lshrrev_b32 v{tmp}, 2, v1")
    a.I(f"v_lshlrev_b32 v{dst0}, 6, v{tmp}")
    a.I(f"v_and_b32 v{tmp}, 3, v1")
    a.I(f"v_lshl_add_u32 v{dst0}, v{tmp}, 3, v{dst0}")
    a.I(f"v_lshl_add_u32 v{dst0}, v5, 5, v{dst0}")
    a.I(f"v_xor_b32 v{dst1}, 32, v{dst0}")

def gen_k1_a(a, cfg):
    nt_x = " nt" if cfg.get("nt_x") else ""
    nt_u = " nt" if cfg.get("nt_u") else ""
    a.C("role A: xr = x @ U, tile 128(m) x 128(e), wave tile 16 x 128")
    a.I("s_sub_u32 s25, s21, 20")
    a.I("s_and_b32 s26, s25, 1")
    a.I("s_lshr_b32 s27, s25, 1")
    a.I("s_lshl_b32 s40, s22, 2")
    a.I("s_lshl_b32 s41, s23, 1")
    a.I("s_add_u32 s40, s40, s41")
    a.I("s_add_u32 s40, s40, s26")
    a.I("s_lshl_b32 s40, s40, 3")
    a.I("s_add_u32 s40, s40, s24")
    a.I("s_movk_i32 s41, 1280")
    a.I("s_lshl_b32 s42, s40, 4")
    a.I("v_add_u32 v6, s42, v3")
    a.I("v_mul_lo_u32 v10, v6, s41")
    a.I("v_lshl_add_u32 v10, v2, 4, v10")
    dma_lane_part(a, 11, 41, 6)
    a.I("s_and_b32 s42, s24, 1")
    a.I("s_mul_i32 s42, s42, 5120")
    a.I("s_lshr_b32 s43, s24, 1")
    a.I("s_lshl_b32 s43, s43, 6")
    a.I("s_add_u32 s42, s42, s43")
    a.I("s_lshl_b32 s43, s27, 8")
    a.I("s_add_u32 s42, s42, s43")
    a.I("v_add_u32 v11, s42, v11")
    tr_lane_part(a, 12, 13, 6)
    a.I("v_add_u32 v14, 0x10000, v12")
    a.I("v_add_u32 v15, 0x10000, v13")
    a.I("v_add_u32 v16, 0x20000, v12")
    a.I("v_add_u32 v17, 0x20000, v13")
    a.I("s_mul_i32 s42, s40, 20")
    a.I("s_lshl_b32 s43, s27, 2")
    a.I("s_add_u32 s42, s42, s43")
    a.I("s_lshl_b32 s42, s42, 10")
    if XR_OFF:
        a.I(f"s_add_u32 s42, s42, {XR_OFF}")
    a.I("v_lshlrev_b32 v18, 4, v1")
    a.I("v_add_u32 v18, s42, v18")
    a.I("s_lshl_b32 s44, s24, 10")
    a.I("s_mov_b32 s45, 0")
    a.I("s_waitcnt lgkmcnt(0)")
    srd(a, 28, 4, 2621440)
    srd(a, 32, 12, 819200)
    srd(a, 36, 16, WS_BYTES)
    XF = 32; ACC = 112; RING = 144
    for p in range(20):
        a.I("s_mov_b32 m0, s44")
        a.I(f"s_add_u32 s44, s44, 8192")
        a.I(f"buffer_load_dwordx4 v11, s[32:35], s45 offen{nt_u} lds")
        a.I(f"buffer_load_dwordx4 {vr(XF+4*p)}, v10, s[28:31], 0 offen offset:{p*64}{nt_x}")
        a.I(f"s_add_u32 s45, s45, 40960")
    items = []
    CH = 2
    for p in range(20):
        for t in range(8):
            it = {}
            if p % CH == 0 and t == 0:
                c = p // CH
                it["gate"] = [f"s_waitcnt vmcnt({2*(20-CH*(c+1))})", "s_barrier"]
            def reads(reg, p=p, t=t):
                sc, tp = t >> 1, t & 1
                base = 12 + 2 * (p // 8) + tp
                off = (p % 8) * 8192 + sc * 2048
                return [f"ds_read_b64_tr_b16 {vr(reg,2)}, v{base} offset:{off}",
                        f"ds_read_b64_tr_b16 {vr(reg+2,2)}, v{base} offset:{off+1024}"]
            def mfma(reg, p=p, t=t):
                c = "0" if p == 0 else vr(ACC+4*t)
                return [f"v_mfma_f32_16x16x32_bf16 {vr(ACC+4*t)}, {vr(reg)}, {vr(XF+4*p)}, {c}"]
            it["reads"] = reads; it["mfma"] = mfma
            items.append(it)
    rolling(a, items, depth=7, slots=[RING + 4*i for i in range(8)])
    a.I("s_nop 7")
    for s in range(4):
        o = RING + 4*s
        a.I(f"v_cvt_pk_bf16_f32 v{o}, v{ACC+8*s}, v{ACC+8*s+1}")
        a.I(f"v_cvt_pk_bf16_f32 v{o+1}, v{ACC+8*s+2}, v{ACC+8*s+3}")
        a.I(f"v_cvt_pk_bf16_f32 v{o+2}, v{ACC+8*s+4}, v{ACC+8*s+5}")
        a.I(f"v_cvt_pk_bf16_f32 v{o+3}, v{ACC+8*s+6}, v{ACC+8*s+7}")
        a.I(f"buffer_store_dwordx4 {vr(o)}, v18, s[36:39], 0 offen offset:{s*1024}")
    stamp_end(a, cfg, 0, 16, 24)
    a.I("s_endpgm")

def gen_k1_b(a, cfg):
    nt_q = " nt" if cfg.get("nt_q") else ""
    nt_v = " nt" if cfg.get("nt_v") else ""
    a.C("role B: T = dequant(qw) @ V, tile 64(d) x 96(g), 8 waves")
    NS = 5; VBASE = 32768; VSLOT = 24576; NCH = 12; PD = 4
    a.I("s_and_b32 s25, s22, 1")
    a.I("s_mul_i32 s25, s25, 5")
    a.I("s_lshr_b32 s26, s21, 2")
    a.I("s_add_u32 s25, s25, s26")
    a.I("s_lshl_b32 s26, s23, 1")
    a.I("s_lshr_b32 s27, s22, 1")
    a.I("s_add_u32 s26, s26, s27")
    a.I("s_lshl_b32 s26, s26, 2")
    a.I("s_and_b32 s27, s21, 3")
    a.I("s_add_u32 s26, s26, s27")
    VQ = 10
    VS = 14
    VV = 15
    VAW = 18
    VAR = 22
    VBR = 24
    VST = 30
    RAW = 32
    SZ = 96
    ACC = 112
    RING = 136
    TMP = 176
    a.I("v_lshrrev_b32 v6, 5, v1")
    a.I("v_and_b32 v7, 31, v1")
    a.I("s_movk_i32 s41, 6144")
    a.I("s_lshl_b32 s42, s24, 3")
    a.I("v_add_u32 v8, s42, v6")
    a.I(f"v_mul_lo_u32 v{VQ}, v8, s41")
    a.I(f"v_lshl_add_u32 v{VQ}, v7, 4, v{VQ}")
    for n in range(1, 4):
        a.I(f"v_add_u32 v{VQ+n}, {12288*n}, v{VQ}")
    a.I("s_mul_i32 s46, s25, 393216")
    a.I("s_add_u32 s47, s46, 4096")
    a.I("s_lshl_b32 s42, s25, 1")
    a.I("s_lshr_b32 s43, s24, 2")
    a.I("s_add_u32 s42, s42, s43")
    a.I("s_mul_i32 s42, s42, 3072")
    a.I(f"v_lshlrev_b32 v{VS}, 3, v7")
    a.I(f"v_add_u32 v{VS}, s42, v{VS}")
    a.I("s_movk_i32 s41, 3072")
    dma_lane_part(a, 9, 41, 8)
    a.I("s_mul_i32 s42, s26, 192")
    a.I("v_add_u32 v9, s42, v9")
    for jj in range(3):
        a.I(f"s_mul_i32 s42, s24, 3")
        a.I(f"s_add_u32 s42, s42, {jj}")
        a.I(f"s_mul_i32 s43, s42, 43")
        a.I(f"s_lshr_b32 s43, s43, 8")
        a.I(f"s_mul_i32 s44, s43, 6")
        a.I(f"s_sub_u32 s44, s42, s44")
        a.I(f"s_and_b32 s45, s44, 1")
        a.I(f"s_lshr_b32 s44, s44, 1")
        a.I(f"s_lshl_b32 s43, s43, 5")
        a.I(f"s_lshl_b32 s45, s45, 2")
        a.I(f"s_add_u32 s43, s43, s45")
        a.I(f"s_mul_i32 s43, s43, 3072")
        a.I(f"s_lshl_b32 s44, s44, 6")
        a.I(f"s_add_u32 s43, s43, s44")
        a.I(f"v_add_u32 v{VV+jj}, s43, v9")
    a.I("v_lshrrev_b32 v8, 1, v7")
    a.I("v_lshlrev_b32 v9, 8, v8")
    a.I("v_and_b32 v8, 7, v8")
    a.I("v_and_b32 v31, 1, v7")
    a.I("v_lshl_add_u32 v9, v31, 3, v9")
    a.I("s_lshr_b32 s42, s24, 1")
    a.I("s_lshl_b32 s42, s42, 12")
    a.I("v_add_u32 v9, s42, v9")
    a.I("s_and_b32 s42, s24, 1")
    a.I("s_lshl_b32 s42, s42, 3")
    for n in range(4):
        a.I(f"s_add_u32 s43, s42, {2*n}")
        a.I(f"v_add_u32 v31, s43, v6")
        a.I(f"v_xor_b32 v31, v31, v8")
        a.I(f"v_lshl_add_u32 v{VAW+n}, v31, 4, v9")
    a.I("s_lshr_b32 s42, s24, 2")
    a.I("s_bfe_u32 s43, s24, 0x10001")
    a.I("s_lshl_b32 s44, s42, 11")
    a.I("s_lshl_b32 s45, s43, 13")
    a.I("s_add_u32 s44, s44, s45")
    a.I("v_lshlrev_b32 v8, 8, v2")
    a.I("v_add_u32 v8, s44, v8")
    a.I("v_xor_b32 v9, v3, v2")
    a.I(f"v_lshl_add_u32 v{VAR}, v9, 4, v8")
    a.I("v_xor_b32 v9, 4, v9")
    a.I(f"v_lshl_add_u32 v{VAR+1}, v9, 4, v8")
    a.I(f"v_add_u32 v{VAR+1}, 1024, v{VAR+1}")
    tr_lane_part(a, 8, 9, 31)
    a.I("s_and_b32 s45, s24, 1")
    a.I("s_mul_i32 s44, s42, 12288")
    a.I(f"s_add_u32 s44, s44, {VBASE}")
    a.I("s_cmp_eq_u32 s45, 0")
    a.I("s_cselect_b32 s48, 0, 32")
    a.I("s_cselect_b32 s49, 0, 2048")
    a.I("s_cselect_b32 s50, 0, 4096")
    a.I("s_add_u32 s51, s49, 2048")
    a.I("s_add_u32 s49, s49, s44")
    a.I("s_add_u32 s50, s50, s44")
    a.I("s_add_u32 s51, s51, s44")
    a.I(f"v_xor_b32 v{VBR}, s48, v8")
    a.I(f"v_xor_b32 v{VBR+1}, s48, v9")
    a.I(f"v_add_u32 v{VBR+2}, s51, v{VBR}")
    a.I(f"v_add_u32 v{VBR}, s49, v{VBR}")
    a.I(f"v_add_u32 v{VBR+1}, s50, v{VBR+1}")
    for tt in range(3):
        a.I(f"v_add_u32 v{VBR+3+tt}, {2*VSLOT}, v{VBR+tt}")
    a.I("s_mul_i32 s44, s26, 20")
    a.I("s_lshl_b32 s48, s25, 1")
    a.I("s_add_u32 s44, s44, s48")
    a.I("s_add_u32 s44, s44, s43")
    a.I("s_mul_i32 s44, s44, 6")
    a.I("s_mul_i32 s48, s45, 3")
    a.I("s_add_u32 s44, s44, s48")
    a.I("s_lshl_b32 s44, s44, 10")
    a.I(f"s_add_u32 s44, s44, {TT_OFF}")
    a.I(f"v_lshlrev_b32 v{VST}, 4, v1")
    a.I(f"v_add_u32 v{VST}, s44, v{VST}")
    a.I("s_mul_i32 s52, s24, 3072")
    a.I(f"s_add_u32 s52, s52, {VBASE}")
    a.I("s_waitcnt lgkmcnt(0)")
    srd(a, 28, 6, 3932160)
    srd(a, 32, 14, 4718592)
    srd(a, 36, 16, WS_BYTES)
    srd(a, 56, 8, 61440)
    srd(a, 60, 10, 61440)

    def issue(c):
        r = RAW + 16 * (c % 4); z = SZ + 4 * (c % 4)
        so = 46 + (c // 8)
        a.I(f"s_mov_b32 s54, {c * 128 * 3072}")
        for n in range(4):
            a.I(f"buffer_load_dwordx4 {vr(r+4*n)}, v{VQ+n}, s[28:31], s{so} offen offset:{(c % 8) * 512}{nt_q}")
        a.I(f"buffer_load_dwordx2 {vr(z,2)}, v{VS}, s[56:59], 0 offen offset:{c*256}")
        a.I(f"buffer_load_dwordx2 {vr(z+2,2)}, v{VS}, s[60:63], 0 offen offset:{c*256}")
        for jj in range(3):
            a.I(f"s_add_u32 m0, s52, {(c % NS) * VSLOT + 1024*jj}")
            a.I(f"s_nop 0")
            a.I(f"buffer_load_dwordx4 v{VV+jj}, s[32:35], s54 offen{nt_v} lds")

    def dequant(c):
        r = RAW + 16 * (c % 4); z = SZ + 4 * (c % 4)
        S = TMP; NZ = TMP + 4; F = TMP + 8; PK = TMP + 24
        buf = (c & 1) * 16384
        a.I(f"v_lshlrev_b32 v{S}, 16, v{z}")
        a.I(f"v_and_b32 v{S+1}, 0xffff0000, v{z}")
        a.I(f"v_lshlrev_b32 v{S+2}, 16, v{z+1}")
        a.I(f"v_and_b32 v{S+3}, 0xffff0000, v{z+1}")
        a.I(f"v_lshlrev_b32 v{NZ}, 16, v{z+2}")
        a.I(f"v_and_b32 v{NZ+1}, 0xffff0000, v{z+2}")
        a.I(f"v_lshlrev_b32 v{NZ+2}, 16, v{z+3}")
        a.I(f"v_and_b32 v{NZ+3}, 0xffff0000, v{z+3}")
        for n in range(4):
            for j in range(4):
                a.I(f"v_cvt_f32_i32 v{F+4*n+j}, v{r+4*n+j}")
        for n in range(4):
            for j in range(4):
                a.I(f"v_sub_f32 v{F+4*n+j}, v{F+4*n+j}, v{NZ+j}")
        for n in range(4):
            for j in range(4):
                a.I(f"v_mul_f32 v{F+4*n+j}, v{F+4*n+j}, v{S+j}")
        for n in range(4):
            a.I(f"v_cvt_pk_bf16_f32 v{PK+2*n}, v{F+4*n}, v{F+4*n+1}")
            a.I(f"v_cvt_pk_bf16_f32 v{PK+2*n+1}, v{F+4*n+2}, v{F+4*n+3}")
            a.I(f"ds_write_b64 v{VAW+n}, {vr(PK+2*n,2)} offset:{buf}")

    def mma(c):
        buf = (c & 1) * 16384
        slot = c % NS
        bset = 0 if slot < 2 else 1
        if slot >= 4:
            pass
        soff = (slot - 2 * bset) * VSLOT
        ops = []
        for pp in range(2):
            base = RING + 20 * pp
            for ta in range(2):
                ops.append(f"ds_read_b128 {vr(base+4*ta)}, v{VAR+pp} offset:{buf + ta*4096}")
            for tt in range(3):
                o = soff + pp * 6144
                ops.append(f"ds_read_b64_tr_b16 {vr(base+8+4*tt,2)}, v{VBR+3*bset+tt} offset:{o}")
                ops.append(f"ds_read_b64_tr_b16 {vr(base+10+4*tt,2)}, v{VBR+3*bset+tt} offset:{o+1024}")
        for o in ops[:14]:
            a.I(o)
        issued = 14
        for pp in range(2):
            base = RING + 20 * pp
            for tt in range(3):
                need = 8 * pp + 4 + 2 * tt
                a.I(f"s_waitcnt lgkmcnt({issued - need})")
                for ta in range(2):
                    acc = ACC + 4 * (ta * 3 + tt)
                    cc = "0" if (c == 0 and pp == 0) else vr(acc)
                    a.I(f"v_mfma_f32_16x16x32_bf16 {vr(acc)}, {vr(base+4*ta)}, {vr(base+8+4*tt)}, {cc}")
                if issued == 14:
                    for o in ops[14:]:
                        a.I(o)
                    issued = 16

    for c in range(PD):
        issue(c)
    a.I(f"s_waitcnt vmcnt({9*(PD-1)})")
    dequant(0)
    a.I("s_waitcnt lgkmcnt(0)")
    a.I("s_barrier")
    for c in range(NCH):
        if c + PD < NCH:
            issue(c + PD)
        mma(c)
        if c + 1 < NCH:
            newer = min(NCH, c + PD + 1) - (c + 2)
            a.I(f"s_waitcnt vmcnt({9*newer})")
            dequant(c + 1)
            a.I("s_waitcnt lgkmcnt(0)")
            a.I("s_barrier")
    a.I("s_barrier")
    a.I("s_and_b32 s44, s24, 3")
    a.I("s_mul_i32 s44, s44, 6144")
    a.I("v_lshlrev_b32 v8, 4, v1")
    a.I("v_add_u32 v8, s44, v8")
    a.I("s_nop 4")
    a.I("s_cmp_lt_u32 s24, 4")
    a.I("s_cbranch_scc1 L_k1b_lo")
    for t in range(6):
        a.I(f"ds_write_b128 v8, {vr(ACC+4*t)} offset:{t*1024}")
    a.I("s_waitcnt lgkmcnt(0)")
    a.I("s_barrier")
    stamp_end(a, cfg, 0, 16, 24)
    a.I("s_endpgm")
    a.L("L_k1b_lo")
    a.I("s_barrier")
    for t in range(6):
        a.I(f"ds_read_b128 {vr(RING+4*t)}, v8 offset:{t*1024}")
    for tt in range(3):
        a.I(f"s_waitcnt lgkmcnt({2-tt})")
        for ta in range(2):
            t = ta * 3 + tt
            for j in range(4):
                a.I(f"v_add_f32 v{ACC+4*t+j}, v{ACC+4*t+j}, v{RING+4*t+j}")
        o = TMP + 4 * tt
        a.I(f"v_cvt_pk_bf16_f32 v{o}, v{ACC+4*tt}, v{ACC+4*tt+1}")
        a.I(f"v_cvt_pk_bf16_f32 v{o+1}, v{ACC+4*tt+2}, v{ACC+4*tt+3}")
        a.I(f"v_cvt_pk_bf16_f32 v{o+2}, v{ACC+12+4*tt}, v{ACC+12+4*tt+1}")
        a.I(f"v_cvt_pk_bf16_f32 v{o+3}, v{ACC+12+4*tt+2}, v{ACC+12+4*tt+3}")
        a.I(f"buffer_store_dwordx4 {vr(o)}, v{VST}, s[36:39], 0 offen offset:{tt*1024}")
    stamp_end(a, cfg, 0, 16, 24)
    a.I("s_endpgm")

def gen_k2(a, cfg):
    K = "quip_s2_kernel"
    a.lines.append(f".globl {K}\n.p2align 8\n.type {K},@function")
    a.L(K)
    a.I("s_cmp_ge_u32 s2, 256")
    a.I("s_cbranch_scc1 L_k2_exit")
    stamp_begin(a, cfg)
    a.I("s_load_dwordx2 s[4:5], s[0:1], 48")
    a.I("s_load_dwordx2 s[6:7], s[0:1], 64")
    a.I("s_and_b32 s20, s2, 7")
    a.I("s_lshr_b32 s21, s2, 3")
    a.I("s_lshr_b32 s22, s20, 1")
    a.I("s_and_b32 s23, s20, 1")
    a.I("s_and_b32 s25, s21, 3")
    a.I("s_lshl_b32 s26, s22, 2")
    a.I("s_add_u32 s25, s25, s26")
    a.I("s_lshr_b32 s26, s21, 2")
    a.I("s_lshl_b32 s27, s23, 3")
    a.I("s_add_u32 s26, s26, s27")
    a.I("v_and_b32 v1, 63, v0")
    a.I("v_lshrrev_b32 v2, 6, v0")
    a.I("s_nop 0")
    a.I("v_readfirstlane_b32 s24, v2")
    a.I("v_lshlrev_b32 v3, 4, v1")
    a.I("s_lshl_b32 s40, s25, 3")
    a.I("s_lshl_b32 s41, s24, 1")
    a.I("s_add_u32 s40, s40, s41")
    a.I("s_mul_i32 s41, s40, 20480")
    if XR_OFF:
        a.I(f"s_add_u32 s41, s41, {XR_OFF}")
    a.I("v_add_u32 v4, s41, v3")
    a.I("v_add_u32 v5, 20480, v4")
    a.I("s_mul_i32 s42, s24, 3072")
    a.I("v_add_u32 v6, s42, v3")
    a.I("s_mul_i32 s43, s26, 122880")
    a.I(f"s_add_u32 s43, s43, {TT_OFF}")
    a.I("v_add_u32 v8, 61440, v3")
    a.I("v_and_b32 v9, 15, v1")
    a.I("s_lshl_b32 s41, s40, 4")
    a.I("v_add_u32 v9, s41, v9")
    a.I("s_movk_i32 s41, 3072")
    a.I("v_mul_lo_u32 v9, v9, s41")
    a.I("v_bfe_u32 v10, v1, 4, 1")
    a.I("v_lshl_add_u32 v9, v10, 5, v9")
    a.I("v_lshrrev_b32 v10, 5, v1")
    a.I("v_lshl_add_u32 v9, v10, 4, v9")
    a.I("s_mul_i32 s41, s26, 192")
    a.I("v_add_u32 v9, s41, v9")
    a.I("v_add_u32 v10, 49152, v9")
    for n in range(1, 5):
        a.I(f"s_movk_i32 s{44+n}, {4096*n}")
    a.I("s_waitcnt lgkmcnt(0)")
    srd(a, 28, 6, WS_BYTES)
    srd(a, 32, 4, 6291456)
    ACC = 16; RING = 64; NR = 12
    NCH = 10
    def issue(c):
        a.I("s_mov_b32 m0, s42")
        a.I("s_add_u32 s42, s42, 12288")
        for jj in range(3):
            a.I(f"buffer_load_dwordx4 v6, s[28:31], s43 offen offset:{1024*jj} lds")
        a.I("s_add_u32 s43, s43, 12288")
        for pp in range(2):
            p = 2 * c + pp
            so = "0" if p < 4 else f"s{44 + p // 4}"
            for u in range(2):
                a.I(f"buffer_load_dwordx4 {vr(8*p+4*u, 4, 'a')}, v{4+u}, s[28:31], {so} offen offset:{(p % 4) * 1024}")
    UP = 8
    for c in range(UP):
        issue(c)
    items = []
    class G: pass
    issued_chunks = [UP]
    for p in range(20):
        for t in range(6):
            it = {}
            if p % 2 == 0 and t == 0:
                c = p // 2
                ic = min(NCH, UP + c)
                it["gate"] = [f"s_waitcnt vmcnt({7*(ic-c-1)})", "s_barrier"]
                if cfg.get("stamp2"):
                    it["gate"] += [f"s_memtime s[{56+2*c}:{57+2*c}]"]
                it["post_issue"] = UP + c if UP + c < NCH else None
            def reads(reg, p=p, t=t):
                off = (p * 6 + t) * 1024
                if off >= 61440:
                    return [f"ds_read_b128 {vr(reg)}, v8 offset:{off-61440}"]
                return [f"ds_read_b128 {vr(reg)}, v3 offset:{off}"]
            def mfma(reg, p=p, t=t):
                out = []
                for u in range(2):
                    acc = ACC + 4 * (t * 2 + u)
                    cc = "0" if p == 0 else vr(acc)
                    out.append(f"v_mfma_f32_16x16x32_bf16 {vr(acc)}, {vr(reg)}, {vr(8*p+4*u,4,'a')}, {cc}")
                if cfg.get("k2_nomfma") and p > 0: out = []
                return out
            it["reads"] = reads; it["mfma"] = mfma
            items.append(it)
    for it in items:
        if it.get("post_issue") is not None:
            sub = Asm()
            a_save = a
            c = it["post_issue"]
            tmp = []
            sub_a = Asm()
            def issue_to(sa, c=c):
                sa.I("s_mov_b32 m0, s42")
                sa.I("s_add_u32 s42, s42, 12288")
                for jj in range(3):
                    sa.I(f"buffer_load_dwordx4 v6, s[28:31], s43 offen offset:{1024*jj} lds")
                sa.I("s_add_u32 s43, s43, 12288")
                for pp in range(2):
                    p = 2 * c + pp
                    so = "0" if p < 4 else f"s{44 + p // 4}"
                    for u in range(2):
                        sa.I(f"buffer_load_dwordx4 {vr(8*p+4*u, 4, 'a')}, v{4+u}, s[28:31], {so} offen offset:{(p % 4) * 1024}")
            issue_to(sub_a)
            it["gate"] = it["gate"] + [l.strip() for l in sub_a.lines]
    rolling(a, items, depth=8, slots=[RING + 4*i for i in range(NR)])
    a.I("s_nop 7")
    O = RING
    k = 0
    for u in range(2):
        for s in range(3):
            o = O + 4 * k; k += 1
            a0 = ACC + 4 * ((2*s) * 2 + u); a1 = ACC + 4 * ((2*s+1) * 2 + u)
            a.I(f"v_cvt_pk_bf16_f32 v{o}, v{a0}, v{a0+1}")
            a.I(f"v_cvt_pk_bf16_f32 v{o+1}, v{a0+2}, v{a0+3}")
            a.I(f"v_cvt_pk_bf16_f32 v{o+2}, v{a1}, v{a1+1}")
            a.I(f"v_cvt_pk_bf16_f32 v{o+3}, v{a1+2}, v{a1+3}")
            a.I("s_nop 1")
            a.I(f"v_permlane16_swap_b32 v{o}, v{o+2}")
            a.I(f"v_permlane16_swap_b32 v{o+1}, v{o+3}")
            a.I(f"buffer_store_dwordx4 {vr(o)}, v{9+u}, s[32:35], 0 offen offset:{64*s}")
    stamp_end(a, cfg, 1, 6, 24)
    if cfg.get("stamp2"):
        a.I("s_lshl_b32 s88, s2, 2")
        a.I("s_add_u32 s88, s88, s24")
        a.I("s_lshl_b32 s88, s88, 6")
        a.I(f"s_add_u32 s88, s88, {STAMP_OFF + 0x80000}")
        a.I("v_mov_b32 v0, s88")
        for c in range(10):
            a.I(f"s_sub_u32 s89, s{56+2*c}, s82")
            a.I(f"v_mov_b32 v2, s89")
            a.I(f"global_store_dword v0, v2, s[6:7] offset:{4*c}")
        a.I(f"s_sub_u32 s89, s86, s82")
        a.I(f"v_mov_b32 v2, s89")
        a.I(f"global_store_dword v0, v2, s[6:7] offset:40")
    a.L("L_k2_exit")
    a.I("s_endpgm")

def kd(name, nfv, acc_off, sgpr=96):
    return f""".p2align 6
.amdhsa_kernel {name}
  .amdhsa_next_free_vgpr {nfv}
  .amdhsa_next_free_sgpr {sgpr}
  .amdhsa_accum_offset {acc_off}
  .amdhsa_group_segment_fixed_size 0
  .amdhsa_kernarg_size 72
  .amdhsa_user_sgpr_count 2
  .amdhsa_user_sgpr_kernarg_segment_ptr 1
  .amdhsa_system_sgpr_workgroup_id_x 1
.end_amdhsa_kernel
"""

def gen(cfg):
    a = Asm()
    out = HEADER
    for _ in range(cfg.get("empty_pre", 0)):
        out += "; @launch kernel=quip_empty_kernel grid=(1,1,1) block=(64,1,1) lds=0\n"
    out += "; @launch kernel=quip_s1_kernel grid=(256,1,1) block=(512,1,1) lds=163840\n"
    out += "; @launch kernel=quip_s2_kernel grid=(256,1,1) block=(256,1,1) lds=122880\n"
    for _ in range(cfg.get("empty_post", 0)):
        out += "; @launch kernel=quip_empty_kernel grid=(1,1,1) block=(64,1,1) lds=0\n"
    out += '.amdgcn_target "amdgcn-amd-amdhsa--gfx950"\n.text\n'
    gen_k1(a, cfg)
    gen_k2(a, cfg)
    if cfg.get("empty_pre") or cfg.get("empty_post"):
        a.lines.append(".globl quip_empty_kernel\n.p2align 8\n.type quip_empty_kernel,@function\nquip_empty_kernel:\n    s_endpgm")
    out += a.text()
    out += '.section .rodata,"a"\n'
    if cfg.get("empty_pre") or cfg.get("empty_post"):
        out += kd("quip_empty_kernel", 8, 8, 16)
    out += kd("quip_s1_kernel", 256, 256)
    out += kd("quip_s2_kernel", 288, 128)
    return out

if __name__ == "__main__":
    cfg = {}
    outp = sys.argv[1] if len(sys.argv) > 1 else "standalone__weight_only_int_quip__prompt.s"
    for kv in sys.argv[2:]:
        k, v = kv.split("=")
        cfg[k] = int(v)
    open(outp, "w").write(gen(cfg))
```

```python
import sys

HEADER = open("standalone__weight_only_int_quip__prompt.s.ref").read().split("; Override launch")[0]

XR_OFF = 0
TT_OFF = 0x300000
WS_BYTES = 0x500000

class Asm:
    def __init__(self):
        self.lines = []
    def I(self, s):
        self.lines.append("    " + s)
    def L(self, s):
        self.lines.append(s + ":")
    def C(self, s):
        self.lines.append("    ; " + s)
    def text(self):
        return "\n".join(self.lines) + "\n"

def vr(b, n=4, p="v"):
    return f"{p}[{b}:{b+n-1}]" if n > 1 else f"{p}{b}"

STAMP_OFF = 0x600000
def stamp_begin(a, cfg):
    if cfg.get("stamp"):
        a.I("s_memrealtime s[80:81]")
        a.I("s_memtime s[82:83]")

def stamp_end(a, cfg, kidx, ws_lo, wave_sgpr):
    if cfg.get("stamp") == 2:
        a.I("s_waitcnt vmcnt(0) lgkmcnt(0)")
        a.I("s_memrealtime s[84:85]")
        a.I("s_memtime s[86:87]")
        a.I("s_load_dwordx2 s[90:91], s[0:1], 56")
        a.I("s_waitcnt lgkmcnt(0)")
        if kidx == 0:
            a.I(f"s_add_u32 s90, s90, 512")
            a.I(f"s_addc_u32 s91, s91, 0")
        lbl = f"L_stamp_skip_{len(a.lines)}"
        a.I(f"s_cmp_lg_u32 s{wave_sgpr}, 0")
        a.I(f"s_cbranch_scc1 {lbl}")
        a.I("s_not_b32 s80, s80")
        a.I("s_sub_u32 s86, s86, s82")
        a.I("v_mov_b32 v0, 0")
        a.I("v_mov_b32 v2, s80")
        a.I("v_mov_b32 v3, s84")
        a.I("v_mov_b32 v4, s86")
        a.I("s_not_b32 s80, s80")
        a.I("v_mov_b32 v5, s80")
        a.I("s_mov_b64 exec, 1")
        a.I(f"global_atomic_umax v0, v2, s[90:91] offset:{16*kidx}")
        a.I(f"global_atomic_umax v0, v3, s[90:91] offset:{16*kidx+4}")
        a.I(f"global_atomic_umax v0, v4, s[90:91] offset:{16*kidx+8}")
        a.I(f"global_atomic_umax v0, v5, s[90:91] offset:{16*kidx+12}")
        a.L(lbl)
        return
    if cfg.get("stamp"):
        a.I("s_waitcnt vmcnt(0) lgkmcnt(0)")
        a.I("s_memrealtime s[84:85]")
        a.I("s_memtime s[86:87]")
        a.I("s_lshl_b32 s88, s2, 3")
        a.I(f"s_add_u32 s88, s88, s{wave_sgpr}")
        a.I("s_lshl_b32 s88, s88, 5")
        a.I(f"s_add_u32 s88, s88, {STAMP_OFF + kidx*0x40000}")
        a.I("s_getreg_b32 s89, hwreg(HW_REG_XCC_ID)")
        a.I("s_waitcnt lgkmcnt(0)")
        a.I("v_mov_b32 v0, s88")
        for k in range(8):
            a.I(f"v_mov_b32 v{2+k}, s{80+k}")
        a.I("v_mov_b32 v5, s89")
        a.I(f"global_store_dwordx4 v0, v[2:5], s[{ws_lo}:{ws_lo+1}]")
        a.I(f"global_store_dwordx4 v0, v[6:9], s[{ws_lo}:{ws_lo+1}] offset:16")

def srd(a, d, base, nbytes):
    a.I(f"s_mov_b32 s{d}, s{base}")
    a.I(f"s_and_b32 s{d+1}, s{base+1}, 0xffff")
    a.I(f"s_mov_b32 s{d+2}, {nbytes}")
    a.I(f"s_mov_b32 s{d+3}, 0x00020000")

def rolling(a, items, depth, slots, pre_outstanding=0):
    n = len(items)
    issued = 0
    nreads = []
    for k in range(n):
        while issued < min(n, k + depth):
            it = items[issued]
            if it.get("gate"):
                for g in it["gate"]:
                    a.I(g)
            rd = it["reads"](slots[issued % len(slots)])
            for r in rd:
                a.I(r)
            nreads.append(len(rd))
            issued += 1
        cnt = sum(nreads[k + 1:issued])
        assert cnt <= 15
        a.I(f"s_waitcnt lgkmcnt({cnt})")
        for m in items[k]["mfma"](slots[k % len(slots)]):
            a.I(m)

def gen_k1(a, cfg):
    K = "quip_s1_kernel"
    a.lines.append(f".globl {K}\n.p2align 8\n.type {K},@function")
    a.L(K)
    a.I("s_lshr_b32 s21, s2, 3")
    a.I("s_cmp_ge_u32 s21, 30")
    a.I("s_cbranch_scc1 L_k1_exit")
    stamp_begin(a, cfg)
    a.I("s_load_dwordx8 s[4:11], s[0:1], 0")
    a.I("s_load_dwordx4 s[12:15], s[0:1], 32")
    a.I("s_load_dwordx2 s[16:17], s[0:1], 64")
    a.I("s_and_b32 s20, s2, 7")
    a.I("s_lshr_b32 s22, s20, 1")
    a.I("s_and_b32 s23, s20, 1")
    a.I("v_and_b32 v1, 63, v0")
    a.I("v_lshrrev_b32 v2, 6, v0")
    a.I("s_nop 0")
    a.I("v_readfirstlane_b32 s24, v2")
    a.I("v_lshrrev_b32 v2, 4, v1")
    a.I("v_and_b32 v3, 15, v1")
    a.I("v_bfe_u32 v4, v1, 2, 2")
    a.I("v_and_b32 v5, 1, v2")
    a.I("s_cmp_ge_u32 s21, 20")
    a.I("s_cbranch_scc1 L_k1_roleA")
    gen_k1_b(a, cfg)
    a.L("L_k1_roleA")
    gen_k1_a(a, cfg)
    a.L("L_k1_exit")
    a.I("s_endpgm")

def dma_lane_part(a, dst, rowstride_sgpr, tmp):
    a.I(f"v_lshl_add_u32 v{tmp}, v2, 3, v4")
    a.I(f"v_mul_lo_u32 v{dst}, v{tmp}, s{rowstride_sgpr}")
    a.I(f"v_bfe_u32 v{tmp}, v1, 1, 1")
    a.I(f"v_xor_b32 v{tmp}, v{tmp}, v5")
    a.I(f"v_lshl_add_u32 v{dst}, v{tmp}, 5, v{dst}")
    a.I(f"v_and_b32 v{tmp}, 1, v1")
    a.I(f"v_lshl_add_u32 v{dst}, v{tmp}, 4, v{dst}")

def tr_lane_part(a, dst0, dst1, tmp):
    a.I(f"v_lshrrev_b32 v{tmp}, 2, v1")
    a.I(f"v_lshlrev_b32 v{dst0}, 6, v{tmp}")
    a.I(f"v_and_b32 v{tmp}, 3, v1")
    a.I(f"v_lshl_add_u32 v{dst0}, v{tmp}, 3, v{dst0}")
    a.I(f"v_lshl_add_u32 v{dst0}, v5, 5, v{dst0}")
    a.I(f"v_xor_b32 v{dst1}, 32, v{dst0}")

def gen_k1_a(a, cfg):
    nt_x = " nt" if cfg.get("nt_x") else ""
    nt_u = " nt" if cfg.get("nt_u") else ""
    a.C("role A: xr = x @ U, tile 128(m) x 128(e), wave tile 16 x 128")
    a.I("s_sub_u32 s25, s21, 20")
    a.I("s_and_b32 s26, s25, 1")
    a.I("s_lshr_b32 s27, s25, 1")
    a.I("s_lshl_b32 s40, s22, 2")
    a.I("s_lshl_b32 s41, s23, 1")
    a.I("s_add_u32 s40, s40, s41")
    a.I("s_add_u32 s40, s40, s26")
    a.I("s_lshl_b32 s40, s40, 3")
    a.I("s_add_u32 s40, s40, s24")
    a.I("s_movk_i32 s41, 1280")
    a.I("s_lshl_b32 s42, s40, 4")
    a.I("v_add_u32 v6, s42, v3")
    a.I("v_mul_lo_u32 v10, v6, s41")
    a.I("v_lshl_add_u32 v10, v2, 4, v10")
    dma_lane_part(a, 11, 41, 6)
    a.I("s_and_b32 s42, s24, 1")
    a.I("s_mul_i32 s42, s42, 5120")
    a.I("s_lshr_b32 s43, s24, 1")
    a.I("s_lshl_b32 s43, s43, 6")
    a.I("s_add_u32 s42, s42, s43")
    a.I("s_lshl_b32 s43, s27, 8")
    a.I("s_add_u32 s42, s42, s43")
    a.I("v_add_u32 v11, s42, v11")
    tr_lane_part(a, 12, 13, 6)
    a.I("v_add_u32 v14, 0x10000, v12")
    a.I("v_add_u32 v15, 0x10000, v13")
    a.I("v_add_u32 v16, 0x20000, v12")
    a.I("v_add_u32 v17, 0x20000, v13")
    a.I("s_mul_i32 s42, s40, 20")
    a.I("s_lshl_b32 s43, s27, 2")
    a.I("s_add_u32 s42, s42, s43")
    a.I("s_lshl_b32 s42, s42, 10")
    if XR_OFF:
        a.I(f"s_add_u32 s42, s42, {XR_OFF}")
    a.I("v_lshlrev_b32 v18, 4, v1")
    a.I("v_add_u32 v18, s42, v18")
    a.I("s_lshl_b32 s44, s24, 10")
    a.I("s_mov_b32 s45, 0")
    a.I("s_waitcnt lgkmcnt(0)")
    srd(a, 28, 4, 2621440)
    srd(a, 32, 12, 819200)
    srd(a, 36, 16, WS_BYTES)
    XF = 32; ACC = 112; RING = 144
    for p in range(20):
        a.I("s_mov_b32 m0, s44")
        a.I(f"s_add_u32 s44, s44, 8192")
        a.I(f"buffer_load_dwordx4 v11, s[32:35], s45 offen{nt_u} lds")
        a.I(f"buffer_load_dwordx4 {vr(XF+4*p)}, v10, s[28:31], 0 offen offset:{p*64}{nt_x}")
        a.I(f"s_add_u32 s45, s45, 40960")
    items = []
    CH = 2
    for p in range(20):
        for t in range(8):
            it = {}
            if p % CH == 0 and t == 0:
                c = p // CH
                it["gate"] = [f"s_waitcnt vmcnt({2*(20-CH*(c+1))})", "s_barrier"]
            def reads(reg, p=p, t=t):
                sc, tp = t >> 1, t & 1
                base = 12 + 2 * (p // 8) + tp
                off = (p % 8) * 8192 + sc * 2048
                return [f"ds_read_b64_tr_b16 {vr(reg,2)}, v{base} offset:{off}",
                        f"ds_read_b64_tr_b16 {vr(reg+2,2)}, v{base} offset:{off+1024}"]
            def mfma(reg, p=p, t=t):
                c = "0" if p == 0 else vr(ACC+4*t)
                return [f"v_mfma_f32_16x16x32_bf16 {vr(ACC+4*t)}, {vr(reg)}, {vr(XF+4*p)}, {c}"]
            it["reads"] = reads; it["mfma"] = mfma
            items.append(it)
    rolling(a, items, depth=7, slots=[RING + 4*i for i in range(8)])
    a.I("s_nop 7")
    for s in range(4):
        o = RING + 4*s
        a.I(f"v_cvt_pk_bf16_f32 v{o}, v{ACC+8*s}, v{ACC+8*s+1}")
        a.I(f"v_cvt_pk_bf16_f32 v{o+1}, v{ACC+8*s+2}, v{ACC+8*s+3}")
        a.I(f"v_cvt_pk_bf16_f32 v{o+2}, v{ACC+8*s+4}, v{ACC+8*s+5}")
        a.I(f"v_cvt_pk_bf16_f32 v{o+3}, v{ACC+8*s+6}, v{ACC+8*s+7}")
        a.I(f"buffer_store_dwordx4 {vr(o)}, v18, s[36:39], 0 offen offset:{s*1024}")
    stamp_end(a, cfg, 0, 16, 24)
    a.I("s_endpgm")

def gen_k1_b(a, cfg):
    nt_q = " nt" if cfg.get("nt_q") else ""
    nt_v = " nt" if cfg.get("nt_v") else ""
    a.C("role B: T = dequant(qw) @ V, tile 64(d) x 96(g), 8 waves")
    NS = 5; VBASE = 32768; VSLOT = 24576; NCH = 12; PD = 4
    a.I("s_and_b32 s25, s22, 1")
    a.I("s_mul_i32 s25, s25, 5")
    a.I("s_lshr_b32 s26, s21, 2")
    a.I("s_add_u32 s25, s25, s26")
    a.I("s_lshl_b32 s26, s23, 1")
    a.I("s_lshr_b32 s27, s22, 1")
    a.I("s_add_u32 s26, s26, s27")
    a.I("s_lshl_b32 s26, s26, 2")
    a.I("s_and_b32 s27, s21, 3")
    a.I("s_add_u32 s26, s26, s27")
    VQ = 10
    VS = 14
    VV = 15
    VAW = 18
    VAR = 22
    VBR = 24
    VST = 30
    RAW = 32
    SZ = 96
    ACC = 112
    RING = 136
    TMP = 176
    a.I("v_lshrrev_b32 v6, 5, v1")
    a.I("v_and_b32 v7, 31, v1")
    a.I("s_movk_i32 s41, 6144")
    a.I("s_lshl_b32 s42, s24, 3")
    a.I("v_add_u32 v8, s42, v6")
    a.I(f"v_mul_lo_u32 v{VQ}, v8, s41")
    a.I(f"v_lshl_add_u32 v{VQ}, v7, 4, v{VQ}")
    for n in range(1, 4):
        a.I(f"v_add_u32 v{VQ+n}, {12288*n}, v{VQ}")
    a.I("s_mul_i32 s46, s25, 393216")
    a.I("s_add_u32 s47, s46, 4096")
    a.I("s_lshl_b32 s42, s25, 1")
    a.I("s_lshr_b32 s43, s24, 2")
    a.I("s_add_u32 s42, s42, s43")
    a.I("s_mul_i32 s42, s42, 3072")
    a.I(f"v_lshlrev_b32 v{VS}, 3, v7")
    a.I(f"v_add_u32 v{VS}, s42, v{VS}")
    a.I("s_movk_i32 s41, 3072")
    dma_lane_part(a, 9, 41, 8)
    a.I("s_mul_i32 s42, s26, 192")
    a.I("v_add_u32 v9, s42, v9")
    for jj in range(3):
        a.I(f"s_mul_i32 s42, s24, 3")
        a.I(f"s_add_u32 s42, s42, {jj}")
        a.I(f"s_mul_i32 s43, s42, 43")
        a.I(f"s_lshr_b32 s43, s43, 8")
        a.I(f"s_mul_i32 s44, s43, 6")
        a.I(f"s_sub_u32 s44, s42, s44")
        a.I(f"s_and_b32 s45, s44, 1")
        a.I(f"s_lshr_b32 s44, s44, 1")
        a.I(f"s_lshl_b32 s43, s43, 5")
        a.I(f"s_lshl_b32 s45, s45, 2")
        a.I(f"s_add_u32 s43, s43, s45")
        a.I(f"s_mul_i32 s43, s43, 3072")
        a.I(f"s_lshl_b32 s44, s44, 6")
        a.I(f"s_add_u32 s43, s43, s44")
        a.I(f"v_add_u32 v{VV+jj}, s43, v9")
    a.I("v_lshrrev_b32 v8, 1, v7")
    a.I("v_lshlrev_b32 v9, 8, v8")
    a.I("v_and_b32 v8, 7, v8")
    a.I("v_and_b32 v31, 1, v7")
    a.I("v_lshl_add_u32 v9, v31, 3, v9")
    a.I("s_lshr_b32 s42, s24, 1")
    a.I("s_lshl_b32 s42, s42, 12")
    a.I("v_add_u32 v9, s42, v9")
    a.I("s_and_b32 s42, s24, 1")
    a.I("s_lshl_b32 s42, s42, 3")
    for n in range(4):
        a.I(f"s_add_u32 s43, s42, {2*n}")
        a.I(f"v_add_u32 v31, s43, v6")
        a.I(f"v_xor_b32 v31, v31, v8")
        a.I(f"v_lshl_add_u32 v{VAW+n}, v31, 4, v9")
    a.I("s_lshr_b32 s42, s24, 2")
    a.I("s_bfe_u32 s43, s24, 0x10001")
    a.I("s_lshl_b32 s44, s42, 11")
    a.I("s_lshl_b32 s45, s43, 13")
    a.I("s_add_u32 s44, s44, s45")
    a.I("v_lshlrev_b32 v8, 8, v2")
    a.I("v_add_u32 v8, s44, v8")
    a.I("v_xor_b32 v9, v3, v2")
    a.I(f"v_lshl_add_u32 v{VAR}, v9, 4, v8")
    a.I("v_xor_b32 v9, 4, v9")
    a.I(f"v_lshl_add_u32 v{VAR+1}, v9, 4, v8")
    a.I(f"v_add_u32 v{VAR+1}, 1024, v{VAR+1}")
    tr_lane_part(a, 8, 9, 31)
    a.I("s_and_b32 s45, s24, 1")
    a.I("s_mul_i32 s44, s42, 12288")
    a.I(f"s_add_u32 s44, s44, {VBASE}")
    a.I("s_cmp_eq_u32 s45, 0")
    a.I("s_cselect_b32 s48, 0, 32")
    a.I("s_cselect_b32 s49, 0, 2048")
    a.I("s_cselect_b32 s50, 0, 4096")
    a.I("s_add_u32 s51, s49, 2048")
    a.I("s_add_u32 s49, s49, s44")
    a.I("s_add_u32 s50, s50, s44")
    a.I("s_add_u32 s51, s51, s44")
    a.I(f"v_xor_b32 v{VBR}, s48, v8")
    a.I(f"v_xor_b32 v{VBR+1}, s48, v9")
    a.I(f"v_add_u32 v{VBR+2}, s51, v{VBR}")
    a.I(f"v_add_u32 v{VBR}, s49, v{VBR}")
    a.I(f"v_add_u32 v{VBR+1}, s50, v{VBR+1}")
    for tt in range(3):
        a.I(f"v_add_u32 v{VBR+3+tt}, {2*VSLOT}, v{VBR+tt}")
    a.I("s_mul_i32 s44, s26, 20")
    a.I("s_lshl_b32 s48, s25, 1")
    a.I("s_add_u32 s44, s44, s48")
    a.I("s_add_u32 s44, s44, s43")
    a.I("s_mul_i32 s44, s44, 6")
    a.I("s_mul_i32 s48, s45, 3")
    a.I("s_add_u32 s44, s44, s48")
    a.I("s_lshl_b32 s44, s44, 10")
    a.I(f"s_add_u32 s44, s44, {TT_OFF}")
    a.I(f"v_lshlrev_b32 v{VST}, 4, v1")
    a.I(f"v_add_u32 v{VST}, s44, v{VST}")
    a.I("s_mul_i32 s52, s24, 3072")
    a.I(f"s_add_u32 s52, s52, {VBASE}")
    a.I("s_waitcnt lgkmcnt(0)")
    srd(a, 28, 6, 3932160)
    srd(a, 32, 14, 4718592)
    srd(a, 36, 16, WS_BYTES)
    srd(a, 56, 8, 61440)
    srd(a, 60, 10, 61440)

    def issue(c):
        r = RAW + 16 * (c % 4); z = SZ + 4 * (c % 4)
        so = 46 + (c // 8)
        a.I(f"s_mov_b32 s54, {c * 128 * 3072}")
        for n in range(4):
            a.I(f"buffer_load_dwordx4 {vr(r+4*n)}, v{VQ+n}, s[28:31], s{so} offen offset:{(c % 8) * 512}{nt_q}")
        a.I(f"buffer_load_dwordx2 {vr(z,2)}, v{VS}, s[56:59], 0 offen offset:{c*256}")
        a.I(f"buffer_load_dwordx2 {vr(z+2,2)}, v{VS}, s[60:63], 0 offen offset:{c*256}")
        for jj in range(3):
            a.I(f"s_add_u32 m0, s52, {(c % NS) * VSLOT + 1024*jj}")
            a.I(f"s_nop 0")
            a.I(f"buffer_load_dwordx4 v{VV+jj}, s[32:35], s54 offen{nt_v} lds")

    def dequant(c):
        r = RAW + 16 * (c % 4); z = SZ + 4 * (c % 4)
        S = TMP; NZ = TMP + 4; F = TMP + 8; PK = TMP + 24
        buf = (c & 1) * 16384
        a.I(f"v_lshlrev_b32 v{S}, 16, v{z}")
        a.I(f"v_and_b32 v{S+1}, 0xffff0000, v{z}")
        a.I(f"v_lshlrev_b32 v{S+2}, 16, v{z+1}")
        a.I(f"v_and_b32 v{S+3}, 0xffff0000, v{z+1}")
        a.I(f"v_lshlrev_b32 v{NZ}, 16, v{z+2}")
        a.I(f"v_and_b32 v{NZ+1}, 0xffff0000, v{z+2}")
        a.I(f"v_lshlrev_b32 v{NZ+2}, 16, v{z+3}")
        a.I(f"v_and_b32 v{NZ+3}, 0xffff0000, v{z+3}")
        for n in range(4):
            for j in range(4):
                a.I(f"v_cvt_f32_i32 v{F+4*n+j}, v{r+4*n+j}")
        for n in range(4):
            for j in range(4):
                a.I(f"v_sub_f32 v{F+4*n+j}, v{F+4*n+j}, v{NZ+j}")
        for n in range(4):
            for j in range(4):
                a.I(f"v_mul_f32 v{F+4*n+j}, v{F+4*n+j}, v{S+j}")
        for n in range(4):
            a.I(f"v_cvt_pk_bf16_f32 v{PK+2*n}, v{F+4*n}, v{F+4*n+1}")
            a.I(f"v_cvt_pk_bf16_f32 v{PK+2*n+1}, v{F+4*n+2}, v{F+4*n+3}")
            a.I(f"ds_write_b64 v{VAW+n}, {vr(PK+2*n,2)} offset:{buf}")

    def mma(c):
        buf = (c & 1) * 16384
        slot = c % NS
        bset = 0 if slot < 2 else 1
        if slot >= 4:
            pass
        soff = (slot - 2 * bset) * VSLOT
        ops = []
        for pp in range(2):
            base = RING + 20 * pp
            for ta in range(2):
                ops.append(f"ds_read_b128 {vr(base+4*ta)}, v{VAR+pp} offset:{buf + ta*4096}")
            for tt in range(3):
                o = soff + pp * 6144
                ops.append(f"ds_read_b64_tr_b16 {vr(base+8+4*tt,2)}, v{VBR+3*bset+tt} offset:{o}")
                ops.append(f"ds_read_b64_tr_b16 {vr(base+10+4*tt,2)}, v{VBR+3*bset+tt} offset:{o+1024}")
        for o in ops[:14]:
            a.I(o)
        issued = 14
        for pp in range(2):
            base = RING + 20 * pp
            for tt in range(3):
                need = 8 * pp + 4 + 2 * tt
                a.I(f"s_waitcnt lgkmcnt({issued - need})")
                for ta in range(2):
                    acc = ACC + 4 * (ta * 3 + tt)
                    cc = "0" if (c == 0 and pp == 0) else vr(acc)
                    a.I(f"v_mfma_f32_16x16x32_bf16 {vr(acc)}, {vr(base+4*ta)}, {vr(base+8+4*tt)}, {cc}")
                if issued == 14:
                    for o in ops[14:]:
                        a.I(o)
                    issued = 16

    for c in range(PD):
        issue(c)
    a.I(f"s_waitcnt vmcnt({9*(PD-1)})")
    dequant(0)
    a.I("s_waitcnt lgkmcnt(0)")
    a.I("s_barrier")
    for c in range(NCH):
        if c + PD < NCH:
            issue(c + PD)
        mma(c)
        if c + 1 < NCH:
            newer = min(NCH, c + PD + 1) - (c + 2)
            a.I(f"s_waitcnt vmcnt({9*newer})")
            dequant(c + 1)
            a.I("s_waitcnt lgkmcnt(0)")
            a.I("s_barrier")
    a.I("s_barrier")
    a.I("s_and_b32 s44, s24, 3")
    a.I("s_mul_i32 s44, s44, 6144")
    a.I("v_lshlrev_b32 v8, 4, v1")
    a.I("v_add_u32 v8, s44, v8")
    a.I("s_nop 4")
    a.I("s_cmp_lt_u32 s24, 4")
    a.I("s_cbranch_scc1 L_k1b_lo")
    for t in range(6):
        a.I(f"ds_write_b128 v8, {vr(ACC+4*t)} offset:{t*1024}")
    a.I("s_waitcnt lgkmcnt(0)")
    a.I("s_barrier")
    stamp_end(a, cfg, 0, 16, 24)
    a.I("s_endpgm")
    a.L("L_k1b_lo")
    a.I("s_barrier")
    for t in range(6):
        a.I(f"ds_read_b128 {vr(RING+4*t)}, v8 offset:{t*1024}")
    for tt in range(3):
        a.I(f"s_waitcnt lgkmcnt({2-tt})")
        for ta in range(2):
            t = ta * 3 + tt
            for j in range(4):
                a.I(f"v_add_f32 v{ACC+4*t+j}, v{ACC+4*t+j}, v{RING+4*t+j}")
        o = TMP + 4 * tt
        a.I(f"v_cvt_pk_bf16_f32 v{o}, v{ACC+4*tt}, v{ACC+4*tt+1}")
        a.I(f"v_cvt_pk_bf16_f32 v{o+1}, v{ACC+4*tt+2}, v{ACC+4*tt+3}")
        a.I(f"v_cvt_pk_bf16_f32 v{o+2}, v{ACC+12+4*tt}, v{ACC+12+4*tt+1}")
        a.I(f"v_cvt_pk_bf16_f32 v{o+3}, v{ACC+12+4*tt+2}, v{ACC+12+4*tt+3}")
        a.I(f"buffer_store_dwordx4 {vr(o)}, v{VST}, s[36:39], 0 offen offset:{tt*1024}")
    stamp_end(a, cfg, 0, 16, 24)
    a.I("s_endpgm")

def gen_k2(a, cfg):
    K = "quip_s2_kernel"
    a.lines.append(f".globl {K}\n.p2align 8\n.type {K},@function")
    a.L(K)
    a.I("s_cmp_ge_u32 s2, 256")
    a.I("s_cbranch_scc1 L_k2_exit")
    stamp_begin(a, cfg)
    a.I("s_load_dwordx2 s[4:5], s[0:1], 48")
    a.I("s_load_dwordx2 s[6:7], s[0:1], 64")
    a.I("s_and_b32 s20, s2, 7")
    a.I("s_lshr_b32 s21, s2, 3")
    a.I("s_lshr_b32 s22, s20, 1")
    a.I("s_and_b32 s23, s20, 1")
    a.I("s_and_b32 s25, s21, 3")
    a.I("s_lshl_b32 s26, s22, 2")
    a.I("s_add_u32 s25, s25, s26")
    a.I("s_lshr_b32 s26, s21, 2")
    a.I("s_lshl_b32 s27, s23, 3")
    a.I("s_add_u32 s26, s26, s27")
    a.I("v_and_b32 v1, 63, v0")
    a.I("v_lshrrev_b32 v2, 6, v0")
    a.I("s_nop 0")
    a.I("v_readfirstlane_b32 s24, v2")
    a.I("v_lshlrev_b32 v3, 4, v1")
    a.I("s_lshl_b32 s40, s25, 3")
    a.I("s_lshl_b32 s41, s24, 1")
    a.I("s_add_u32 s40, s40, s41")
    a.I("s_mul_i32 s41, s40, 20480")
    if XR_OFF:
        a.I(f"s_add_u32 s41, s41, {XR_OFF}")
    a.I("v_add_u32 v4, s41, v3")
    a.I("v_add_u32 v5, 20480, v4")
    a.I("s_mul_i32 s42, s24, 3072")
    a.I("v_add_u32 v6, s42, v3")
    a.I("s_mul_i32 s43, s26, 122880")
    a.I(f"s_add_u32 s43, s43, {TT_OFF}")
    a.I("v_add_u32 v8, 61440, v3")
    a.I("v_and_b32 v9, 15, v1")
    a.I("s_lshl_b32 s41, s40, 4")
    a.I("v_add_u32 v9, s41, v9")
    a.I("s_movk_i32 s41, 3072")
    a.I("v_mul_lo_u32 v9, v9, s41")
    a.I("v_bfe_u32 v10, v1, 4, 1")
    a.I("v_lshl_add_u32 v9, v10, 5, v9")
    a.I("v_lshrrev_b32 v10, 5, v1")
    a.I("v_lshl_add_u32 v9, v10, 4, v9")
    a.I("s_mul_i32 s41, s26, 192")
    a.I("v_add_u32 v9, s41, v9")
    a.I("v_add_u32 v10, 49152, v9")
    for n in range(1, 5):
        a.I(f"s_movk_i32 s{44+n}, {4096*n}")
    a.I("s_waitcnt lgkmcnt(0)")
    srd(a, 28, 6, WS_BYTES)
    srd(a, 32, 4, 6291456)
    ACC = 16; RING = 64; NR = 12
    NCH = 10
    def issue(c):
        a.I("s_mov_b32 m0, s42")
        a.I("s_add_u32 s42, s42, 12288")
        for jj in range(3):
            a.I(f"buffer_load_dwordx4 v6, s[28:31], s43 offen offset:{1024*jj} lds")
        a.I("s_add_u32 s43, s43, 12288")
        for pp in range(2):
            p = 2 * c + pp
            so = "0" if p < 4 else f"s{44 + p // 4}"
            for u in range(2):
                a.I(f"buffer_load_dwordx4 {vr(8*p+4*u, 4, 'a')}, v{4+u}, s[28:31], {so} offen offset:{(p % 4) * 1024}")
    UP = 8
    for c in range(UP):
        issue(c)
    items = []
    class G: pass
    issued_chunks = [UP]
    for p in range(20):
        for t in range(6):
            it = {}
            if p % 2 == 0 and t == 0:
                c = p // 2
                ic = min(NCH, UP + c)
                it["gate"] = [f"s_waitcnt vmcnt({7*(ic-c-1)})", "s_barrier"]
                if cfg.get("stamp2"):
                    it["gate"] += [f"s_memtime s[{56+2*c}:{57+2*c}]"]
                it["post_issue"] = UP + c if UP + c < NCH else None
            def reads(reg, p=p, t=t):
                off = (p * 6 + t) * 1024
                if off >= 61440:
                    return [f"ds_read_b128 {vr(reg)}, v8 offset:{off-61440}"]
                return [f"ds_read_b128 {vr(reg)}, v3 offset:{off}"]
            def mfma(reg, p=p, t=t):
                out = []
                for u in range(2):
                    acc = ACC + 4 * (t * 2 + u)
                    cc = "0" if p == 0 else vr(acc)
                    out.append(f"v_mfma_f32_16x16x32_bf16 {vr(acc)}, {vr(reg)}, {vr(8*p+4*u,4,'a')}, {cc}")
                if cfg.get("k2_nomfma") and p > 0: out = []
                return out
            it["reads"] = reads; it["mfma"] = mfma
            items.append(it)
    for it in items:
        if it.get("post_issue") is not None:
            sub = Asm()
            a_save = a
            c = it["post_issue"]
            tmp = []
            sub_a = Asm()
            def issue_to(sa, c=c):
                sa.I("s_mov_b32 m0, s42")
                sa.I("s_add_u32 s42, s42, 12288")
                for jj in range(3):
                    sa.I(f"buffer_load_dwordx4 v6, s[28:31], s43 offen offset:{1024*jj} lds")
                sa.I("s_add_u32 s43, s43, 12288")
                for pp in range(2):
                    p = 2 * c + pp
                    so = "0" if p < 4 else f"s{44 + p // 4}"
                    for u in range(2):
                        sa.I(f"buffer_load_dwordx4 {vr(8*p+4*u, 4, 'a')}, v{4+u}, s[28:31], {so} offen offset:{(p % 4) * 1024}")
            issue_to(sub_a)
            it["gate"] = it["gate"] + [l.strip() for l in sub_a.lines]
    rolling(a, items, depth=8, slots=[RING + 4*i for i in range(NR)])
    a.I("s_nop 7")
    O = RING
    k = 0
    for u in range(2):
        for s in range(3):
            o = O + 4 * k; k += 1
            a0 = ACC + 4 * ((2*s) * 2 + u); a1 = ACC + 4 * ((2*s+1) * 2 + u)
            a.I(f"v_cvt_pk_bf16_f32 v{o}, v{a0}, v{a0+1}")
            a.I(f"v_cvt_pk_bf16_f32 v{o+1}, v{a0+2}, v{a0+3}")
            a.I(f"v_cvt_pk_bf16_f32 v{o+2}, v{a1}, v{a1+1}")
            a.I(f"v_cvt_pk_bf16_f32 v{o+3}, v{a1+2}, v{a1+3}")
            a.I("s_nop 1")
            a.I(f"v_permlane16_swap_b32 v{o}, v{o+2}")
            a.I(f"v_permlane16_swap_b32 v{o+1}, v{o+3}")
            a.I(f"buffer_store_dwordx4 {vr(o)}, v{9+u}, s[32:35], 0 offen offset:{64*s}")
    if cfg.get("delay"):
        a.I(f"s_mov_b32 s70, {cfg['delay']}")
        a.L("L_delay")
        for _ in range(16):
            a.I("v_add_u32 v20, v20, v20")
        a.I("s_sub_u32 s70, s70, 1")
        a.I("s_cmp_lg_u32 s70, 0")
        a.I("s_cbranch_scc1 L_delay")
    stamp_end(a, cfg, 1, 6, 24)
    if cfg.get("stamp2"):
        a.I("s_lshl_b32 s88, s2, 2")
        a.I("s_add_u32 s88, s88, s24")
        a.I("s_lshl_b32 s88, s88, 6")
        a.I(f"s_add_u32 s88, s88, {STAMP_OFF + 0x80000}")
        a.I("v_mov_b32 v0, s88")
        for c in range(10):
            a.I(f"s_sub_u32 s89, s{56+2*c}, s82")
            a.I(f"v_mov_b32 v2, s89")
            a.I(f"global_store_dword v0, v2, s[6:7] offset:{4*c}")
        a.I(f"s_sub_u32 s89, s86, s82")
        a.I(f"v_mov_b32 v2, s89")
        a.I(f"global_store_dword v0, v2, s[6:7] offset:40")
    a.L("L_k2_exit")
    a.I("s_endpgm")

def kd(name, nfv, acc_off, sgpr=96):
    return f""".p2align 6
.amdhsa_kernel {name}
  .amdhsa_next_free_vgpr {nfv}
  .amdhsa_next_free_sgpr {sgpr}
  .amdhsa_accum_offset {acc_off}
  .amdhsa_group_segment_fixed_size 0
  .amdhsa_kernarg_size 72
  .amdhsa_user_sgpr_count 2
  .amdhsa_user_sgpr_kernarg_segment_ptr 1
  .amdhsa_system_sgpr_workgroup_id_x 1
.end_amdhsa_kernel
"""

def gen(cfg):
    a = Asm()
    out = HEADER
    for _ in range(cfg.get("empty_pre", 0)):
        out += "; @launch kernel=quip_empty_kernel grid=(1,1,1) block=(64,1,1) lds=0\n"
    out += "; @launch kernel=quip_s1_kernel grid=(256,1,1) block=(512,1,1) lds=163840\n"
    out += "; @launch kernel=quip_s2_kernel grid=(256,1,1) block=(256,1,1) lds=122880\n"
    for _ in range(cfg.get("empty_post", 0)):
        out += "; @launch kernel=quip_empty_kernel grid=(1,1,1) block=(64,1,1) lds=0\n"
    out += '.amdgcn_target "amdgcn-amd-amdhsa--gfx950"\n.text\n'
    gen_k1(a, cfg)
    gen_k2(a, cfg)
    if cfg.get("empty_pre") or cfg.get("empty_post"):
        a.lines.append(".globl quip_empty_kernel\n.p2align 8\n.type quip_empty_kernel,@function\nquip_empty_kernel:\n    s_endpgm")
    out += a.text()
    out += '.section .rodata,"a"\n'
    if cfg.get("empty_pre") or cfg.get("empty_post"):
        out += kd("quip_empty_kernel", 8, 8, 16)
    out += kd("quip_s1_kernel", 256, 256)
    out += kd("quip_s2_kernel", 288, 128)
    return out

if __name__ == "__main__":
    cfg = {}
    outp = sys.argv[1] if len(sys.argv) > 1 else "standalone__weight_only_int_quip__prompt.s"
    for kv in sys.argv[2:]:
        k, v = kv.split("=")
        cfg[k] = int(v)
    open(outp, "w").write(gen(cfg))
```

```python
import sys

HEADER = open("standalone__weight_only_int_quip__prompt.s.ref").read().split("; Override launch")[0]

XR_OFF = 0
TT_OFF = 0x300000
WS_BYTES = 0x500000

class Asm:
    def __init__(self):
        self.lines = []
    def I(self, s):
        self.lines.append("    " + s)
    def L(self, s):
        self.lines.append(s + ":")
    def C(self, s):
        self.lines.append("    ; " + s)
    def text(self):
        return "\n".join(self.lines) + "\n"

def vr(b, n=4, p="v"):
    return f"{p}[{b}:{b+n-1}]" if n > 1 else f"{p}{b}"

STAMP_OFF = 0x600000
def stamp_begin(a, cfg):
    if cfg.get("stamp"):
        a.I("s_memrealtime s[80:81]")
        a.I("s_memtime s[82:83]")

def stamp_end(a, cfg, kidx, ws_lo, wave_sgpr):
    if cfg.get("stamp"):
        a.I("s_waitcnt vmcnt(0) lgkmcnt(0)")
        a.I("s_memrealtime s[84:85]")
        a.I("s_memtime s[86:87]")
        a.I("s_lshl_b32 s88, s2, 3")
        a.I(f"s_add_u32 s88, s88, s{wave_sgpr}")
        a.I("s_lshl_b32 s88, s88, 5")
        a.I(f"s_add_u32 s88, s88, {STAMP_OFF + kidx*0x40000}")
        a.I("s_getreg_b32 s89, hwreg(HW_REG_XCC_ID)")
        a.I("s_waitcnt lgkmcnt(0)")
        a.I("v_mov_b32 v0, s88")
        for k in range(8):
            a.I(f"v_mov_b32 v{2+k}, s{80+k}")
        a.I("v_mov_b32 v5, s89")
        a.I(f"global_store_dwordx4 v0, v[2:5], s[{ws_lo}:{ws_lo+1}]")
        a.I(f"global_store_dwordx4 v0, v[6:9], s[{ws_lo}:{ws_lo+1}] offset:16")

def gate_stamps_out(a, cfg, n, base_sgpr, ws_lo, wave_sgpr, off):
    a.I("s_lshl_b32 s88, s2, 3")
    a.I(f"s_add_u32 s88, s88, s{wave_sgpr}")
    a.I("s_lshl_b32 s88, s88, 6")
    a.I(f"s_add_u32 s88, s88, {off}")
    a.I("v_mov_b32 v0, s88")
    for c in range(n):
        a.I(f"s_sub_u32 s89, s{base_sgpr+c}, s82")
        a.I(f"v_mov_b32 v2, s89")
        a.I(f"global_store_dword v0, v2, s[{ws_lo}:{ws_lo+1}] offset:{4*c}")
    a.I(f"s_sub_u32 s89, s86, s82")
    a.I(f"v_mov_b32 v2, s89")
    a.I(f"global_store_dword v0, v2, s[{ws_lo}:{ws_lo+1}] offset:{4*n}")

def srd(a, d, base, nbytes):
    a.I(f"s_mov_b32 s{d}, s{base}")
    a.I(f"s_and_b32 s{d+1}, s{base+1}, 0xffff")
    a.I(f"s_mov_b32 s{d+2}, {nbytes}")
    a.I(f"s_mov_b32 s{d+3}, 0x00020000")

def rolling(a, items, depth, slots):
    n = len(items)
    issued = 0
    nreads = []
    for k in range(n):
        while issued < min(n, k + depth):
            it = items[issued]
            if it.get("gate"):
                for g in it["gate"]:
                    a.I(g)
            rd = it["reads"](slots[issued % len(slots)])
            for r in rd:
                a.I(r)
            nreads.append(len(rd))
            issued += 1
        cnt = sum(nreads[k + 1:issued])
        assert cnt <= 15
        a.I(f"s_waitcnt lgkmcnt({cnt})")
        for m in items[k]["mfma"](slots[k % len(slots)]):
            a.I(m)
        for m in items[k].get("post", []):
            a.I(m)

def merge(comp, loads, policy):
    if not loads:
        return list(comp)
    if policy == 0:
        return [x for g in loads for x in g] + list(comp)
    if policy == 1:
        return list(comp) + [x for g in loads for x in g]
    n = len(comp); m = len(loads)
    out = []
    pos = [(k * n) // m for k in range(m)] if policy == 2 else [((k + 1) * n) // m for k in range(m)]
    li = 0
    for i in range(n + 1):
        while li < m and pos[li] == i:
            out.extend(loads[li]); li += 1
        if i < n:
            out.append(comp[i])
    return out

def gen_k1(a, cfg):
    K = "quip_s1_kernel"
    a.lines.append(f".globl {K}\n.p2align 8\n.type {K},@function")
    a.L(K)
    a.I("s_cmp_ge_u32 s2, 256")
    a.I("s_cbranch_scc1 L_k1_exit")
    stamp_begin(a, cfg)
    a.I("s_load_dwordx8 s[4:11], s[0:1], 0")
    a.I("s_load_dwordx4 s[12:15], s[0:1], 32")
    a.I("s_load_dwordx2 s[16:17], s[0:1], 64")
    a.I("s_lshr_b32 s21, s2, 3")
    a.I("s_and_b32 s20, s2, 7")
    a.I("s_lshr_b32 s22, s20, 1")
    a.I("s_and_b32 s23, s20, 1")
    a.I("v_and_b32 v1, 63, v0")
    a.I("v_lshrrev_b32 v2, 6, v0")
    a.I("v_and_b32 v3, 15, v1")
    a.I("v_readfirstlane_b32 s24, v2")
    a.I("v_lshrrev_b32 v2, 4, v1")
    a.I("s_cmp_ge_u32 s21, 24")
    a.I("s_cbranch_scc1 L_k1_roleA")
    gen_k1_b(a, cfg)
    a.L("L_k1_roleA")
    gen_k1_a(a, cfg)
    a.L("L_k1_exit")
    a.I("s_endpgm")

class LdsQ:
    def __init__(self, out):
        self.out = out; self.q = []
    def issue(self, instr, tag):
        if len(self.q) >= 15:
            self.wait_n(14)
        self.out.append(instr); self.q.append(tag)
    def wait_n(self, n):
        self.out.append(f"s_waitcnt lgkmcnt({n})")
        self.q = self.q[len(self.q) - n:] if n else []
    def need(self, tag):
        idx = [i for i, t in enumerate(self.q) if t == tag]
        if idx:
            self.wait_n(len(self.q) - 1 - idx[-1])

def gen_k1_a(a, cfg):
    nt_x = " nt" if cfg.get("nt_x") else ""
    nt_u = " nt" if cfg.get("nt_u") else ""
    PDA = 3
    XB = 61440
    a.C("role A: xr = x @ U, tile 256(m) x 80(e), wave tile 32 x 80")
    if cfg.get("a_off"):
        a.I("s_endpgm")
    a.I("s_sub_u32 s25, s21, 24")
    a.I("s_and_b32 s26, s25, 1")
    a.I("s_lshl_b32 s40, s20, 4")
    a.I("s_lshl_b32 s41, s24, 1")
    a.I("s_add_u32 s40, s40, s41")
    a.I("s_movk_i32 s41, 1280")
    VX = 10; VXR = 11; VU = 12; VT = 17; VST = 19
    a.I("s_lshl_b32 s42, s40, 4")
    a.I("v_lshrrev_b32 v7, 3, v1")
    a.I("v_add_u32 v6, s42, v7")
    a.I(f"v_mul_lo_u32 v{VX}, v6, s41")
    a.I("v_and_b32 v7, 6, v7")
    a.I("v_and_b32 v6, 7, v1")
    a.I("v_xor_b32 v6, v6, v7")
    a.I(f"v_lshl_add_u32 v{VX}, v6, 4, v{VX}")
    a.I("s_mul_i32 s45, s24, 12288")
    a.I(f"s_add_u32 s45, s45, {XB}")
    a.I("v_and_b32 v6, 6, v3")
    a.I("v_xor_b32 v6, v6, v2")
    a.I("v_lshl_add_u32 v6, v3, 3, v6")
    a.I(f"v_lshl_add_u32 v{VXR}, v6, 4, s45")
    a.I(f"v_xor_b32 v21, 64, v{VXR}")
    a.I("s_mul_i32 s46, s25, 160")
    for jj in range(5):
        a.I(f"s_add_u32 s42, s24, {8*jj}")
        a.I(f"s_mul_i32 s43, s42, 52")
        a.I(f"s_lshr_b32 s43, s43, 8")
        a.I(f"s_mul_i32 s44, s43, 5")
        a.I(f"s_sub_u32 s44, s42, s44")
        a.I(f"s_lshl_b32 s44, s44, 6")
        a.I(f"v_add_u32 v6, s44, v1")
        a.I(f"v_mul_u32_u24 v7, 205, v6")
        a.I(f"v_lshrrev_b32 v7, 11, v7")
        a.I(f"v_mul_u32_u24 v8, 10, v7")
        a.I(f"v_sub_u32 v8, v6, v8")
        a.I(f"v_lshrrev_b32 v6, 1, v7")
        a.I(f"v_xor_b32 v6, v6, v7")
        a.I(f"v_and_b32 v6, 4, v6")
        a.I(f"v_mul_u32_u24 v6, 3, v6")
        a.I(f"v_xor_b32 v7, v7, v6")
        a.I(f"s_lshl_b32 s43, s43, 5")
        a.I(f"v_add_u32 v7, s43, v7")
        a.I(f"v_mul_lo_u32 v7, v7, s41")
        a.I(f"v_lshl_add_u32 v8, s26, 1, v8")
        a.I(f"v_subrev_u32 v6, 10, v8")
        a.I(f"v_min_u32 v8, v8, v6")
        a.I(f"v_lshl_add_u32 v7, v8, 4, v7")
        a.I(f"v_add_u32 v{VU+jj}, s46, v7")
    a.I("v_lshrrev_b32 v6, 1, v2")
    a.I("v_lshlrev_b32 v6, 4, v6")
    a.I("v_and_b32 v7, 1, v2")
    a.I("v_lshl_add_u32 v6, v7, 2, v6")
    a.I("v_lshrrev_b32 v7, 2, v3")
    a.I("v_add_u32 v6, v6, v7")
    a.I("v_mul_u32_u24 v6, 160, v6")
    a.I("v_and_b32 v7, 3, v3")
    a.I(f"v_lshl_add_u32 v{VT}, v7, 3, v6")
    a.I("s_mul_i32 s42, s25, 5")
    a.I("s_add_u32 s42, s42, s26")
    a.I("s_lshr_b32 s42, s42, 1")
    a.I("s_mul_i32 s43, s40, 20")
    a.I("s_add_u32 s42, s42, s43")
    a.I("s_lshl_b32 s42, s42, 10")
    if XR_OFF:
        a.I(f"s_add_u32 s42, s42, {XR_OFF}")
    a.I("s_cmp_eq_u32 s26, 0")
    a.I("s_cselect_b32 s43, 3064, 0")
    a.I("s_add_u32 s43, s43, s42")
    a.I("s_sub_u32 s43, s43, 1016")
    a.I(f"v_lshl_add_u32 v{VST}, v1, 4, s42")
    a.I(f"v_lshl_add_u32 v{VST+1}, v1, 4, s43")
    a.I("s_lshl_b32 s44, s24, 10")
    a.I("s_cmp_lt_u32 s24, 4")
    a.I(f"s_cselect_b32 s50, {60*1024}, 0")
    a.I(f"s_add_u32 s50, s50, s44")
    a.I(f"s_sub_u32 s50, s50, {4*1024}")
    a.I("s_mov_b32 s47, 327680")
    a.I("s_mov_b32 s48, 655360")
    a.I("s_movk_i32 s49, 20480")
    a.I("s_movk_i32 s51, 10240")
    a.I("s_movk_i32 s52, 30720")
    a.I("s_waitcnt lgkmcnt(0)")
    srd(a, 28, 4, 2621440)
    srd(a, 32, 12, 819200)
    srd(a, 36, 16, WS_BYTES)
    ACC = 24; RING = 64; XF = 96
    def udma(j):
        so = ["0", "s47", "s48"][j // 5]
        if j < 7: m = f"s_add_u32 m0, s44, {8192*j}"
        elif j == 7: m = "s_mov_b32 m0, s50"
        else: m = f"s_add_u32 m0, s44, {8192*j - 61440}"
        return [m, "s_nop 0", f"buffer_load_dwordx4 v{VU + j % 5}, s[32:35], {so} offen{nt_u} lds"]
    def xld(P):
        g = []
        for b in range(4):
            so = ["0", "s51", "s49", "s52"][b]
            g.append([f"s_add_u32 m0, s45, {(P % 3)*4096 + b*1024 - P*128}", "s_nop 0",
                      f"buffer_load_dwordx4 v{VX}, s[28:31], {so} offen offset:{P*128}{nt_x} lds"])
        return g
    ust = []; jn = 0
    for P in range(10):
        g = []
        need = (10 * P + 9) // 8
        while jn <= need:
            g.append(udma(jn)); jn += 1
        ust.append(g)
    out = []
    vm = []
    def emit_groups(groups, tag):
        for g in groups:
            out.extend(g); vm.append(tag)
    def vmwait(tag):
        idx = max(i for i, t in enumerate(vm) if t == tag)
        return len(vm) - 1 - idx
    for P in range(PDA):
        emit_groups(ust[P] + xld(P), P)
    L = LdsQ(out)
    DEPTH = cfg.get("a_depth", 5)
    items = [(p, t) for p in range(20) for t in range(5)]
    def issue_item(k):
        p, t = items[k]
        P = p // 2
        if p % 2 == 0 and t == 0:
            out.append(f"s_waitcnt vmcnt({vmwait(P)})")
            out.append("s_barrier")
            if cfg.get("stamp2"):
                out.extend(["s_memtime s[90:91]", "s_waitcnt lgkmcnt(0)", f"s_mov_b32 s{56+P}, s90"]); L.q = []
            for pp in range(2):
                for u in range(2):
                    L.issue(f"ds_read_b128 {vr(XF + 16*(P&1) + 8*pp + 4*u)}, v{VXR if pp == 0 else 21} offset:{(P%3)*4096 + u*2048}", ("x", P, pp))
        reg = RING + 4 * (k % 8)
        off = (P % 6) * 10240 + (p & 1) * 5120 + t * 32
        L.issue(f"ds_read_b64_tr_b16 {vr(reg,2)}, v{VT} offset:{off}", ("u", k))
        L.issue(f"ds_read_b64_tr_b16 {vr(reg+2,2)}, v{VT} offset:{off+1280}", ("u", k))
    issued = 0
    pend = []
    for k in range(100):
        while issued < min(100, k + DEPTH):
            issue_item(issued); issued += 1
        p, t = items[k]; P = p // 2
        L.need(("u", k))
        if p % 2 == 0 and t == 0:
            L.need(("x", P, 1))
            if P + PDA < 10:
                pend = ust[P + PDA] + xld(P + PDA)
                pos = [(i * 9) // len(pend) for i in range(len(pend))]
        reg = RING + 4 * (k % 8)
        for u in range(2):
            acc = ACC + 4 * (5 * u + t)
            c = "0" if p == 0 else vr(acc)
            out.append(f"v_mfma_f32_16x16x32_bf16 {vr(acc)}, {vr(reg)}, {vr(XF + 16*(P&1) + 8*(p&1) + 4*u)}, {c}")
        kk = k - 10 * P
        if P + PDA < 10:
            for i, g in enumerate(pend):
                if pos[i] == kk:
                    emit_groups([g], P + PDA)
    for x in out:
        a.I(x)
    a.I("s_nop 7")
    k = 0
    for u in range(2):
        so = "0" if u == 0 else "s49"
        for s in range(2):
            o = RING + 4 * k; k += 1
            a0 = ACC + 4 * (5 * u + 2 * s); a1 = a0 + 4
            a.I(f"v_cvt_pk_bf16_f32 v{o}, v{a0}, v{a0+1}")
            a.I(f"v_cvt_pk_bf16_f32 v{o+1}, v{a0+2}, v{a0+3}")
            a.I(f"v_cvt_pk_bf16_f32 v{o+2}, v{a1}, v{a1+1}")
            a.I(f"v_cvt_pk_bf16_f32 v{o+3}, v{a1+2}, v{a1+3}")
            a.I(f"buffer_store_dwordx4 {vr(o)}, v{VST}, s[36:39], {so} offen offset:{s*1024}")
        o = RING + 4 * k; k += 1
        a0 = ACC + 4 * (5 * u + 4)
        a.I(f"v_cvt_pk_bf16_f32 v{o}, v{a0}, v{a0+1}")
        a.I(f"v_cvt_pk_bf16_f32 v{o+1}, v{a0+2}, v{a0+3}")
        a.I(f"buffer_store_dwordx2 {vr(o,2)}, v{VST+1}, s[36:39], {so} offen")
    stamp_end(a, cfg, 0, 16, 24)
    if cfg.get("stamp2"):
        gate_stamps_out(a, cfg, 10, 56, 16, 24, STAMP_OFF + 0x100000)
    a.I("s_endpgm")

def gen_k1_b(a, cfg):
    nt_q = " nt" if cfg.get("nt_q") else ""
    nt_v = " nt" if cfg.get("nt_v") else ""
    ABUF = 131072
    a.C("role B: T = dequant(qw) @ V, tile 80(d) x 64(g); waves {X: 2 tiles, Y: 3 tiles} x 4 chunk classes")
    a.I("s_mul_i32 s26, s21, 43")
    a.I("s_lshr_b32 s26, s26, 8")
    a.I("s_mul_i32 s27, s26, 6")
    a.I("s_sub_u32 s27, s21, s27")
    a.I("s_and_b32 s25, s22, 1")
    a.I("s_lshl_b32 s25, s25, 2")
    a.I("s_add_u32 s25, s25, s26")
    a.I("s_lshl_b32 s26, s23, 1")
    a.I("s_lshr_b32 s40, s22, 1")
    a.I("s_add_u32 s26, s26, s40")
    a.I("s_mul_i32 s26, s26, 6")
    a.I("s_add_u32 s26, s26, s27")
    a.I("s_and_b32 s27, s25, 1")
    a.I("s_mul_i32 s40, s25, 5")
    a.I("s_lshr_b32 s40, s40, 1")
    a.I("s_and_b32 s41, s24, 3")
    ncls = cfg.get("ncls", 1)
    a.I("s_add_u32 s43, s25, s26")
    if cfg.get("clsw"):
        a.I("s_add_u32 s43, s43, s41")
    if ncls == 1: a.I("s_mov_b32 s43, 0")
    elif ncls == 2: a.I("s_and_b32 s43, s43, 1")
    else:
        a.I("s_mul_i32 s44, s43, 86"); a.I("s_lshr_b32 s44, s44, 8"); a.I("s_mul_i32 s44, s44, 3"); a.I("s_sub_u32 s43, s43, s44")
    for c in range(3):
        a.I(f"s_add_u32 s{76+c}, s43, {c}")
        a.I(f"s_sub_u32 s44, s{76+c}, 3")
        a.I(f"s_min_u32 s{76+c}, s{76+c}, s44")
        a.I(f"s_mul_i32 s{92+c}, s{76+c}, 1572864")
        a.I(f"s_lshl_b32 s{76+c}, s{76+c}, 10")
    VQ = 10
    VV = 11
    VS = 12
    VB = 14
    VAW = 18
    VAR = 22
    VST = 24
    SZR = 26
    SZ = 34
    FT = 50
    PK = 58
    AF = 62
    BF = 78
    ACC = 142
    a.I("v_lshrrev_b32 v4, 3, v1")
    a.I(f"v_mul_u32_u24 v{VV}, 3072, v4")
    a.I("v_bfe_u32 v6, v1, 1, 2")
    a.I("v_xor_b32 v6, v6, v2")
    a.I(f"v_lshl_add_u32 v{VV}, v6, 5, v{VV}")
    a.I("v_and_b32 v6, 1, v1")
    a.I(f"v_lshl_add_u32 v{VV}, v6, 4, v{VV}")
    a.I("s_lshl_b32 s43, s26, 7")
    a.I("s_mul_i32 s44, s41, 393216")
    a.I("s_add_u32 s43, s43, s44")
    a.I(f"v_add_u32 v{VV}, s43, v{VV}")
    a.I("s_lshl_b32 s52, s41, 15")
    a.I("s_waitcnt lgkmcnt(0)")
    srd(a, 32, 14, 4718592)
    srd(a, 28, 6, 3932160)
    srd(a, 56, 8, 61440)
    srd(a, 60, 10, 61440)
    srd(a, 36, 16, WS_BYTES)
    a.I("v_lshrrev_b32 v4, 5, v1")
    a.I("v_and_b32 v5, 31, v1")
    a.I(f"v_mul_u32_u24 v{VQ}, 6144, v4")
    a.I(f"v_lshl_add_u32 v{VQ}, v5, 4, v{VQ}")
    a.I("s_lshl_b32 s43, s41, 9")
    a.I(f"v_add_u32 v{VQ}, s43, v{VQ}")
    a.I("s_mul_i32 s46, s25, 491520")
    a.I("s_mul_i32 s43, s40, 3072")
    a.I("s_lshl_b32 s44, s41, 8")
    a.I("s_add_u32 s43, s43, s44")
    a.I("v_lshl_add_u32 v7, v5, 3, s43")
    a.I("s_lshl_b32 s45, s24, 12")
    a.I(f"s_add_u32 s45, s45, {ABUF}")
    a.I("v_lshrrev_b32 v6, 3, v5")
    a.I("v_and_b32 v8, 3, v5")
    a.I("v_lshl_add_u32 v9, v6, 2, v8")
    a.I(f"v_lshl_add_u32 v{VAW}, v9, 8, s45")
    a.I("v_bfe_u32 v6, v5, 2, 1")
    a.I(f"v_lshl_add_u32 v{VAW}, v6, 3, v{VAW}")
    a.I("v_and_b32 v9, 7, v9")
    a.I("v_xor_b32 v9, v9, v4")
    a.I(f"v_lshl_add_u32 v{VAW}, v9, 4, v{VAW}")
    for n in range(1, 4):
        a.I(f"v_xor_b32 v{VAW+n}, {32*n}, v{VAW}")
    a.I("v_xor_b32 v6, v3, v2")
    a.I("v_lshlrev_b32 v6, 4, v6")
    a.I("v_lshl_add_u32 v6, v2, 8, v6")
    a.I(f"v_add_u32 v{VAR}, s45, v6")
    a.I(f"v_xor_b32 v{VAR+1}, 64, v{VAR}")
    a.I("v_and_b32 v8, 1, v2")
    a.I("v_lshrrev_b32 v6, 2, v3")
    a.I("v_lshl_add_u32 v8, v8, 2, v6")
    a.I("v_lshrrev_b32 v6, 1, v8")
    a.I("v_xor_b32 v6, s41, v6")
    a.I("v_lshl_add_u32 v6, v8, 2, v6")
    a.I(f"v_lshlrev_b32 v{VB}, 5, v6")
    a.I("v_and_b32 v6, 3, v3")
    a.I(f"v_lshl_add_u32 v{VB}, v6, 3, v{VB}")
    a.I("v_lshrrev_b32 v6, 1, v2")
    a.I(f"v_lshl_add_u32 v{VB}, v6, 10, v{VB}")
    a.I(f"v_add_u32 v{VB}, s52, v{VB}")
    for t in range(1, 4):
        a.I(f"v_xor_b32 v{VB+t}, {32*t}, v{VB}")
    a.I("s_lshl_b32 s43, s26, 2")
    a.I("s_add_u32 s43, s43, s41")
    a.I("s_mul_i32 s43, s43, 20")
    a.I("s_add_u32 s43, s43, s40")
    a.I("s_lshl_b32 s43, s43, 10")
    a.I(f"s_add_u32 s43, s43, {TT_OFF}")
    a.I("v_lshl_add_u32 v4, v1, 4, s43")
    a.I("s_cmp_ge_u32 s24, 4")
    a.I("s_cbranch_scc1 L_k1b_Y")

    nX = [cfg.get("nx0", 8), cfg.get("nx1", 12), cfg.get("nx2", 12)]

    def body(ty):
        nt = 2 + ty
        ng = 1 + ty
        RAW = ACC + 16 * nt
        W = min((256 - RAW) // 4, cfg.get("wmax", 20))
        a.I("s_cmp_eq_u32 s27, 0")
        if ty == 0:
            a.I(f"s_cselect_b32 s48, 0, {3*98304}")
            a.I(f"s_cselect_b32 s43, 0, {2*3072}")
            a.I(f"v_add_u32 v{VS}, s43, v7")
            a.I(f"s_cselect_b32 s43, 0, 2048")
            a.I(f"v_add_u32 v{VST}, s43, v4")
            a.I("s_add_u32 s48, s48, s46")
            a.I("s_add_u32 s49, s48, 98304")
        else:
            a.I(f"s_cselect_b32 s48, 98304, 0")
            a.I(f"s_cselect_b32 s50, {4*98304}, 0")
            a.I(f"v_add_u32 v{VS}, 3072, v7")
            a.I(f"s_cselect_b32 s43, {2*3072}, 0")
            a.I(f"v_add_u32 v{VS+1}, s43, v7")
            a.I(f"v_add_u32 v{VST}, 1024, v4")
            a.I(f"s_cselect_b32 s43, 2048, 8")
            a.I(f"v_add_u32 v{VST+1}, s43, v4")
            a.I("s_add_u32 s48, s48, s46")
            a.I("s_add_u32 s48, s48, 98304")
            a.I("s_add_u32 s49, s48, 98304")
            a.I("s_add_u32 s50, s50, s46")
        def vblocks(c):
            return list(range(nX[c])) if ty == 0 else list(range(nX[c], 16))
        stream = []
        def ev_v(c, b): return ("v", c, b)
        def ev_sz(c): return ("sz", c)
        raws = [[("r", c, i, n) for i in range(nt) for n in range(8)] for c in range(3)]
        stream.append(ev_sz(0))
        v0 = [ev_v(0, b) for b in vblocks(0)]
        stream += v0
        for c in range(3):
            r = raws[c]
            ins = ([ev_v(c + 1, b) for b in vblocks(c + 1)] + [ev_sz(c + 1)]) if c < 2 else []
            m = len(ins)
            pos = [((k + 1) * len(r)) // (m + 1) for k in range(m)]
            for k, x in enumerate(r):
                for kk in range(m):
                    if pos[kk] == k: stream.append(ins[kk])
                stream.append(x)
        out = []; L = LdsQ(out)
        vm = []
        st = {"ptr": 0, "inflight": 0, "slot": 0, "bar1": False, "szfree": 0}
        rslot = {}
        def emit_ev(ev):
            if ev[0] == "v":
                _, c, b = ev
                out.append(f"s_add_u32 m0, s52, {(c & 1)*16384 + b*1024}")
                out.append(f"s_add_u32 s54, s{92+c}, {b*24576}")
                out.append(f"buffer_load_dwordx4 v{VV}, s[32:35], s54 offen{nt_v} lds"); vm.append(ev)
            elif ev[0] == "sz":
                c = ev[1]
                for g in range(ng):
                    out.append(f"buffer_load_dwordx2 {vr(SZR+4*g,2)}, v{VS+g}, s[56:59], s{76+c} offen"); vm.append(ev)
                    out.append(f"buffer_load_dwordx2 {vr(SZR+4*g+2,2)}, v{VS+g}, s[60:63], s{76+c} offen"); vm.append(ev)
            else:
                _, c, i, n = ev
                sl = st["slot"]; st["slot"] = (sl + 1) % W; rslot[ev] = sl
                st["inflight"] += 1
                if n == 0:
                    out.append(f"s_lshl1_add_u32 s55, s{76+c}, s{48+i}")
                out.append(f"s_add_u32 s54, s55, {n*12288}")
                out.append(f"buffer_load_dwordx4 {vr(RAW+4*sl)}, v{VQ}, s[28:31], s54 offen{nt_q}"); vm.append(ev)
        def pump(maxn=99):
            k = 0
            while st["ptr"] < len(stream) and k < maxn:
                ev = stream[st["ptr"]]
                if ev[0] == "r" and st["inflight"] >= W: break
                if ev[0] == "v" and ev[1] == 2 and not st["bar1"]: break
                if ev[0] == "sz" and ev[1] > st["szfree"]: break
                emit_ev(ev); st["ptr"] += 1; k += 1
        def vmneed(pred):
            idx = [i for i, t in enumerate(vm) if pred(t)]
            assert idx
            n = len(vm) - 1 - idx[-1]
            assert n <= 63
            out.append(f"s_waitcnt vmcnt({n})")
        def stamp(k):
            if cfg.get("stamp2"):
                out.extend(["s_memtime s[90:91]", "s_waitcnt lgkmcnt(0)", f"s_mov_b32 s{64+k}, s90"]); L.q = []
        pump()
        bg = []
        def run_bg(k):
            for _ in range(k):
                if not bg: return
                needs, ins = bg.pop(0)
                for t in needs: L.need(t)
                out.append(ins)
        un = 0
        for c in range(3):
            vmneed(lambda t: t == ("sz", c))
            for g in range(ng):
                z = SZ + 8 * g; r = SZR + 4 * g
                for k in range(2):
                    out.append(f"v_lshlrev_b32 v{z+2*k}, 16, v{r+k}")
                    out.append(f"v_and_b32 v{z+2*k+1}, 0xffff0000, v{r+k}")
                    out.append(f"v_lshlrev_b32 v{z+4+2*k}, 16, v{r+2+k}")
                    out.append(f"v_and_b32 v{z+4+2*k+1}, 0xffff0000, v{r+2+k}")
                for j in range(4):
                    out.append(f"v_mul_f32 v{z+4+j}, -v{z+4+j}, v{z+j}")
            st["szfree"] = c + 1
            for i in range(nt):
                z = SZ + (8 if i == 2 else 0)
                for n in range(8):
                    ev = ("r", c, i, n)
                    vmneed(lambda t: t == ev)
                    r = RAW + 4 * rslot[ev]
                    f = FT + 4 * (n & 1); pk = PK + 2 * (n & 1)
                    for j in range(4):
                        out.append(f"v_cvt_f32_i32 v{f+j}, v{r+j}")
                    st["inflight"] -= 1
                    run_bg(1)
                    for j in range(4):
                        out.append(f"v_fma_f32 v{f+j}, v{f+j}, v{z+j}, v{z+4+j}")
                    run_bg(1)
                    out.append(f"v_cvt_pk_bf16_f32 v{pk}, v{f}, v{f+1}")
                    out.append(f"v_cvt_pk_bf16_f32 v{pk+1}, v{f+2}, v{f+3}")
                    L.issue(f"ds_write_b64 v{VAW + (n & 3)}, {vr(pk,2)} offset:{128*(n>>2)}", ("aw",))
                    if c == 0 and i == 1 and n == 1:
                        L.need(("b", 0, 3, 3))
                        out.append("s_barrier"); st["bar1"] = True
                    pump()
                run_bg(99)
                for ks in range(4):
                    L.issue(f"ds_read_b128 {vr(AF+4*ks)}, v{VAR + (ks & 1)} offset:{ks*1024}", ("a", ks))
                if i == 0:
                    vmneed(lambda t: t[0] == "v" and t[1] == c)
                    out.append("s_barrier")
                    for ks in range(4):
                        for t in range(4):
                            for hb in range(2):
                                L.issue(f"ds_read_b64_tr_b16 {vr(BF+16*ks+4*t+2*hb,2)}, v{VB+t} offset:{(c&1)*16384 + 4096*ks + 2048*hb}", ("b", c, ks, t))
                stamp(un); un += 1
                for ks in range(4):
                    for t in range(4):
                        acc = ACC + 4 * (t * nt + i)
                        cc = "0" if (c == 0 and ks == 0) else vr(acc)
                        bg.append(([("a", ks), ("b", c, ks, t)], f"v_mfma_f32_16x16x32_bf16 {vr(acc)}, {vr(AF+4*ks)}, {vr(BF+16*ks+4*t)}, {cc}"))
        run_bg(99)
        assert st["ptr"] == len(stream)
        for x in out:
            if cfg.get("b_nocomp") and (x.startswith("v_") or x.startswith("ds_") or "lgkmcnt" in x and not cfg.get("stamp2")): continue
            if cfg.get("b_nomfma") and x.startswith("v_mfma"): continue
            if cfg.get("b_novalu") and x.startswith("v_") and not x.startswith("v_mfma"): continue
            if cfg.get("b_nods") and (x.startswith("ds_") or "lgkmcnt" in x): continue
            if cfg.get("b_nosalu") and (x.startswith("s_add") or x.startswith("s_mov") or "vmcnt" in x): continue
            if cfg.get("b_nobar") and x.startswith("s_barrier"): continue
            if cfg.get("b_noload") and x.startswith("buffer_load"): continue
            a.I(x)
        RB = 0 if ty == 0 else 24576
        a.I("s_barrier")
        a.I(f"v_lshlrev_b32 v6, 4, v1")
        for t in range(1, 4):
            a.I(f"s_xor_b32 s43, s41, {t}")
            a.I(f"s_mul_i32 s43, s43, {3*nt*1024}")
            a.I(f"s_add_u32 s43, s43, {RB + (t-1)*nt*1024}")
            a.I(f"v_add_u32 v{6+t}, s43, v6")
        a.I(f"s_mul_i32 s43, s41, {3*nt*1024}")
        a.I(f"s_add_u32 s43, s43, {RB}")
        a.I(f"v_add_u32 v6, s43, v6")
        for t in range(1, 4):
            for i in range(nt):
                a.I(f"ds_write_b128 v{6+t}, {vr(ACC + 4*(t*nt+i))} offset:{i*1024}")
        a.I("s_waitcnt lgkmcnt(0)")
        a.I("s_barrier")
        R = BF
        for t in range(1, 4):
            for i in range(nt):
                a.I(f"ds_read_b128 {vr(R + 4*((t-1)*nt+i))}, v6 offset:{((t-1)*nt+i)*1024}")
        for t in range(1, 4):
            a.I(f"s_waitcnt lgkmcnt({(3-t)*nt})")
            for i in range(nt):
                for j in range(4):
                    a.I(f"v_add_f32 v{ACC+4*i+j}, v{ACC+4*i+j}, v{R + 4*((t-1)*nt+i)+j}")
        for k in range(2 * nt):
            a.I(f"v_cvt_pk_bf16_f32 v{AF+k}, v{ACC+2*k}, v{ACC+2*k+1}")
        a.I(f"buffer_store_dwordx4 {vr(AF)}, v{VST}, s[36:39], 0 offen")
        if ty:
            a.I(f"buffer_store_dwordx2 {vr(AF+4,2)}, v{VST+1}, s[36:39], 0 offen")
        stamp_end(a, cfg, 0, 16, 24)
        if cfg.get("stamp2"):
            for k in range(un, 12):
                a.I(f"s_mov_b32 s{64+k}, s82")
            gate_stamps_out(a, cfg, 12, 64, 16, 24, STAMP_OFF + 0x100000)
        a.I("s_endpgm")

    body(0)
    a.L("L_k1b_Y")
    body(1)

def gen_k2(a, cfg):
    K = "quip_s2_kernel"
    a.lines.append(f".globl {K}\n.p2align 8\n.type {K},@function")
    a.L(K)
    a.I("s_cmp_ge_u32 s2, 256")
    a.I("s_cbranch_scc1 L_k2_exit")
    stamp_begin(a, cfg)
    a.I("s_load_dwordx2 s[4:5], s[0:1], 48")
    a.I("s_load_dwordx2 s[6:7], s[0:1], 64")
    a.I("s_and_b32 s20, s2, 7")
    a.I("s_lshr_b32 s21, s2, 3")
    a.I("s_lshr_b32 s22, s20, 1")
    a.I("s_and_b32 s23, s20, 1")
    a.I("s_and_b32 s25, s21, 3")
    a.I("s_lshl_b32 s26, s22, 2")
    a.I("s_add_u32 s25, s25, s26")
    a.I("s_lshr_b32 s26, s21, 2")
    a.I("s_lshl_b32 s27, s23, 3")
    a.I("s_add_u32 s26, s26, s27")
    a.I("v_and_b32 v1, 63, v0")
    a.I("v_lshrrev_b32 v2, 6, v0")
    a.I("s_nop 0")
    a.I("v_readfirstlane_b32 s24, v2")
    a.I("v_lshlrev_b32 v3, 4, v1")
    a.I("s_lshl_b32 s40, s25, 3")
    a.I("s_lshl_b32 s41, s24, 1")
    a.I("s_add_u32 s40, s40, s41")
    a.I("s_mul_i32 s41, s40, 20480")
    if XR_OFF:
        a.I(f"s_add_u32 s41, s41, {XR_OFF}")
    a.I("v_add_u32 v4, s41, v3")
    a.I("v_add_u32 v5, 20480, v4")
    a.I("s_and_b32 s42, s24, 1")
    a.I("s_mul_i32 s42, s42, 60")
    a.I("s_lshr_b32 s43, s24, 1")
    a.I("s_add_u32 s42, s42, s43")
    a.I("s_lshl_b32 s42, s42, 10")
    a.I("v_add_u32 v6, s42, v3")
    a.I("v_add_u32 v11, 20480, v6")
    a.I("v_add_u32 v12, 40960, v6")
    a.I("s_mul_i32 s42, s24, 3072")
    a.I("s_mul_i32 s43, s26, 122880")
    a.I(f"s_add_u32 s43, s43, {TT_OFF}")
    a.I("v_add_u32 v8, 61440, v3")
    a.I("v_and_b32 v9, 15, v1")
    a.I("s_lshl_b32 s41, s40, 4")
    a.I("v_add_u32 v9, s41, v9")
    a.I("s_movk_i32 s41, 3072")
    a.I("v_mul_lo_u32 v9, v9, s41")
    a.I("v_bfe_u32 v10, v1, 4, 1")
    a.I("v_lshl_add_u32 v9, v10, 5, v9")
    a.I("v_lshrrev_b32 v10, 5, v1")
    a.I("v_lshl_add_u32 v9, v10, 4, v9")
    a.I("s_mul_i32 s41, s26, 192")
    a.I("v_add_u32 v9, s41, v9")
    a.I("v_add_u32 v10, 49152, v9")
    for n in range(1, 5):
        a.I(f"s_movk_i32 s{44+n}, {4096*n}")
    a.I("s_waitcnt lgkmcnt(0)")
    srd(a, 28, 6, WS_BYTES)
    srd(a, 32, 4, 6291456)
    ACC = 16; RING = 64; NR = 12
    NCH = 10
    def load_groups(c):
        g = []
        g.append([f"s_add_u32 m0, s42, {c*12288}", "s_nop 0",
                  "buffer_load_dwordx4 v6, s[28:31], s43 offen lds"])
        g.append([f"s_add_u32 m0, s42, {c*12288+1024}", "s_nop 0", "buffer_load_dwordx4 v11, s[28:31], s43 offen lds"])
        g.append([f"s_add_u32 m0, s42, {c*12288+2048}", "s_nop 0", "buffer_load_dwordx4 v12, s[28:31], s43 offen lds", "s_add_u32 s43, s43, 2048"])
        for pp in range(2):
            p = 2 * c + pp
            so = "0" if p < 4 else f"s{44 + p // 4}"
            for u in range(2):
                g.append([f"buffer_load_dwordx4 {vr(8*p+4*u, 4, 'a')}, v{4+u}, s[28:31], {so} offen offset:{(p % 4) * 1024}"])
        return g
    UP = cfg.get("k2_up", 3)
    DEPTH = 8
    for c in range(UP):
        for g in load_groups(c):
            for x in g:
                a.I(x)
    items = []
    for p in range(20):
        for t in range(6):
            it = {}
            def reads(reg, p=p, t=t):
                off = (p * 6 + t) * 1024
                if off >= 61440:
                    return [f"ds_read_b128 {vr(reg)}, v8 offset:{off-61440}"]
                return [f"ds_read_b128 {vr(reg)}, v3 offset:{off}"]
            def mfma(reg, p=p, t=t):
                out = []
                for u in range(2):
                    acc = ACC + 4 * (t * 2 + u)
                    cc = "0" if p == 0 else vr(acc)
                    out.append(f"v_mfma_f32_16x16x32_bf16 {vr(acc)}, {vr(reg)}, {vr(8*p+4*u,4,'a')}, {cc}")
                return out
            it["reads"] = reads; it["mfma"] = mfma
            items.append(it)
    pos = [0, 2, 3, 5, 7, 8, 10]
    issue_at = {}
    n_up = 7 * UP
    for c in range(NCH):
        if c + UP < NCH:
            for k, g in enumerate(load_groups(c + UP)):
                it = items[12 * c + pos[k]]
                it.setdefault("post", []).extend(g)
                issue_at[7 * (c + UP) + k] = 12 * c + pos[k]
    for c in range(NCH):
        kproc = max(0, 12 * c - DEPTH + 1)
        issued = n_up + sum(1 for v, at in issue_at.items() if at < kproc)
        need = 7 * (c + 1)
        assert issued >= need
        g = [f"s_waitcnt vmcnt({issued - need})", "s_barrier"]
        if cfg.get("stamp2"):
            g += [f"s_memtime s[{56+2*c}:{57+2*c}]"]
        items[12 * c]["gate"] = g
    rolling(a, items, depth=DEPTH, slots=[RING + 4*i for i in range(NR)])
    a.I("s_nop 7")
    O = RING
    k = 0
    for u in range(2):
        for s in range(3):
            o = O + 4 * k; k += 1
            a0 = ACC + 4 * ((2*s) * 2 + u); a1 = ACC + 4 * ((2*s+1) * 2 + u)
            a.I(f"v_cvt_pk_bf16_f32 v{o}, v{a0}, v{a0+1}")
            a.I(f"v_cvt_pk_bf16_f32 v{o+1}, v{a0+2}, v{a0+3}")
            a.I(f"v_cvt_pk_bf16_f32 v{o+2}, v{a1}, v{a1+1}")
            a.I(f"v_cvt_pk_bf16_f32 v{o+3}, v{a1+2}, v{a1+3}")
            a.I("s_nop 1")
            a.I(f"v_permlane16_swap_b32 v{o}, v{o+2}")
            a.I(f"v_permlane16_swap_b32 v{o+1}, v{o+3}")
            a.I(f"buffer_store_dwordx4 {vr(o)}, v{9+u}, s[32:35], 0 offen offset:{64*s}")
    stamp_end(a, cfg, 1, 6, 24)
    if cfg.get("stamp2"):
        a.I("s_lshl_b32 s88, s2, 2")
        a.I("s_add_u32 s88, s88, s24")
        a.I("s_lshl_b32 s88, s88, 6")
        a.I(f"s_add_u32 s88, s88, {STAMP_OFF + 0x80000}")
        a.I("v_mov_b32 v0, s88")
        for c in range(10):
            a.I(f"s_sub_u32 s89, s{56+2*c}, s82")
            a.I(f"v_mov_b32 v2, s89")
            a.I(f"global_store_dword v0, v2, s[6:7] offset:{4*c}")
        a.I(f"s_sub_u32 s89, s86, s82")
        a.I(f"v_mov_b32 v2, s89")
        a.I(f"global_store_dword v0, v2, s[6:7] offset:40")
    a.L("L_k2_exit")
    a.I("s_endpgm")

def kd(name, nfv, acc_off, sgpr=96):
    return f""".p2align 6
.amdhsa_kernel {name}
  .amdhsa_next_free_vgpr {nfv}
  .amdhsa_next_free_sgpr {sgpr}
  .amdhsa_accum_offset {acc_off}
  .amdhsa_group_segment_fixed_size 0
  .amdhsa_kernarg_size 72
  .amdhsa_user_sgpr_count 2
  .amdhsa_user_sgpr_kernarg_segment_ptr 1
  .amdhsa_system_sgpr_workgroup_id_x 1
.end_amdhsa_kernel
"""

def gen(cfg):
    a = Asm()
    out = HEADER
    out += "; @launch kernel=quip_s1_kernel grid=(256,1,1) block=(512,1,1) lds=163840\n"
    out += "; @launch kernel=quip_s2_kernel grid=(256,1,1) block=(256,1,1) lds=122880\n"
    out += '.amdgcn_target "amdgcn-amd-amdhsa--gfx950"\n.text\n'
    gen_k1(a, cfg)
    gen_k2(a, cfg)
    out += a.text()
    out += '.section .rodata,"a"\n'
    out += kd("quip_s1_kernel", 256, 256, 100)
    out += kd("quip_s2_kernel", 288, 128)
    return out

if __name__ == "__main__":
    cfg = {}
    outp = sys.argv[1] if len(sys.argv) > 1 else "standalone__weight_only_int_quip__prompt.s"
    for kv in sys.argv[2:]:
        k, v = kv.split("=")
        cfg[k] = int(v)
    open(outp, "w").write(gen(cfg))
```

```python
import sys

HEADER = open("standalone__weight_only_int_quip__prompt.s.ref").read().split("; Override launch")[0]

XR_OFF = 0
TT_OFF = 0x300000
WS_BYTES = 0x500000

class Asm:
    def __init__(self):
        self.lines = []
    def I(self, s):
        self.lines.append("    " + s)
    def L(self, s):
        self.lines.append(s + ":")
    def C(self, s):
        self.lines.append("    ; " + s)
    def text(self):
        return "\n".join(self.lines) + "\n"

def vr(b, n=4, p="v"):
    return f"{p}[{b}:{b+n-1}]" if n > 1 else f"{p}{b}"

STAMP_OFF = 0x600000
def stamp_begin(a, cfg, B=80):
    if cfg.get("stamp"):
        a.I(f"s_memrealtime s[{B}:{B+1}]")
        a.I(f"s_memtime s[{B+2}:{B+3}]")

def stamp_end(a, cfg, kidx, ws_lo, wave_sgpr, B=80):
    if cfg.get("stamp"):
        a.I("s_waitcnt vmcnt(0) lgkmcnt(0)")
        a.I(f"s_memrealtime s[{B+4}:{B+5}]")
        a.I(f"s_memtime s[{B+6}:{B+7}]")
        a.I(f"s_lshl_b32 s{B+8}, s2, 3")
        a.I(f"s_add_u32 s{B+8}, s{B+8}, s{wave_sgpr}")
        a.I(f"s_lshl_b32 s{B+8}, s{B+8}, 5")
        a.I(f"s_add_u32 s{B+8}, s{B+8}, {STAMP_OFF + kidx*0x40000}")
        a.I(f"s_getreg_b32 s{B+9}, hwreg(HW_REG_XCC_ID)")
        a.I("s_waitcnt lgkmcnt(0)")
        a.I(f"v_mov_b32 v0, s{B+8}")
        for k in range(8):
            a.I(f"v_mov_b32 v{2+k}, s{B+k}")
        a.I(f"v_mov_b32 v5, s{B+9}")
        a.I(f"global_store_dwordx4 v0, v[2:5], s[{ws_lo}:{ws_lo+1}]")
        a.I(f"global_store_dwordx4 v0, v[6:9], s[{ws_lo}:{ws_lo+1}] offset:16")

def gate_stamps_out(a, cfg, n, base_sgpr, ws_lo, wave_sgpr, off, B=88):
    a.I(f"s_lshl_b32 s{B+8}, s2, 3")
    a.I(f"s_add_u32 s{B+8}, s{B+8}, s{wave_sgpr}")
    a.I(f"s_lshl_b32 s{B+8}, s{B+8}, 6")
    a.I(f"s_add_u32 s{B+8}, s{B+8}, {off}")
    a.I(f"v_mov_b32 v0, s{B+8}")
    for c in range(n):
        a.I(f"s_sub_u32 s{B+9}, s{base_sgpr+2*c}, s{B+2}")
        a.I(f"v_mov_b32 v2, s{B+9}")
        a.I(f"global_store_dword v0, v2, s[{ws_lo}:{ws_lo+1}] offset:{4*c}")
    a.I(f"s_sub_u32 s{B+9}, s{B+6}, s{B+2}")
    a.I(f"v_mov_b32 v2, s{B+9}")
    a.I(f"global_store_dword v0, v2, s[{ws_lo}:{ws_lo+1}] offset:{4*n}")

def srd(a, d, base, nbytes):
    a.I(f"s_mov_b32 s{d}, s{base}")
    a.I(f"s_and_b32 s{d+1}, s{base+1}, 0xffff")
    a.I(f"s_mov_b32 s{d+2}, {nbytes}")
    a.I(f"s_mov_b32 s{d+3}, 0x00020000")

def rolling(a, items, depth, slots):
    n = len(items)
    issued = 0
    nreads = []
    for k in range(n):
        while issued < min(n, k + depth):
            it = items[issued]
            if it.get("gate"):
                for g in it["gate"]:
                    a.I(g)
            rd = it["reads"](slots[issued % len(slots)])
            for r in rd:
                a.I(r)
            nreads.append(len(rd))
            issued += 1
        cnt = sum(nreads[k + 1:issued])
        assert cnt <= 15
        a.I(f"s_waitcnt lgkmcnt({cnt})")
        for m in items[k]["mfma"](slots[k % len(slots)]):
            a.I(m)
        for m in items[k].get("post", []):
            a.I(m)

def merge(comp, loads, policy):
    if not loads:
        return list(comp)
    if policy == 0:
        return [x for g in loads for x in g] + list(comp)
    if policy == 1:
        return list(comp) + [x for g in loads for x in g]
    n = len(comp); m = len(loads)
    out = []
    pos = [(k * n) // m for k in range(m)] if policy == 2 else [((k + 1) * n) // m for k in range(m)]
    li = 0
    for i in range(n + 1):
        while li < m and pos[li] == i:
            out.extend(loads[li]); li += 1
        if i < n:
            out.append(comp[i])
    return out

class LdsQ:
    def __init__(self, out):
        self.out = out; self.q = []
    def issue(self, instr, tag):
        if len(self.q) >= 15:
            self.wait_n(14)
        self.out.append(instr); self.q.append(tag)
    def wait_n(self, n):
        self.out.append(f"s_waitcnt lgkmcnt({n})")
        self.q = self.q[len(self.q) - n:] if n else []
    def need(self, tag):
        idx = [i for i, t in enumerate(self.q) if t == tag]
        if idx:
            self.wait_n(len(self.q) - 1 - idx[-1])

FL = ["", " sc1", " nt", " sc0 sc1", " sc0"]

def gen_k1(a, cfg):
    K = "quip_s1_kernel"
    mp = cfg.get("map", 1)
    a.lines.append(f".globl {K}\n.p2align 8\n.type {K},@function")
    a.L(K)
    a.I("s_cmp_ge_u32 s2, 256")
    a.I("s_cbranch_scc1 L_k1_exit")
    stamp_begin(a, cfg, 88)
    a.I("s_load_dwordx8 s[4:11], s[0:1], 0")
    a.I("s_load_dwordx4 s[12:15], s[0:1], 32")
    a.I("s_load_dwordx2 s[16:17], s[0:1], 64")
    a.I("s_lshr_b32 s21, s2, 3")
    a.I("s_and_b32 s20, s2, 7")
    a.I("v_and_b32 v1, 63, v0")
    a.I("v_lshrrev_b32 v2, 6, v0")
    a.I("v_and_b32 v3, 15, v1")
    a.I("v_readfirstlane_b32 s24, v2")
    a.I("v_lshrrev_b32 v2, 4, v1")
    if mp:
        a.I("s_lshr_b32 s22, s21, 3")
        a.I(f"s_add_u32 s23, s21, {cfg.get('c8rot', 0)}")
        a.I("s_and_b32 s23, s23, 7")
        a.I("s_cmp_ge_u32 s20, 6")
    else:
        a.I("s_lshr_b32 s22, s20, 1")
        a.I("s_and_b32 s23, s20, 1")
        a.I("s_cmp_ge_u32 s21, 24")
    a.I("s_cbranch_scc1 L_k1_roleA")
    gen_k1_b(a, cfg)
    a.L("L_k1_roleA")
    gen_k1_a(a, cfg)
    a.L("L_k1_exit")
    a.I("s_endpgm")

def lagged(a, cfg, grans, N, stampf):
    flat = []; ends = []
    for g in grans:
        flat += g; ends.append(len(flat))
    nb = 0
    Nf = N if callable(N) else (lambda g: N)
    for k in range(len(flat) + 1):
        while nb < len(grans) and (k == len(flat) or k >= ends[nb] + Nf(nb)):
            a.I(f"s_waitcnt vmcnt({k - ends[nb]})")
            a.I("s_barrier")
            for x in stampf(nb): a.I(x)
            nb += 1
        if k < len(flat):
            for x in flat[k]: a.I(x)
            if cfg.get("probe") and k in (0, 4, 7, 15, 23, 31):
                n = (0, 4, 7, 15, 23, 31).index(k)
                a.I("s_waitcnt vmcnt(0)")
                a.I(f"s_memtime s[{66+2*n}:{67+2*n}]")

def early(a, cfg, grans, R, stampf):
    n = len(grans)
    for g in range(min(R - 1, n)):
        for grp in grans[g]:
            for x in grp: a.I(x)
    for g in range(n):
        cnt = sum(len(grans[k]) for k in range(g + 1, min(n, g + R - 1)))
        a.I(f"s_waitcnt vmcnt({cnt})")
        a.I("s_barrier")
        for x in stampf(g): a.I(x)
        if g + R - 1 < n:
            for grp in grans[g + R - 1]:
                for x in grp: a.I(x)

def st2(cfg, k, base=64):
    if cfg.get("stamp2") and k < 12:
        return [f"s_memtime s[{base+2*k}:{base+2*k+1}]"]
    return []

def fin(a, cfg, n, ws=19):
    stamp_end(a, cfg, 0, 16, ws, 88)
    if cfg.get("stamp2"):
        for k in range(n, 12):
            a.I(f"s_mov_b32 s{64+2*k}, s90")
        gate_stamps_out(a, cfg, 12, 64, 16, ws, STAMP_OFF + 0x100000)
    a.I("s_endpgm")

def gen_k1_a(a, cfg):
    nt_x = " nt" if cfg.get("nt_x") else ""
    nt_u = " nt" if cfg.get("nt_u") else ""
    stf = FL[cfg.get("sta", 0)]
    mp = cfg.get("map", 1)
    SL = 43008
    a.C("role A: xr = x @ U, tile 256(m) x 80(e); waves 0-3 compute (64 x 80), wave 4 loads")
    if cfg.get("a_off"):
        a.I("s_endpgm")
    if mp:
        a.I("s_mov_b32 s25, s23")
        a.I("s_sub_u32 s20, s20, 6")
        a.I("s_lshl_b32 s20, s20, 2")
        a.I("s_add_u32 s20, s20, s22")
    else:
        a.I("s_sub_u32 s25, s21, 24")
        a.I("s_mov_b32 s22, 0")
    a.I("s_and_b32 s26, s25, 1")
    a.I("s_cmp_gt_u32 s24, 5")
    a.I("s_cbranch_scc1 L_k1_exit")
    a.I("s_sub_u32 s19, s24, 1")
    a.I("s_cmp_lt_u32 s19, 4")
    a.I("s_cbranch_scc1 L_k1a_comp")
    a.I("s_cmp_eq_u32 s24, 0")
    a.I("s_cselect_b32 s19, 4, 5")
    VX = 10; VU = 14
    a.I("s_movk_i32 s41, 1280")
    a.I("s_lshl_b32 s42, s20, 8")
    a.I("v_lshrrev_b32 v7, 3, v1")
    a.I("v_add_u32 v6, s42, v7")
    a.I(f"v_mul_lo_u32 v{VX}, v6, s41")
    a.I("v_and_b32 v7, 6, v7")
    a.I("v_and_b32 v6, 7, v1")
    a.I("v_xor_b32 v6, v6, v7")
    a.I(f"v_lshl_add_u32 v{VX}, v6, 4, v{VX}")
    for b in range(1, 4):
        a.I(f"v_add_u32 v{VX+b}, {b*(10240-1024)}, v{VX}")
    a.I("s_mul_i32 s46, s25, 160")
    for n in range(5):
        a.I(f"v_add_u32 v6, {64*n}, v1")
        a.I(f"v_mul_u32_u24 v7, 205, v6")
        a.I(f"v_lshrrev_b32 v7, 11, v7")
        a.I(f"v_mul_u32_u24 v8, 10, v7")
        a.I(f"v_sub_u32 v8, v6, v8")
        a.I(f"v_lshrrev_b32 v6, 1, v7")
        a.I(f"v_xor_b32 v6, v6, v7")
        a.I(f"v_and_b32 v6, 4, v6")
        a.I(f"v_mul_u32_u24 v6, 3, v6")
        a.I(f"v_xor_b32 v7, v7, v6")
        a.I(f"v_mul_u32_u24 v7, 1280, v7")
        a.I(f"v_lshl_add_u32 v8, s26, 1, v8")
        a.I(f"v_subrev_u32 v6, 10, v8")
        a.I(f"v_min_u32 v8, v8, v6")
        a.I(f"v_lshl_add_u32 v7, v8, 4, v7")
        a.I(f"v_add_u32 v{VU+n}, s46, v7")
        a.I(f"v_add_u32 v{VU+5+n}, {40960 - ((5+n)%4)*1024}, v{VU+n}")
        if n % 4:
            a.I(f"v_subrev_u32 v{VU+n}, {(n%4)*1024}, v{VU+n}")
    for gam in range(8):
        a.I(f"s_add_u32 s43, s25, {gam}")
        a.I(f"s_and_b32 s43, s43, 7")
        a.I(f"s_mul_i32 s{56+gam}, s43, 40960")
    rot = cfg.get("a_rot", 0)
    if rot:
        a.I(f"s_mul_i32 s44, s22, {rot-1}")
        a.I("s_add_u32 s44, s44, s25")
        a.I("s_cmp_ge_u32 s44, 10")
        a.I("s_cselect_b32 s45, 10, 0")
        a.I("s_sub_u32 s44, s44, s45")
    else:
        a.I("s_mov_b32 s44, 0")
    a.I("s_waitcnt lgkmcnt(0)")
    srd(a, 28, 4, 2621440)
    srd(a, 32, 12, 819200)
    def stage(P, lead):
        base = (P % 3) * SL
        g = []
        pre = ["s_lshl_b32 s45, s44, 7", "s_mul_i32 s46, s44, 81920"]
        for b in (range(4) if lead else range(4, 32)):
            ld = f"buffer_load_dwordx4 v{VX+b%4}, s[28:31], s54 offen offset:{(b%4)*1024}{nt_x} lds"
            if b % 4 == 0:
                g.append([f"s_mov_b32 m0, {base + b*1024}", f"s_add_u32 s54, s45, s{56+b//4}", ld])
            else:
                g.append([ld])
        for n in (range(10) if lead else []):
            ld = f"buffer_load_dwordx4 v{VU+n}, s[32:35], s46 offen offset:{(n%4)*1024}{nt_u} lds"
            if n % 4 == 0:
                g.append([f"s_mov_b32 m0, {base + 32768 + n*1024}", "s_nop 0", ld])
            else:
                g.append([ld])
        g[0] = pre + g[0]
        g[-1] = g[-1] + ["s_add_u32 s44, s44, 1", "s_cmp_eq_u32 s44, 10", "s_cselect_b32 s44, 0, s44"]
        return g
    a.I("s_cmp_eq_u32 s24, 5")
    a.I("s_cbranch_scc1 L_k1a_lead")
    lagged(a, cfg, [stage(P, 0) for P in range(10)], cfg.get("a_lag", 28), lambda g: st2(cfg, g))
    fin(a, cfg, 10)
    a.L("L_k1a_lead")
    early(a, cfg, [stage(P, 1) for P in range(10)], 3, lambda g: st2(cfg, g))
    fin(a, cfg, 10)
    a.L("L_k1a_comp")
    a.I("s_mov_b32 s24, s19")
    a.I("s_lshl_b32 s40, s20, 4")
    VXR = 10; VT = 14; VST = 16
    a.I("s_lshl_b32 s45, s24, 13")
    a.I("v_and_b32 v6, 6, v3")
    a.I("v_xor_b32 v6, v6, v2")
    a.I("v_lshl_add_u32 v6, v3, 3, v6")
    a.I(f"v_lshl_add_u32 v{VXR}, v6, 4, s45")
    a.I(f"v_xor_b32 v{VXR+1}, 64, v{VXR}")
    a.I(f"v_add_u32 v{VXR+2}, {2*SL}, v{VXR}")
    a.I(f"v_add_u32 v{VXR+3}, {2*SL}, v{VXR+1}")
    a.I("v_lshrrev_b32 v6, 1, v2")
    a.I("v_lshlrev_b32 v6, 4, v6")
    a.I("v_and_b32 v7, 1, v2")
    a.I("v_lshl_add_u32 v6, v7, 2, v6")
    a.I("v_lshrrev_b32 v7, 2, v3")
    a.I("v_add_u32 v6, v6, v7")
    a.I("v_mul_u32_u24 v6, 160, v6")
    a.I("v_and_b32 v7, 3, v3")
    a.I(f"v_lshl_add_u32 v{VT}, v7, 3, v6")
    a.I(f"v_add_u32 v{VT}, 32768, v{VT}")
    a.I(f"v_add_u32 v{VT+1}, {2*SL}, v{VT}")
    a.I("s_mul_i32 s42, s25, 5")
    a.I("s_add_u32 s42, s42, s26")
    a.I("s_lshr_b32 s42, s42, 1")
    a.I("s_mul_i32 s43, s40, 20")
    a.I("s_add_u32 s42, s42, s43")
    a.I("s_lshl_b32 s42, s42, 10")
    if XR_OFF:
        a.I(f"s_add_u32 s42, s42, {XR_OFF}")
    a.I("s_cmp_eq_u32 s26, 0")
    a.I("s_cselect_b32 s43, 3064, 0")
    a.I("s_add_u32 s43, s43, s42")
    a.I("s_sub_u32 s43, s43, 1016")
    a.I(f"v_lshl_add_u32 v{VST}, v1, 4, s42")
    a.I(f"v_lshl_add_u32 v{VST+1}, v1, 4, s43")
    a.I("s_lshl_b32 s41, s24, 1")
    a.I("s_add_u32 s41, s41, s25")
    a.I("s_and_b32 s48, s41, 7")
    a.I("s_mul_i32 s48, s48, 40960")
    a.I("s_add_u32 s49, s48, 20480")
    a.I("s_add_u32 s41, s41, 1")
    a.I("s_and_b32 s50, s41, 7")
    a.I("s_mul_i32 s50, s50, 40960")
    a.I("s_add_u32 s51, s50, 20480")
    a.I("s_waitcnt lgkmcnt(0)")
    srd(a, 36, 16, WS_BYTES)
    ACC = 24; RING = 104; XF = 136
    out = []; L = LdsQ(out)
    DEPTH = cfg.get("a_depth", 4)
    items = [(p, t) for p in range(20) for t in range(5)]
    def issue_item(k):
        p, t = items[k]
        P = p // 2; sl = P % 3
        so = (sl % 2) * SL
        if t == 0:
            if p % 2 == 0:
                L.wait_n(0) if L.q else None
                out.append("s_barrier")
                out.extend(st2(cfg, P))
            for u in range(4):
                L.issue(f"ds_read_b128 {vr(XF + 16*(p&1) + 4*u)}, v{VXR + 2*(sl//2) + (p&1)} offset:{so + u*2048}", ("x", p))
        reg = RING + 4 * (k % 8)
        off = so + (p & 1) * 5120 + t * 32
        L.issue(f"ds_read_b64_tr_b16 {vr(reg,2)}, v{VT + sl//2} offset:{off}", ("u", k))
        L.issue(f"ds_read_b64_tr_b16 {vr(reg+2,2)}, v{VT + sl//2} offset:{off+1280}", ("u", k))
    issued = 0
    for k in range(100):
        while issued < min(100, k + DEPTH):
            issue_item(issued); issued += 1
        p, t = items[k]
        L.need(("u", k))
        reg = RING + 4 * (k % 8)
        for u in range(4):
            acc = ACC + 4 * (5 * u + t)
            c = "0" if p == 0 else vr(acc)
            out.append(f"v_mfma_f32_16x16x32_bf16 {vr(acc)}, {vr(reg)}, {vr(XF + 16*(p&1) + 4*u)}, {c}")
    for x in out:
        a.I(x)
    a.I("s_nop 7")
    k = 0
    for u in range(4):
        so = ["s48", "s49", "s50", "s51"][u]
        for s in range(2):
            o = RING + 4 * k; k += 1
            a0 = ACC + 4 * (5 * u + 2 * s); a1 = a0 + 4
            a.I(f"v_cvt_pk_bf16_f32 v{o}, v{a0}, v{a0+1}")
            a.I(f"v_cvt_pk_bf16_f32 v{o+1}, v{a0+2}, v{a0+3}")
            a.I(f"v_cvt_pk_bf16_f32 v{o+2}, v{a1}, v{a1+1}")
            a.I(f"v_cvt_pk_bf16_f32 v{o+3}, v{a1+2}, v{a1+3}")
            a.I(f"buffer_store_dwordx4 {vr(o)}, v{VST}, s[36:39], {so} offen offset:{s*1024}{stf}")
        o = RING + 4 * k; k += 1
        a0 = ACC + 4 * (5 * u + 4)
        a.I(f"v_cvt_pk_bf16_f32 v{o}, v{a0}, v{a0+1}")
        a.I(f"v_cvt_pk_bf16_f32 v{o+1}, v{a0+2}, v{a0+3}")
        a.I(f"buffer_store_dwordx2 {vr(o,2)}, v{VST+1}, s[36:39], {so} offen{stf}")
    fin(a, cfg, 10)

def make_perm(cfg):
    lf = cfg.get("lf", 2)
    if lf == 0:
        return 4, [(n // 4, n % 4) for n in range(48)]
    if lf == 1:
        def sched(s, w):
            if w == 0:
                if s == 0: return (0, 0)
                if s <= 8: return (s + 3, 0)
                return (11, s - 8)
            if s == 0: return (w, 0)
            return (s - 1, w)
        return 4, [sched(n // 4, n % 4) for n in range(48)]
    if lf == 2:
        seq = [(0, 0), (1, 0), (0, 1), (1, 1)]
        for j in range(6):
            nx = j + 2
            per = []
            if nx < 6: per.append((nx, 0))
            per += [(j, 2), (j, 3), (j, 4)]
            if nx < 6: per.append((nx, 1))
            per += [(j, 5), (j, 6), (j, 7)]
            seq += per
        assert len(seq) == 48 and len(set(seq)) == 48
        return 8, seq
    if lf == 3:
        return 8, [(n // 8, n % 8) for n in range(48)]
    if lf == 4:
        return 4, [(n // 4, n % 4) for n in range(48)]
    if lf == 6:
        seq = [(0, 0), (0, 1), (0, 2), (0, 3), (1, 0), (0, 4), (0, 5), (0, 6)]
        for j in range(1, 6):
            seq += [(j, 1), (j - 1, 7), (j, 2), (j, 4)]
            seq += [(j + 1, 0) if j < 5 else (5, 7), (j, 6), (j, 3), (j, 5)]
        assert len(seq) == 48 and len(set(seq)) == 48
        return 8, seq
    if lf == 7:
        seq = [(0, 0), (0, 1), (0, 2), (0, 3)]
        for j in range(5):
            seq += [(j + 1, 0), (j, 4), (j, 5), (j + 1, 1)]
            seq += [(j + 1, 3), (j, 6), (j, 7), (j + 1, 2)]
        seq += [(5, 4), (5, 5), (5, 6), (5, 7)]
        assert len(seq) == 48 and len(set(seq)) == 48
        return 8, seq
    if lf == 8:
        seq = [(0,0),(0,1),(0,2),(0,3),
               (2,0),(1,1),(1,2),(1,0),
               (3,0),(1,3),(2,1),(2,2),
               (5,0),(2,3),(3,1),(4,0),
               (6,0),(3,2),(3,3),(4,1),
               (8,0),(4,2),(4,3),(7,0),
               (9,0),(5,1),(5,2),(5,3),
               (11,0),(6,1),(6,2),(10,0),
               (6,3)] + [(j, d) for j in range(7, 12) for d in (1, 2, 3)]
        assert len(seq) == 48 and len(set(seq)) == 48
        return 4, seq
    if lf == 9:
        seq = [(0,0),(0,1),(0,2),(0,3),
               (1,0),(1,1),(1,2),(1,3),
               (3,0),(2,1),(2,2),(2,0),
               (4,0),(2,3),(3,1),(3,2),
               (6,0),(3,3),(4,1),(5,0),
               (7,0),(4,2),(4,3),(5,1),
               (9,0),(5,2),(5,3),(8,0),
               (10,0),(6,1),(6,2),(6,3),
               (11,0),(7,1),(7,2),(7,3)] + [(j, d) for j in range(8, 12) for d in (1, 2, 3)]
        assert len(seq) == 48 and len(set(seq)) == 48
        return 4, seq
    if lf == 5:
        seq = [(0, 0), (0, 2), (1, 0), (1, 2), (2, 0), (0, 1), (0, 3), (1, 1)]
        for s in range(2, 11):
            seq += [(s + 1, 0), (s - 1, 3), (s, 1), (s, 2)]
        seq += [(10, 3), (11, 1), (11, 2), (11, 3)]
        assert len(seq) == 48 and len(set(seq)) == 48
        return 4, seq

def gen_k1_b(a, cfg):
    nt_q = " nt" if cfg.get("nt_q") else ""
    nt_v = " nt" if cfg.get("nt_v") else ""
    stf = FL[cfg.get("stb", 0)]
    mp = cfg.get("map", 1)
    GA = [0, 57344]; GB = [32768, 90112]; TBL = 114688
    lf = cfg.get("lf", 2)
    NC, perm = make_perm(cfg)
    xrot = cfg.get("xrot", 0)
    a.C("role B: T = dequant(qw) @ V, tile 80(d) x 64(g); waves 0-3 compute (k split), wave 4 loads")
    if mp:
        a.I("s_and_b32 s25, s20, 1")
        a.I("s_lshl_b32 s25, s25, 2")
        a.I("s_add_u32 s25, s25, s22")
        a.I("s_lshr_b32 s26, s20, 1")
        a.I("s_lshl_b32 s26, s26, 3")
        a.I("s_add_u32 s26, s26, s23")
        if NC == 8:
            a.I("s_lshl_b32 s42, s22, 1")
            a.I("s_add_u32 s42, s42, s23")
        else:
            if cfg.get("cls", 0):
                a.I("s_lshr_b32 s42, s23, 1")
                a.I("s_add_u32 s42, s42, s22")
            else:
                a.I("s_add_u32 s42, s22, s23")
    else:
        a.I("s_mul_i32 s26, s21, 43")
        a.I("s_lshr_b32 s26, s26, 8")
        a.I("s_mul_i32 s27, s26, 6")
        a.I("s_sub_u32 s27, s21, s27")
        a.I("s_add_u32 s42, s26, s27")
        a.I("s_and_b32 s25, s22, 1")
        a.I("s_lshl_b32 s25, s25, 2")
        a.I("s_add_u32 s25, s25, s26")
        a.I("s_lshl_b32 s26, s23, 1")
        a.I("s_lshr_b32 s40, s22, 1")
        a.I("s_add_u32 s26, s26, s40")
        a.I("s_mul_i32 s26, s26, 6")
        a.I("s_add_u32 s26, s26, s27")
    if not lf:
        a.I("s_mov_b32 s42, 0")
    a.I("s_and_b32 s27, s25, 1")
    a.I("s_cmp_eq_u32 s24, 0")
    a.I("s_cbranch_scc1 L_k1b_ld")
    VR = 10; VB = 14; VST = 18; VTL = 21; VT = 22
    VP = 4
    SZ = 24
    AF = 56
    BF = 64
    RAW = 80
    ACC = 104
    a.I("s_sub_u32 s18, s24, 1")
    a.I("s_and_b32 s24, s18, 3")
    a.I("v_subrev_u32 v0, 64, v0")
    a.I("s_mul_i32 s40, s25, 5")
    a.I("s_lshr_b32 s40, s40, 1")
    a.I("s_mul_i32 s43, s40, 3072")
    a.I(f"v_lshl_add_u32 v4, v0, 4, s43")
    a.I("s_movk_i32 s44, 8192")
    a.I("s_mov_b32 s58, 61440")
    a.I("s_mov_b32 s59, 0x00020000")
    a.I("s_mov_b32 s62, 61440")
    a.I("s_mov_b32 s63, 0x00020000")
    a.I("s_mul_i32 s45, s18, 43")
    a.I("s_lshr_b32 s45, s45, 7")
    a.I("s_mul_i32 s46, s45, 3")
    a.I("s_sub_u32 s46, s18, s46")
    a.I("s_sub_u32 s47, 2, s45")
    a.I("s_cmp_eq_u32 s27, 0")
    a.I("s_cselect_b32 s45, s45, s47")
    a.I(f"s_cselect_b32 s47, {2*12352}, 0")
    a.I("s_mul_i32 s45, s45, 12352")
    a.I("s_lshl_b32 s46, s46, 10")
    a.I("s_add_u32 s45, s45, s46")
    a.I(f"s_add_u32 s45, s45, {TBL}")
    a.I(f"v_lshl_add_u32 v{SZ}, v1, 4, s45")
    a.I(f"s_add_u32 s47, s47, {TBL + 2048}")
    a.I(f"v_lshl_add_u32 v{SZ+1}, v1, 4, s47")
    a.I("v_and_b32 v6, 6, v3")
    a.I("v_xor_b32 v6, v6, v2")
    a.I("v_lshl_add_u32 v6, v3, 3, v6")
    a.I("s_lshl_b32 s45, s24, 13")
    a.I("s_add_u32 s46, s45, 4096")
    a.I("s_mul_i32 s47, s24, 6144")
    a.I(f"s_add_u32 s47, s47, {GB[0]}")
    a.I("s_cmp_ge_u32 s18, 4")
    a.I("s_cselect_b32 s46, s47, s46")
    a.I(f"v_lshl_add_u32 v{VR}, v6, 4, s46")
    a.I(f"v_xor_b32 v{VR+1}, 64, v{VR}")
    a.I("v_and_b32 v8, 1, v2")
    a.I("v_lshrrev_b32 v6, 2, v3")
    a.I("v_lshl_add_u32 v8, v8, 2, v6")
    a.I("v_lshrrev_b32 v6, 1, v8")
    a.I("v_xor_b32 v6, s24, v6")
    a.I("v_lshl_add_u32 v6, v8, 2, v6")
    a.I(f"v_lshlrev_b32 v{VB}, 5, v6")
    a.I("v_and_b32 v6, 3, v3")
    a.I(f"v_lshl_add_u32 v{VB}, v6, 3, v{VB}")
    a.I("v_lshrrev_b32 v6, 1, v2")
    a.I(f"v_lshl_add_u32 v{VB}, v6, 10, v{VB}")
    a.I(f"v_add_u32 v{VB}, s45, v{VB}")
    a.I("s_waitcnt lgkmcnt(0)")
    a.I("s_mov_b32 s56, s8")
    a.I("s_and_b32 s57, s9, 0xffff")
    a.I("s_mov_b32 s60, s10")
    a.I("s_and_b32 s61, s11, 0xffff")
    a.I(f"buffer_load_dwordx4 {vr(RAW)}, v4, s[56:59], 0 offen")
    a.I(f"buffer_load_dwordx4 {vr(RAW+4)}, v4, s[60:63], 0 offen")
    a.I("s_cmp_lg_u32 s18, 0")
    a.I("s_cbranch_scc1 L_k1b_comp")
    a.I(f"buffer_load_dwordx4 {vr(RAW+8)}, v4, s[56:59], s44 offen")
    a.I(f"buffer_load_dwordx4 {vr(RAW+12)}, v4, s[60:63], s44 offen")
    a.I("s_branch L_k1b_comp")
    a.L("L_k1b_ld")
    a.I("s_mov_b32 s19, 4")
    VQ = 10; VV = 20
    a.I("v_lshrrev_b32 v4, 3, v1")
    a.I(f"v_mul_u32_u24 v{VV}, 3072, v4")
    a.I("v_bfe_u32 v6, v1, 1, 2")
    a.I("v_xor_b32 v6, v6, v2")
    a.I(f"v_lshl_add_u32 v{VV}, v6, 5, v{VV}")
    a.I("v_and_b32 v6, 1, v1")
    a.I(f"v_lshl_add_u32 v{VV}, v6, 4, v{VV}")
    a.I("s_lshl_b32 s43, s26, 7")
    a.I(f"v_add_u32 v{VV}, s43, v{VV}")
    for b in range(1, 4):
        a.I(f"v_add_u32 v{VV+b}, {b*(24576-1024)}, v{VV}")
    a.I(f"v_mul_u32_u24 v5, 6144, v4")
    a.I("v_and_b32 v6, 6, v4")
    a.I("v_and_b32 v7, 7, v1")
    a.I("v_xor_b32 v6, v6, v7")
    a.I(f"v_lshl_add_u32 v5, v6, 4, v5")
    a.I("s_mul_i32 s43, s25, 491520")
    a.I("s_cmp_eq_u32 s27, 0")
    a.I(f"s_cselect_b32 s60, 0, {3*98304}")
    a.I(f"s_cselect_b32 s61, 98304, 0")
    a.I(f"s_cselect_b32 s62, {4*98304}, 0")
    a.I(f"s_add_u32 s61, s61, 98304")
    for r in range(3):
        a.I(f"s_add_u32 s{60+r}, s{60+r}, s43")
        a.I(f"v_add_u32 v{VQ+4*r}, s{60+r}, v5")
        for u in range(1, 4 if r < 2 else 2):
            a.I(f"v_add_u32 v{VQ+4*r+u}, {u*(49152-1024)}, v{VQ+4*r}")
    NJ = 48 // NC
    for d in range(NC):
        a.I(f"s_add_u32 s43, s42, {d}")
        a.I(f"s_and_b32 s43, s43, {NC-1}")
        a.I(f"s_lshl_b32 s{44+d}, s43, 7")
    a.I(f"s_mul_i32 s43, s20, {xrot*128}")
    for j in range(NJ):
        a.I(f"s_add_u32 s{52+j}, s43, {j*NC*128}")
        if xrot:
            a.I(f"s_cmp_ge_u32 s{52+j}, {48*128}")
            a.I(f"s_cselect_b32 s40, {48*128}, 0")
            a.I(f"s_sub_u32 s{52+j}, s{52+j}, s40")
    a.I("s_waitcnt lgkmcnt(0)")
    if cfg.get("stamp2"):
        a.I("s_memtime s[86:87]")
    srd(a, 32, 14, 4718592)
    srd(a, 28, 6, 3932160)
    def gran(g, ws):
        s = g // 2; out = []
        for w in ws:
            j, d = perm[4 * s + w]
            kq = f"s_add_u32 s42, s{44+d}, s{52+j}"
            if g % 2 == 0:
                base = GA[s & 1] + w * 8192
                q = [f"buffer_load_dwordx4 v{VQ+u}, s[28:31], s42 offen offset:{u*1024}{nt_q} lds" for u in range(4)]
                v = [f"buffer_load_dwordx4 v{VV+b}, s[32:35], s41 offen offset:{b*1024}{nt_v} lds" for b in range(4)]
                out.append([f"s_mov_b32 m0, {base + 4096}", kq, q[0]])
                out += [[q[1]], [q[2]], [q[3]]]
                out.append([f"s_mov_b32 m0, {base}", "s_mul_i32 s41, s42, 768", v[0]])
                out += [[v[1]], [v[2]], [v[3]]]
            else:
                base = GB[s & 1] + w * 6144
                q = [f"buffer_load_dwordx4 v{VQ+4+u}, s[28:31], s42 offen offset:{(u%4)*1024}{nt_q} lds" for u in range(6)]
                out.append([f"s_mov_b32 m0, {base}", kq, q[0]])
                out += [[q[1]], [q[2]], [q[3]]]
                out.append([f"s_mov_b32 m0, {base + 4096}", "s_nop 0", q[4]])
                out += [[q[5]]]
        if cfg.get("b_noload"):
            out = [[x for x in grp if not x.startswith("buffer")] for grp in out]
        return out
    stf_ = lambda g: st2(cfg, g // 2) if g % 2 == 0 and g < 22 else []
    blag = cfg.get("b_lag", 40); blag0 = cfg.get("b_lag0", 50); bn0 = cfg.get("b_n0", 4)
    od = lambda g: ([1, 2, 3, 0] if g % 2 == 0 else [0, 1, 2, 3])
    if lf in (8, 9):
        od = lambda g: [1, 2, 3, 0] if g % 2 == 0 else [0, 3, 1, 2]
    if lf == 7:
        od = lambda g: [1, 2, 3, 0] if (g % 2 == 0 or (g // 2) % 2 == 0) else [0, 3, 1, 2]
    def last():
        s = 11; g22 = []; g22b = []; g23 = []
        for w in range(4):
            j, d = perm[4 * s + w]
            kq = f"s_add_u32 s42, s{44+d}, s{52+j}"
            bA = GA[1] + w * 8192; bB = GB[1] + w * 6144
            q = [f"buffer_load_dwordx4 v{VQ+u}, s[28:31], s42 offen offset:{(u%4)*1024}{nt_q} lds" for u in range(10)]
            v = [f"buffer_load_dwordx4 v{VV+b}, s[32:35], s41 offen offset:{b*1024}{nt_v} lds" for b in range(4)]
            g22 += [[f"s_mov_b32 m0, {bA + 4096}", kq, q[0]], [q[1]], [f"s_mov_b32 m0, {bA}", "s_mul_i32 s41, s42, 768", v[0]], [v[1]], [v[2]], [v[3]]]
            g22b += [[f"s_mov_b32 m0, {bB}", kq, q[4]], [q[5]], [q[6]], [q[7]]]
            g23 += [[f"s_mov_b32 m0, {bA + 4096}", kq, q[2]], [q[3]], [f"s_mov_b32 m0, {bB + 4096}", "s_nop 0", q[8]], [q[9]]]
        r = [g22 + g22b, g23]
        if cfg.get("b_noload"):
            r = [[[x for x in grp if not x.startswith("buffer")] for grp in g] for g in r]
        return r
    lagged(a, cfg, [gran(g, od(g)) for g in range(22)] + last(), lambda g: blag0 if g < bn0 else (min(blag, 48) if g == 20 else blag), stf_)
    fin(a, cfg, 12)
    a.L("L_k1b_comp")
    if cfg.get("stamp"):
        a.I("s_min_u32 s19, s24, 2")
        a.I("s_add_u32 s19, s19, 5")
        a.I("s_cmp_ge_u32 s18, 4")
        a.I("s_cselect_b32 s19, s24, s19")
    for t in range(1, 4):
        a.I(f"v_xor_b32 v{VB+t}, {32*t}, v{VB}")
    srd(a, 36, 16, WS_BYTES)
    a.I("s_lshl_b32 s43, s26, 2")
    a.I("s_add_u32 s43, s43, s24")
    a.I("s_mul_i32 s43, s43, 20")
    a.I("s_add_u32 s43, s43, s40")
    a.I("s_lshl_b32 s43, s43, 10")
    a.I(f"s_add_u32 s43, s43, {TT_OFF}")
    a.I("v_lshl_add_u32 v6, v1, 4, s43")
    a.I("s_cmp_eq_u32 s27, 0")
    a.I("s_cselect_b32 s43, 0, 2048")
    a.I(f"v_add_u32 v{VST}, s43, v6")
    a.I(f"v_add_u32 v{VST+1}, 1024, v6")
    a.I("s_cselect_b32 s43, 2048, 8")
    a.I(f"v_add_u32 v{VST+2}, s43, v6")
    a.I(f"v_lshlrev_b32 v8, 4, v1")
    for t in range(4):
        a.I(f"s_xor_b32 s43, s24, {t}")
        a.I(f"s_mul_i32 s43, s43, 15360")
        if t > 1: a.I(f"s_add_u32 s43, s43, {(t-1)*1024}")
        a.I(f"v_add_u32 v{VP+t}, s43, v8")
    a.I(f"v_and_b32 v8, 1, v2")
    a.I(f"v_mul_u32_u24 v8, 6176, v8")
    a.I(f"v_lshrrev_b32 v{VTL}, 1, v2")
    a.I(f"v_lshl_add_u32 v{VTL}, v{VTL}, 4, v8")
    a.I(f"v_add_u32 v{VTL}, {TBL}, v{VTL}")
    a.I("s_lshl_b32 s41, s24, 3")
    a.I(f"s_mul_i32 s40, s20, {xrot}")
    def kappa(s):
        P = sum(((perm[4*s+w][0] << 3) | perm[4*s+w][1]) << (8 * w) for w in range(4))
        o = [f"s_lshr_b32 s43, {P}, s41", f"s_add_u32 s44, s43, s42", f"s_and_b32 s44, s44, {NC-1}",
             f"s_bfe_u32 s43, s43, 0x40003", f"s_mul_i32 s43, s43, {NC}"]
        if xrot:
            o += [f"s_add_u32 s43, s43, s40", f"s_cmp_ge_u32 s43, 48", f"s_cselect_b32 s45, 48, 0", f"s_sub_u32 s43, s43, s45"]
        o += [f"s_add_u32 s44, s44, s43", f"v_lshl_add_u32 v{VT}, s44, 6, v{VTL}"]
        return o
    for x in kappa(0): a.I(x)
    a.I("s_mov_b32 s56, 0x71800000")
    a.I("s_mov_b32 s57, 0x71800000")
    a.I("s_mov_b32 s58, 0x58000000")
    a.I("s_mov_b32 s59, 0x58000000")
    a.I("s_mov_b32 s60, 0xa7000000")
    a.I("s_mov_b32 s61, 0xa7000000")
    def table(src, dst):
        T = BF
        for h in range(2):
            for k in range(2):
                a.I(f"v_lshlrev_b32 v{T+8*h+2*k}, 16, v{src+2*h+k}")
                a.I(f"v_and_b32 v{T+8*h+2*k+1}, 0xffff0000, v{src+2*h+k}")
                a.I(f"v_lshlrev_b32 v{T+8*h+4+2*k}, 16, v{src+4+2*h+k}")
                a.I(f"v_and_b32 v{T+8*h+4+2*k+1}, 0xffff0000, v{src+4+2*h+k}")
            for k in range(2):
                a.I(f"v_pk_mul_f32 {vr(T+8*h+4+2*k,2)}, {vr(T+8*h+4+2*k,2)}, {vr(T+8*h+2*k,2)}")
            for k in range(2):
                a.I(f"v_pk_mul_f32 {vr(T+8*h+2*k,2)}, {vr(T+8*h+2*k,2)}, s[56:57]")
            a.I(f"ds_write_b128 v{dst}, {vr(T+8*h)} offset:{6176*h}")
            for k in range(2):
                a.I(f"v_pk_mul_f32 {vr(T+8*h+4+2*k,2)}, {vr(T+8*h+4+2*k,2)}, s[60:61]")
            a.I(f"ds_write_b128 v{dst}, {vr(T+8*h+4)} offset:{6176*h+3072}")
    if cfg.get("probe2"): a.I("s_memtime s[66:67]")
    a.I("s_waitcnt vmcnt(0)")
    if cfg.get("probe2"): a.I("s_memtime s[68:69]")
    table(RAW, SZ)
    a.I("s_cmp_lg_u32 s18, 0")
    a.I("s_cbranch_scc1 L_k1b_t3")
    table(RAW + 8, SZ + 1)
    a.L("L_k1b_t3")
    if cfg.get("probe2"): a.I("s_memtime s[70:71]")
    a.I("s_cmp_ge_u32 s18, 4")
    a.I("s_cbranch_scc1 L_k1b_x")
    def gen_wave(isx):
        tiles = [2, 3, 4] if isx else [0, 1]
        nt = len(tiles)
        t0 = tiles[0]
        out = []
        def deq(i):
            z = SZ + 16 * ((i - t0) // 2); af = AF + 4 * (i & 1); r = RAW + 8 * (i - t0)
            v = []
            for h in range(2):
                for u in range(2):
                    v.append(f"v_pk_fma_f32 {vr(r+4*h+2*u,2)}, {vr(r+4*h+2*u,2)}, {vr(z+8*h+2*u,2)}, {vr(z+8*h+4+2*u,2)}")
            for k in range(4):
                v.append(f"v_cvt_pk_bf16_f32 v{af+k}, v{r+2*k}, v{r+2*k+1}")
            return v
        def acc(t, i): return ACC + 4 * (t * nt + i - t0)
        def mf(s, i, order=(0, 1, 2, 3)):
            af = AF + 4 * (i & 1)
            return [f"v_mfma_f32_16x16x32_bf16 {vr(acc(t, i))}, {vr(af)}, {vr(BF+4*t)}, {'0' if s == 0 else vr(acc(t, i))}" for t in order]
        def rdraw(s):
            po = GA[s & 1]
            return [f"ds_read_b128 {vr(RAW+8*k+4*h)}, v{VR+h} offset:{po + 2048*k}" for k in range(nt) for h in range(2)]
        def rdv(s):
            po = GA[s & 1]
            return [f"ds_read_b64_tr_b16 {vr(BF+4*t+2*hb,2)}, v{VB+t} offset:{po + 2048*hb}" for t in range(4) for hb in range(2)]
        def rdtab(s):
            rd = []
            for g in ([1, 2] if isx else [0]):
                for h in range(2):
                    for k in range(2):
                        rd.append(f"ds_read_b128 {vr(SZ+16*(g-(1 if isx else 0))+8*h+4*k)}, v{VT} offset:{12352*g + 32*h + 3072*k}")
            return rd
        def pw(i):
            return [f"ds_write_b128 v{VP+t}, {vr(acc(t, i))} offset:{i*3072}" for t in range(1, 4)]
        def prd(i, R):
            return [f"ds_read_b128 {vr(R + 4*(t-1))}, v{VP} offset:{i*3072 + (t-1)*1024}" for t in range(1, 4)]
        def psum(A, R, O):
            v = []
            for u in range(2):
                v.append(f"v_pk_add_f32 {vr(A+2*u,2)}, {vr(A+2*u,2)}, {vr(R+2*u,2)}")
                v.append(f"v_pk_add_f32 {vr(R+4+2*u,2)}, {vr(R+4+2*u,2)}, {vr(R+8+2*u,2)}")
            for u in range(2):
                v.append(f"v_pk_add_f32 {vr(A+2*u,2)}, {vr(A+2*u,2)}, {vr(R+4+2*u,2)}")
            for u in range(2):
                v.append(f"v_pk_mul_f32 {vr(A+2*u,2)}, {vr(A+2*u,2)}, s[58:59]")
            for u in range(2):
                v.append(f"v_cvt_pk_bf16_f32 v{O+u}, v{A+2*u}, v{A+2*u+1}")
            return v
        def ilv(d, m):
            return [d[0], d[1], m[0], d[2], d[3], m[1], d[4], d[5], m[2], d[6], d[7], m[3]]
        def bar(k):
            out.append("s_barrier")
            if cfg.get("probe2") and 2 <= k < 22: return
            out.extend(st2(cfg, k // 2) if k % 2 == (1 if isx else 0) else [])
        LO = (1, 2, 3, 0)
        if cfg.get("probe2"): out.append("s_memtime s[72:73]")
        out.append("s_waitcnt lgkmcnt(0)")
        if isx:
            bar(0)
            out.extend(rdtab(0))
            for s in range(11):
                out.append("s_waitcnt lgkmcnt(4)")
                out.extend(rdv(s))
                out.extend(kappa(s + 1))
                out.append("s_waitcnt lgkmcnt(0)")
                bar(2 * s + 1)
                out.extend(rdraw(s))
                out.append("s_waitcnt lgkmcnt(4)")
                out.extend(deq(2))
                out.append("s_waitcnt lgkmcnt(2)")
                out.extend(ilv(deq(3), mf(s, 2)))
                out.append("s_waitcnt lgkmcnt(0)")
                out.extend(ilv(deq(4), mf(s, 3)))
                if s < 10:
                    bar(2 * s + 2)
                    out.extend(mf(s, 4))
                    out.extend(rdtab(s + 1))
                else:
                    tb = rdtab(11); m = mf(s, 4)
                    out.extend([tb[0], tb[1], m[0], tb[2], tb[3], m[1], tb[4], tb[5], m[2], tb[6], tb[7], m[3]])
                    out.append("s_waitcnt lgkmcnt(0)")
                    bar(22)
            s = 11
            rr = rdraw(s)
            out.extend(rr[:2] + rdv(s) + rr[2:4])
            out.append("s_waitcnt lgkmcnt(10)")
            out.extend(deq(2))
            out.append("s_waitcnt lgkmcnt(0)")
            out.extend(ilv(deq(3), mf(s, 2, LO)))
            bar(23)
            out.extend(rr[4:])
            m = mf(s, 3, LO); w = pw(2)
            out.extend([m[0], m[1], m[2], w[0], m[3], w[1], w[2]])
            out.append("s_waitcnt lgkmcnt(3)")
            out.extend(deq(4))
            m = mf(s, 4, LO); w = pw(3)
            out.extend([w[0], w[1], m[0], w[2], m[1], m[2], m[3]])
            out.append("s_nop 4")
            out.extend(pw(4))
            if cfg.get("probe2"): out.append("s_memtime s[74:75]")
            out.append("s_waitcnt lgkmcnt(0)")
            if cfg.get("probe2"): out.append("s_memtime s[76:77]")
            out.append("s_barrier")
            if cfg.get("probe2"): out.append("s_memtime s[78:79]")
            out.extend(prd(2, SZ) + prd(3, SZ + 12) + prd(4, BF))
            out.append("s_waitcnt lgkmcnt(6)")
            out.extend(psum(acc(0, 2), SZ, RAW))
            out.append("s_waitcnt lgkmcnt(3)")
            out.extend(psum(acc(0, 3), SZ + 12, RAW + 2))
            out.append(f"buffer_store_dwordx4 {vr(RAW)}, v{VST+1}, s[36:39], 0 offen{stf}")
            out.append("s_waitcnt lgkmcnt(0)")
            out.extend(psum(acc(0, 4), BF, RAW + 4))
            out.append(f"buffer_store_dwordx2 {vr(RAW+4,2)}, v{VST+2}, s[36:39], 0 offen{stf}")
            if cfg.get("probe2"): out.append("s_memtime s[80:81]")
        else:
            for s in range(11):
                bar(2 * s)
                if s == 0:
                    out.extend(rdtab(0))
                    out.append("s_waitcnt lgkmcnt(0)")
                rr = rdraw(s); rv = rdv(s)
                out.extend(rr[:2] + rv + rr[2:])
                out.extend(kappa(s + 1))
                out.append("s_waitcnt lgkmcnt(10)")
                out.extend(deq(0))
                out.append("s_waitcnt lgkmcnt(0)")
                out.extend(ilv(deq(1), mf(s, 0)))
                bar(2 * s + 1)
                out.extend(mf(s, 1))
                out.extend(rdtab(s + 1))
                out.append("s_waitcnt lgkmcnt(0)")
            s = 11
            bar(22)
            rr = rdraw(s)
            out.extend(rr[:2] + rdv(s))
            out.append("s_waitcnt lgkmcnt(8)")
            out.extend(deq(0))
            out.append("s_waitcnt lgkmcnt(0)")
            out.append("s_nop 0")
            out.extend(mf(s, 0, LO))
            bar(23)
            out.extend(rr[2:])
            out.append("s_nop 2")
            out.extend(pw(0))
            out.append("s_waitcnt lgkmcnt(3)")
            out.extend(deq(1))
            out.append("s_nop 1")
            out.extend(mf(s, 1, LO))
            out.append("s_nop 4")
            out.extend(pw(1))
            out.append("s_waitcnt lgkmcnt(0)")
            out.append("s_barrier")
            out.extend(prd(0, SZ) + prd(1, SZ + 12))
            out.append("s_waitcnt lgkmcnt(3)")
            out.extend(psum(acc(0, 0), SZ, RAW))
            out.append("s_waitcnt lgkmcnt(0)")
            out.extend(psum(acc(0, 1), SZ + 12, RAW + 2))
            out.append(f"buffer_store_dwordx4 {vr(RAW)}, v{VST}, s[36:39], 0 offen{stf}")
        for x in out:
            if cfg.get("b_nocomp") and (x.startswith("v_") or x.startswith("ds_")): continue
            a.I(x)
        fin(a, cfg, 12, 19)
    gen_wave(False)
    a.L("L_k1b_x")
    gen_wave(True)

def gen_k2(a, cfg):
    K = "quip_s2_kernel"
    a.lines.append(f".globl {K}\n.p2align 8\n.type {K},@function")
    a.L(K)
    a.I("s_cmp_ge_u32 s2, 256")
    a.I("s_cbranch_scc1 L_k2_exit")
    stamp_begin(a, cfg)
    a.I("s_load_dwordx2 s[4:5], s[0:1], 48")
    a.I("s_load_dwordx2 s[6:7], s[0:1], 64")
    a.I("s_and_b32 s20, s2, 7")
    a.I("s_lshr_b32 s21, s2, 3")
    a.I("s_lshr_b32 s22, s20, 1")
    a.I("s_and_b32 s23, s20, 1")
    a.I("s_and_b32 s25, s21, 3")
    a.I("s_lshl_b32 s26, s22, 2")
    a.I("s_add_u32 s25, s25, s26")
    a.I("s_lshr_b32 s26, s21, 2")
    a.I("s_lshl_b32 s27, s23, 3")
    a.I("s_add_u32 s26, s26, s27")
    a.I("v_and_b32 v1, 63, v0")
    a.I("v_lshrrev_b32 v2, 6, v0")
    a.I("s_nop 0")
    a.I("v_readfirstlane_b32 s24, v2")
    a.I("v_lshlrev_b32 v3, 4, v1")
    a.I("s_lshl_b32 s40, s25, 3")
    a.I("s_lshl_b32 s41, s24, 1")
    a.I("s_add_u32 s40, s40, s41")
    a.I("s_mul_i32 s41, s40, 20480")
    if XR_OFF:
        a.I(f"s_add_u32 s41, s41, {XR_OFF}")
    a.I("v_add_u32 v4, s41, v3")
    a.I("v_add_u32 v5, 20480, v4")
    a.I("s_and_b32 s42, s24, 1")
    a.I("s_mul_i32 s42, s42, 60")
    a.I("s_lshr_b32 s43, s24, 1")
    a.I("s_add_u32 s42, s42, s43")
    a.I("s_lshl_b32 s42, s42, 10")
    a.I("v_add_u32 v6, s42, v3")
    a.I("v_add_u32 v11, 20480, v6")
    a.I("v_add_u32 v12, 40960, v6")
    a.I("s_mul_i32 s42, s24, 3072")
    a.I("s_mul_i32 s43, s26, 122880")
    a.I(f"s_add_u32 s43, s43, {TT_OFF}")
    a.I("v_add_u32 v8, 61440, v3")
    a.I("v_and_b32 v9, 15, v1")
    a.I("s_lshl_b32 s41, s40, 4")
    a.I("v_add_u32 v9, s41, v9")
    a.I("s_movk_i32 s41, 3072")
    a.I("v_mul_lo_u32 v9, v9, s41")
    a.I("v_bfe_u32 v10, v1, 4, 1")
    a.I("v_lshl_add_u32 v9, v10, 5, v9")
    a.I("v_lshrrev_b32 v10, 5, v1")
    a.I("v_lshl_add_u32 v9, v10, 4, v9")
    a.I("s_mul_i32 s41, s26, 192")
    a.I("v_add_u32 v9, s41, v9")
    a.I("v_add_u32 v10, 49152, v9")
    for n in range(1, 5):
        a.I(f"s_movk_i32 s{44+n}, {4096*n}")
    a.I("s_waitcnt lgkmcnt(0)")
    srd(a, 28, 6, WS_BYTES)
    srd(a, 32, 4, 6291456)
    ACC = 16; RING = 64; NR = 12
    NCH = 10
    def load_groups(c):
        g = []
        g.append([f"s_add_u32 m0, s42, {c*12288}", "s_nop 0",
                  "buffer_load_dwordx4 v6, s[28:31], s43 offen lds"])
        g.append([f"s_add_u32 m0, s42, {c*12288+1024}", "s_nop 0", "buffer_load_dwordx4 v11, s[28:31], s43 offen lds"])
        g.append([f"s_add_u32 m0, s42, {c*12288+2048}", "s_nop 0", "buffer_load_dwordx4 v12, s[28:31], s43 offen lds", "s_add_u32 s43, s43, 2048"])
        for pp in range(2):
            p = 2 * c + pp
            so = "0" if p < 4 else f"s{44 + p // 4}"
            for u in range(2):
                g.append([f"buffer_load_dwordx4 {vr(8*p+4*u, 4, 'a')}, v{4+u}, s[28:31], {so} offen offset:{(p % 4) * 1024}"])
        return g
    UP = cfg.get("k2_up", 3)
    DEPTH = 8
    for c in range(UP):
        for g in load_groups(c):
            for x in g:
                a.I(x)
    items = []
    for p in range(20):
        for t in range(6):
            it = {}
            def reads(reg, p=p, t=t):
                off = (p * 6 + t) * 1024
                if off >= 61440:
                    return [f"ds_read_b128 {vr(reg)}, v8 offset:{off-61440}"]
                return [f"ds_read_b128 {vr(reg)}, v3 offset:{off}"]
            def mfma(reg, p=p, t=t):
                out = []
                for u in range(2):
                    acc = ACC + 4 * (t * 2 + u)
                    cc = "0" if p == 0 else vr(acc)
                    out.append(f"v_mfma_f32_16x16x32_bf16 {vr(acc)}, {vr(reg)}, {vr(8*p+4*u,4,'a')}, {cc}")
                return out
            it["reads"] = reads; it["mfma"] = mfma
            items.append(it)
    pos = [0, 2, 3, 5, 7, 8, 10]
    issue_at = {}
    n_up = 7 * UP
    for c in range(NCH):
        if c + UP < NCH:
            for k, g in enumerate(load_groups(c + UP)):
                it = items[12 * c + pos[k]]
                it.setdefault("post", []).extend(g)
                issue_at[7 * (c + UP) + k] = 12 * c + pos[k]
    for c in range(NCH):
        kproc = max(0, 12 * c - DEPTH + 1)
        issued = n_up + sum(1 for v, at in issue_at.items() if at < kproc)
        need = 7 * (c + 1)
        assert issued >= need
        g = [f"s_waitcnt vmcnt({issued - need})", "s_barrier"]
        if cfg.get("stamp2"):
            g += [f"s_memtime s[{56+2*c}:{57+2*c}]"]
        items[12 * c]["gate"] = g
    rolling(a, items, depth=DEPTH, slots=[RING + 4*i for i in range(NR)])
    a.I("s_nop 7")
    O = RING
    k = 0
    for u in range(2):
        for s in range(3):
            o = O + 4 * k; k += 1
            a0 = ACC + 4 * ((2*s) * 2 + u); a1 = ACC + 4 * ((2*s+1) * 2 + u)
            a.I(f"v_cvt_pk_bf16_f32 v{o}, v{a0}, v{a0+1}")
            a.I(f"v_cvt_pk_bf16_f32 v{o+1}, v{a0+2}, v{a0+3}")
            a.I(f"v_cvt_pk_bf16_f32 v{o+2}, v{a1}, v{a1+1}")
            a.I(f"v_cvt_pk_bf16_f32 v{o+3}, v{a1+2}, v{a1+3}")
            a.I("s_nop 1")
            a.I(f"v_permlane16_swap_b32 v{o}, v{o+2}")
            a.I(f"v_permlane16_swap_b32 v{o+1}, v{o+3}")
            a.I(f"buffer_store_dwordx4 {vr(o)}, v{9+u}, s[32:35], 0 offen offset:{64*s}" + FL[cfg.get("st2f", 2)])
    stamp_end(a, cfg, 1, 6, 24)
    if cfg.get("stamp2"):
        a.I("s_lshl_b32 s88, s2, 2")
        a.I("s_add_u32 s88, s88, s24")
        a.I("s_lshl_b32 s88, s88, 6")
        a.I(f"s_add_u32 s88, s88, {STAMP_OFF + 0x80000}")
        a.I("v_mov_b32 v0, s88")
        for c in range(10):
            a.I(f"s_sub_u32 s89, s{56+2*c}, s82")
            a.I(f"v_mov_b32 v2, s89")
            a.I(f"global_store_dword v0, v2, s[6:7] offset:{4*c}")
        a.I(f"s_sub_u32 s89, s86, s82")
        a.I(f"v_mov_b32 v2, s89")
        a.I(f"global_store_dword v0, v2, s[6:7] offset:40")
    a.L("L_k2_exit")
    a.I("s_endpgm")

def kd(name, nfv, acc_off, sgpr=96, extra=""):
    return f""".p2align 6
.amdhsa_kernel {name}
{extra}  .amdhsa_next_free_vgpr {nfv}
  .amdhsa_next_free_sgpr {sgpr}
  .amdhsa_accum_offset {acc_off}
  .amdhsa_group_segment_fixed_size 0
  .amdhsa_kernarg_size 72
  .amdhsa_user_sgpr_count 2
  .amdhsa_user_sgpr_kernarg_segment_ptr 1
  .amdhsa_system_sgpr_workgroup_id_x 1
.end_amdhsa_kernel
"""

def gen(cfg):
    a = Asm()
    out = HEADER
    out += "; @launch kernel=quip_s1_kernel grid=(256,1,1) block=(576,1,1) lds=163840\n"
    out += "; @launch kernel=quip_s2_kernel grid=(256,1,1) block=(256,1,1) lds=122880\n"
    out += '.amdgcn_target "amdgcn-amd-amdhsa--gfx950"\n.text\n'
    gen_k1(a, cfg)
    gen_k2(a, cfg)
    out += a.text()
    out += '.section .rodata,"a"\n'
    out += kd("quip_s1_kernel", 168, 168, 100, "  .amdhsa_float_denorm_mode_32 3\n")
    out += kd("quip_s2_kernel", 288, 128)
    return out

if __name__ == "__main__":
    cfg = {}
    outp = sys.argv[1] if len(sys.argv) > 1 else "standalone__weight_only_int_quip__prompt.s"
    for kv in sys.argv[2:]:
        k, v = kv.split("=")
        cfg[k] = int(v)
    open(outp, "w").write(gen(cfg))
```

```python
import sys
src, dst, which, M = sys.argv[1], sys.argv[2], sys.argv[3], int(sys.argv[4])
a = open(src).read()
l2 = a[a.index("; @launch kernel=quip_s2_kernel"):].split("\n")[0] + "\n"
a = a.replace(l2, l2 + "; @launch kernel=quip_e_kernel grid=(1,1,1) block=(64,1,1) lds=0\n")
c = [".globl quip_e_kernel", ".p2align 8", ".type quip_e_kernel,@function", "quip_e_kernel:"]
I = lambda s: c.append("    " + s)
I("s_cmp_ge_u32 s2, 1")
I("s_cbranch_scc1 L_e_exit")
I("s_load_dwordx2 s[4:5], s[0:1], 64")
I("s_memrealtime s[6:7]")
I("v_lshlrev_b32 v1, 10, v0")
I("v_add_u32 v1, 0x600000, v1")
I("v_add_u32 v2, 0x40000, v1")
I("s_waitcnt lgkmcnt(0)")
for i in range(16):
    o = (i >> 2) * 256 + (i & 3) * 32
    I(f"global_load_dword v{10+i}, v1, s[4:5] offset:{o}")
    I(f"global_load_dword v{26+i}, v1, s[4:5] offset:{o+16}")
    I(f"global_load_dword v{42+i}, v2, s[4:5] offset:{o}")
    I(f"global_load_dword v{58+i}, v2, s[4:5] offset:{o+16}")
I("s_waitcnt vmcnt(0)")
for i in range(64):
    I(f"v_sub_u32 v{10+i}, s6, v{10+i}")
for i in range(1, 16):
    I(f"v_max_u32 v10, v10, v{10+i}")
    I(f"v_min_u32 v26, v26, v{26+i}")
    I(f"v_max_u32 v42, v42, v{42+i}")
    I(f"v_min_u32 v58, v58, v{58+i}")
I("s_nop 4")
I("v_readlane_b32 s10, v10, 0"); I("v_readlane_b32 s11, v26, 0"); I("v_readlane_b32 s12, v42, 0"); I("v_readlane_b32 s13, v58, 0")
for l in range(1, 64):
    I(f"v_readlane_b32 s14, v10, {l}"); I(f"v_readlane_b32 s15, v26, {l}"); I(f"v_readlane_b32 s16, v42, {l}"); I(f"v_readlane_b32 s17, v58, {l}")
    I("s_max_u32 s10, s10, s14"); I("s_min_u32 s11, s11, s15"); I("s_max_u32 s12, s12, s16"); I("s_min_u32 s13, s13, s17")
e = {"total": "s_sub_u32 s20, s10, s13", "k1": "s_sub_u32 s20, s10, s11", "gap": "s_sub_u32 s20, s11, s12",
     "k2": "s_sub_u32 s20, s12, s13", "tail": "s_mov_b32 s20, s13"}[which]
I(e)
I(f"s_mul_i32 s20, s20, {M}")
I("s_min_u32 s20, s20, 50000")
I("s_memrealtime s[8:9]")
I("s_waitcnt lgkmcnt(0)")
c.append("L_e_loop:")
I("s_memrealtime s[22:23]")
I("s_waitcnt lgkmcnt(0)")
I("s_sub_u32 s24, s22, s8")
I("s_cmp_lt_u32 s24, s20")
I("s_cbranch_scc1 L_e_loop")
c.append("L_e_exit:")
I("s_endpgm")
a = a.replace(".globl quip_s1_kernel", "\n".join(c) + "\n.globl quip_s1_kernel", 1)
a = a.rstrip() + """
.p2align 6
.amdhsa_kernel quip_e_kernel
  .amdhsa_next_free_vgpr 80
  .amdhsa_next_free_sgpr 32
  .amdhsa_accum_offset 80
  .amdhsa_group_segment_fixed_size 0
  .amdhsa_kernarg_size 72
  .amdhsa_user_sgpr_count 2
  .amdhsa_user_sgpr_kernarg_segment_ptr 1
  .amdhsa_system_sgpr_workgroup_id_x 1
.end_amdhsa_kernel
"""
open(dst, "w").write(a)
```

```python
import sys
src, dst, which, M = sys.argv[1], sys.argv[2], sys.argv[3], int(sys.argv[4])
a = open(src).read()
l2 = a[a.index("; @launch kernel=quip_s2_kernel"):].split("\n")[0] + "\n"
a = a.replace(l2, l2 + "; @launch kernel=quip_e_kernel grid=(1,1,1) block=(64,1,1) lds=0\n")
c = [".globl quip_e_kernel", ".p2align 8", ".type quip_e_kernel,@function", "quip_e_kernel:"]
I = lambda s: c.append("    " + s)
k = int(which[1]) - 1
kind = which[2:].rstrip("AB")
role = which[-1] if which[-1] in "AB" else ""
I("s_cmp_ge_u32 s2, 1")
I("s_cbranch_scc1 L_e_exit")
I("s_load_dwordx2 s[4:5], s[0:1], 64")
I("s_memrealtime s[6:7]")
I("v_lshlrev_b32 v1, 10, v0")
I(f"v_add_u32 v1, {0x600000 + k*0x40000}, v1")
I("s_waitcnt lgkmcnt(0)")
o0, o1 = (8, 24) if kind == "cyc" else (0, 16)
for i in range(16):
    o = (i >> 2) * 256 + (i & 3) * 32
    I(f"global_load_dword v{10+i}, v1, s[4:5] offset:{o+o0}")
    I(f"global_load_dword v{26+i}, v1, s[4:5] offset:{o+o1}")
I("s_waitcnt vmcnt(0)")
def use(l, i):
    wg = 4 * l + (i >> 2)
    isA = (wg & 7) >= 6
    return role == "" or (role == "A") == isA
if kind in ("cyc", "rt"):
    for i in range(16):
        I(f"v_sub_u32 v{10+i}, v{26+i}, v{10+i}")
    I("s_mov_b32 s10, 0")
    I("s_nop 4")
    for l in range(64):
        for i in range(16):
            if use(l, i):
                I(f"v_readlane_b32 s14, v{10+i}, {l}")
                I("s_max_u32 s10, s10, s14")
    if kind == "cyc":
        I("s_lshr_b32 s10, s10, 4")
    I("s_mov_b32 s20, s10")
else:
    for i in range(16):
        I(f"v_sub_u32 v{10+i}, s6, v{10+i}")
    I("s_mov_b32 s10, 0")
    I("s_mov_b32 s11, -1")
    I("s_nop 4")
    for l in range(64):
        for i in range(16):
            if use(l, i):
                I(f"v_readlane_b32 s14, v{10+i}, {l}")
                I("s_max_u32 s10, s10, s14")
                I("s_min_u32 s11, s11, s14")
    I("s_sub_u32 s20, s10, s11")
I(f"s_mul_i32 s20, s20, {M}")
I("s_min_u32 s20, s20, 50000")
I("s_memrealtime s[8:9]")
I("s_waitcnt lgkmcnt(0)")
c.append("L_e_loop:")
I("s_memrealtime s[22:23]")
I("s_waitcnt lgkmcnt(0)")
I("s_sub_u32 s24, s22, s8")
I("s_cmp_lt_u32 s24, s20")
I("s_cbranch_scc1 L_e_loop")
c.append("L_e_exit:")
I("s_endpgm")
a = a.replace(".globl quip_s1_kernel", "\n".join(c) + "\n.globl quip_s1_kernel", 1)
a = a.rstrip() + """
.p2align 6
.amdhsa_kernel quip_e_kernel
  .amdhsa_next_free_vgpr 80
  .amdhsa_next_free_sgpr 32
  .amdhsa_accum_offset 80
  .amdhsa_group_segment_fixed_size 0
  .amdhsa_kernarg_size 72
  .amdhsa_user_sgpr_count 2
  .amdhsa_user_sgpr_kernarg_segment_ptr 1
  .amdhsa_system_sgpr_workgroup_id_x 1
.end_amdhsa_kernel
"""
open(dst, "w").write(a)
```

```python
import sys

HEADER = open("standalone__weight_only_int_quip__prompt.s.ref").read().split("; Override launch")[0]

XR_OFF = 0
TT_OFF = 0x300000
WS_BYTES = 0x500000

class Asm:
    def __init__(self):
        self.lines = []
    def I(self, s):
        self.lines.append("    " + s)
    def L(self, s):
        self.lines.append(s + ":")
    def C(self, s):
        self.lines.append("    ; " + s)
    def text(self):
        return "\n".join(self.lines) + "\n"

def vr(b, n=4, p="v"):
    return f"{p}[{b}:{b+n-1}]" if n > 1 else f"{p}{b}"

STAMP_OFF = 0x600000
def stamp_begin(a, cfg, B=80):
    if cfg.get("stamp"):
        a.I(f"s_memrealtime s[{B}:{B+1}]")
        a.I(f"s_memtime s[{B+2}:{B+3}]")

def stamp_end(a, cfg, kidx, ws_lo, wave_sgpr, B=80):
    if cfg.get("stamp"):
        a.I("s_waitcnt vmcnt(0) lgkmcnt(0)")
        a.I(f"s_memrealtime s[{B+4}:{B+5}]")
        a.I(f"s_memtime s[{B+6}:{B+7}]")
        a.I(f"s_lshl_b32 s{B+8}, s2, 3")
        a.I(f"s_add_u32 s{B+8}, s{B+8}, s{wave_sgpr}")
        a.I(f"s_lshl_b32 s{B+8}, s{B+8}, 5")
        a.I(f"s_add_u32 s{B+8}, s{B+8}, {STAMP_OFF + kidx*0x40000}")
        a.I(f"s_getreg_b32 s{B+9}, hwreg(HW_REG_XCC_ID)")
        a.I("s_waitcnt lgkmcnt(0)")
        a.I(f"v_mov_b32 v0, s{B+8}")
        for k in range(8):
            a.I(f"v_mov_b32 v{2+k}, s{B+k}")
        a.I(f"v_mov_b32 v5, s{B+9}")
        a.I(f"global_store_dwordx4 v0, v[2:5], s[{ws_lo}:{ws_lo+1}]")
        a.I(f"global_store_dwordx4 v0, v[6:9], s[{ws_lo}:{ws_lo+1}] offset:16")

def gate_stamps_out(a, cfg, n, base_sgpr, ws_lo, wave_sgpr, off, B=88):
    a.I(f"s_lshl_b32 s{B+8}, s2, 3")
    a.I(f"s_add_u32 s{B+8}, s{B+8}, s{wave_sgpr}")
    a.I(f"s_lshl_b32 s{B+8}, s{B+8}, 6")
    a.I(f"s_add_u32 s{B+8}, s{B+8}, {off}")
    a.I(f"v_mov_b32 v0, s{B+8}")
    for c in range(n):
        a.I(f"s_sub_u32 s{B+9}, s{base_sgpr+2*c}, s{B+2}")
        a.I(f"v_mov_b32 v2, s{B+9}")
        a.I(f"global_store_dword v0, v2, s[{ws_lo}:{ws_lo+1}] offset:{4*c}")
    a.I(f"s_sub_u32 s{B+9}, s{B+6}, s{B+2}")
    a.I(f"v_mov_b32 v2, s{B+9}")
    a.I(f"global_store_dword v0, v2, s[{ws_lo}:{ws_lo+1}] offset:{4*n}")

def srd(a, d, base, nbytes):
    a.I(f"s_mov_b32 s{d}, s{base}")
    a.I(f"s_and_b32 s{d+1}, s{base+1}, 0xffff")
    a.I(f"s_mov_b32 s{d+2}, {nbytes}")
    a.I(f"s_mov_b32 s{d+3}, 0x00020000")

def rolling(a, items, depth, slots):
    n = len(items)
    issued = 0
    nreads = []
    for k in range(n):
        while issued < min(n, k + depth):
            it = items[issued]
            if it.get("gate"):
                for g in it["gate"]:
                    a.I(g)
            rd = it["reads"](slots[issued % len(slots)])
            for r in rd:
                a.I(r)
            nreads.append(len(rd))
            issued += 1
        cnt = sum(nreads[k + 1:issued])
        assert cnt <= 15
        a.I(f"s_waitcnt lgkmcnt({cnt})")
        for m in items[k]["mfma"](slots[k % len(slots)]):
            a.I(m)
        for m in items[k].get("post", []):
            a.I(m)

def merge(comp, loads, policy):
    if not loads:
        return list(comp)
    if policy == 0:
        return [x for g in loads for x in g] + list(comp)
    if policy == 1:
        return list(comp) + [x for g in loads for x in g]
    n = len(comp); m = len(loads)
    out = []
    pos = [(k * n) // m for k in range(m)] if policy == 2 else [((k + 1) * n) // m for k in range(m)]
    li = 0
    for i in range(n + 1):
        while li < m and pos[li] == i:
            out.extend(loads[li]); li += 1
        if i < n:
            out.append(comp[i])
    return out

class LdsQ:
    def __init__(self, out):
        self.out = out; self.q = []
    def issue(self, instr, tag):
        if len(self.q) >= 15:
            self.wait_n(14)
        self.out.append(instr); self.q.append(tag)
    def wait_n(self, n):
        self.out.append(f"s_waitcnt lgkmcnt({n})")
        self.q = self.q[len(self.q) - n:] if n else []
    def need(self, tag):
        idx = [i for i, t in enumerate(self.q) if t == tag]
        if idx:
            self.wait_n(len(self.q) - 1 - idx[-1])

FL = ["", " sc1", " nt", " sc0 sc1", " sc0"]

def gen_k1(a, cfg):
    K = "quip_s1_kernel"
    mp = cfg.get("map", 1)
    a.lines.append(f".globl {K}\n.p2align 8\n.type {K},@function")
    a.L(K)
    a.I("s_cmp_ge_u32 s2, 256")
    a.I("s_cbranch_scc1 L_k1_exit")
    stamp_begin(a, cfg, 88)
    a.I("s_load_dwordx8 s[4:11], s[0:1], 0")
    a.I("s_load_dwordx4 s[12:15], s[0:1], 32")
    a.I("s_load_dwordx2 s[16:17], s[0:1], 64")
    a.I("s_lshr_b32 s21, s2, 3")
    a.I("s_and_b32 s20, s2, 7")
    a.I("v_and_b32 v1, 63, v0")
    a.I("v_lshrrev_b32 v2, 6, v0")
    a.I("v_and_b32 v3, 15, v1")
    a.I("v_readfirstlane_b32 s24, v2")
    a.I("v_lshrrev_b32 v2, 4, v1")
    if mp:
        a.I("s_lshr_b32 s22, s21, 3")
        a.I(f"s_add_u32 s23, s21, {cfg.get('c8rot', 0)}")
        a.I("s_and_b32 s23, s23, 7")
        a.I("s_cmp_ge_u32 s20, 6")
    else:
        a.I("s_lshr_b32 s22, s20, 1")
        a.I("s_and_b32 s23, s20, 1")
        a.I("s_cmp_ge_u32 s21, 24")
    a.I("s_cbranch_scc1 L_k1_roleA")
    gen_k1_b(a, cfg)
    a.L("L_k1_roleA")
    gen_k1_a(a, cfg)
    a.L("L_k1_exit")
    a.I("s_endpgm")

def lagged(a, cfg, grans, N, stampf):
    flat = []; ends = []
    for g in grans:
        flat += g; ends.append(len(flat))
    nb = 0
    Nf = N if callable(N) else (lambda g: N)
    for k in range(len(flat) + 1):
        while nb < len(grans) and (k == len(flat) or k >= ends[nb] + Nf(nb)):
            a.I(f"s_waitcnt vmcnt({k - ends[nb]})")
            a.I("s_barrier")
            for x in stampf(nb): a.I(x)
            nb += 1
        if k < len(flat):
            for x in flat[k]: a.I(x)
            if cfg.get("probe") and k in (0, 4, 7, 15, 23, 31):
                n = (0, 4, 7, 15, 23, 31).index(k)
                a.I("s_waitcnt vmcnt(0)")
                a.I(f"s_memtime s[{66+2*n}:{67+2*n}]")

def early(a, cfg, grans, R, stampf):
    n = len(grans)
    for g in range(min(R - 1, n)):
        for grp in grans[g]:
            for x in grp: a.I(x)
    for g in range(n):
        cnt = sum(len(grans[k]) for k in range(g + 1, min(n, g + R - 1)))
        a.I(f"s_waitcnt vmcnt({cnt})")
        a.I("s_barrier")
        for x in stampf(g): a.I(x)
        if g + R - 1 < n:
            for grp in grans[g + R - 1]:
                for x in grp: a.I(x)

def st2(cfg, k, base=64):
    if cfg.get("stamp2") and k < 12:
        return [f"s_memtime s[{base+2*k}:{base+2*k+1}]"]
    return []

def fin(a, cfg, n, ws=19):
    stamp_end(a, cfg, 0, 16, ws, 88)
    if cfg.get("stamp2"):
        for k in range(n, 12):
            a.I(f"s_mov_b32 s{64+2*k}, s90")
        gate_stamps_out(a, cfg, 12, 64, 16, ws, STAMP_OFF + 0x100000)
    a.I("s_endpgm")

def gen_k1_a(a, cfg):
    nt_x = " nt" if cfg.get("nt_x") else ""
    nt_u = " nt" if cfg.get("nt_u") else ""
    stf = FL[cfg.get("sta", 0)]
    mp = cfg.get("map", 1)
    SL = 43008
    a.C("role A: xr = x @ U, tile 256(m) x 80(e); waves 0-3 compute (64 x 80), wave 4 loads")
    if cfg.get("a_off"):
        a.I("s_endpgm")
    if mp:
        a.I("s_mov_b32 s25, s23")
        a.I("s_sub_u32 s20, s20, 6")
        a.I("s_lshl_b32 s20, s20, 2")
        a.I("s_add_u32 s20, s20, s22")
    else:
        a.I("s_sub_u32 s25, s21, 24")
        a.I("s_mov_b32 s22, 0")
    a.I("s_and_b32 s26, s25, 1")
    a.I("s_cmp_gt_u32 s24, 5")
    a.I("s_cbranch_scc1 L_k1_exit")
    a.I("s_sub_u32 s19, s24, 1")
    a.I("s_cmp_lt_u32 s19, 4")
    a.I("s_cbranch_scc1 L_k1a_comp")
    a.I("s_cmp_eq_u32 s24, 0")
    a.I("s_cselect_b32 s19, 4, 5")
    VX = 10; VU = 14
    a.I("s_movk_i32 s41, 1280")
    a.I("s_lshl_b32 s42, s20, 8")
    a.I("v_lshrrev_b32 v7, 3, v1")
    a.I("v_add_u32 v6, s42, v7")
    a.I(f"v_mul_lo_u32 v{VX}, v6, s41")
    a.I("v_and_b32 v7, 6, v7")
    a.I("v_and_b32 v6, 7, v1")
    a.I("v_xor_b32 v6, v6, v7")
    a.I(f"v_lshl_add_u32 v{VX}, v6, 4, v{VX}")
    for b in range(1, 4):
        a.I(f"v_add_u32 v{VX+b}, {b*(10240-1024)}, v{VX}")
    a.I("s_mul_i32 s46, s25, 160")
    for n in range(5):
        a.I(f"v_add_u32 v6, {64*n}, v1")
        a.I(f"v_mul_u32_u24 v7, 205, v6")
        a.I(f"v_lshrrev_b32 v7, 11, v7")
        a.I(f"v_mul_u32_u24 v8, 10, v7")
        a.I(f"v_sub_u32 v8, v6, v8")
        a.I(f"v_lshrrev_b32 v6, 1, v7")
        a.I(f"v_xor_b32 v6, v6, v7")
        a.I(f"v_and_b32 v6, 4, v6")
        a.I(f"v_mul_u32_u24 v6, 3, v6")
        a.I(f"v_xor_b32 v7, v7, v6")
        a.I(f"v_mul_u32_u24 v7, 1280, v7")
        a.I(f"v_lshl_add_u32 v8, s26, 1, v8")
        a.I(f"v_subrev_u32 v6, 10, v8")
        a.I(f"v_min_u32 v8, v8, v6")
        a.I(f"v_lshl_add_u32 v7, v8, 4, v7")
        a.I(f"v_add_u32 v{VU+n}, s46, v7")
        a.I(f"v_add_u32 v{VU+5+n}, {40960 - ((5+n)%4)*1024}, v{VU+n}")
        if n % 4:
            a.I(f"v_subrev_u32 v{VU+n}, {(n%4)*1024}, v{VU+n}")
    for gam in range(8):
        a.I(f"s_add_u32 s43, s25, {gam}")
        a.I(f"s_and_b32 s43, s43, 7")
        a.I(f"s_mul_i32 s{56+gam}, s43, 40960")
    rot = cfg.get("a_rot", 0)
    if rot:
        a.I(f"s_mul_i32 s44, s22, {rot-1}")
        a.I("s_add_u32 s44, s44, s25")
        a.I("s_cmp_ge_u32 s44, 10")
        a.I("s_cselect_b32 s45, 10, 0")
        a.I("s_sub_u32 s44, s44, s45")
    else:
        a.I("s_mov_b32 s44, 0")
    a.I("s_waitcnt lgkmcnt(0)")
    srd(a, 28, 4, 2621440)
    srd(a, 32, 12, 819200)
    def stage(P, lead):
        base = (P % 3) * SL
        g = []
        pre = ["s_lshl_b32 s45, s44, 7", "s_mul_i32 s46, s44, 81920"]
        for b in (range(4) if lead else range(4, 32)):
            ld = f"buffer_load_dwordx4 v{VX+b%4}, s[28:31], s54 offen offset:{(b%4)*1024}{nt_x} lds"
            if b % 4 == 0:
                g.append([f"s_mov_b32 m0, {base + b*1024}", f"s_add_u32 s54, s45, s{56+b//4}", ld])
            else:
                g.append([ld])
        for n in (range(10) if lead else []):
            ld = f"buffer_load_dwordx4 v{VU+n}, s[32:35], s46 offen offset:{(n%4)*1024}{nt_u} lds"
            if n % 4 == 0:
                g.append([f"s_mov_b32 m0, {base + 32768 + n*1024}", "s_nop 0", ld])
            else:
                g.append([ld])
        g[0] = pre + g[0]
        g[-1] = g[-1] + ["s_add_u32 s44, s44, 1", "s_cmp_eq_u32 s44, 10", "s_cselect_b32 s44, 0, s44"]
        return g
    a.I("s_cmp_eq_u32 s24, 5")
    a.I("s_cbranch_scc1 L_k1a_lead")
    lagged(a, cfg, [stage(P, 0) for P in range(10)], cfg.get("a_lag", 28), lambda g: st2(cfg, g))
    fin(a, cfg, 10)
    a.L("L_k1a_lead")
    early(a, cfg, [stage(P, 1) for P in range(10)], 3, lambda g: st2(cfg, g))
    fin(a, cfg, 10)
    a.L("L_k1a_comp")
    a.I("s_mov_b32 s24, s19")
    a.I("s_lshl_b32 s40, s20, 4")
    VXR = 10; VT = 14; VST = 16
    a.I("s_lshl_b32 s45, s24, 13")
    a.I("v_and_b32 v6, 6, v3")
    a.I("v_xor_b32 v6, v6, v2")
    a.I("v_lshl_add_u32 v6, v3, 3, v6")
    a.I(f"v_lshl_add_u32 v{VXR}, v6, 4, s45")
    a.I(f"v_xor_b32 v{VXR+1}, 64, v{VXR}")
    a.I(f"v_add_u32 v{VXR+2}, {2*SL}, v{VXR}")
    a.I(f"v_add_u32 v{VXR+3}, {2*SL}, v{VXR+1}")
    a.I("v_lshrrev_b32 v6, 1, v2")
    a.I("v_lshlrev_b32 v6, 4, v6")
    a.I("v_and_b32 v7, 1, v2")
    a.I("v_lshl_add_u32 v6, v7, 2, v6")
    a.I("v_lshrrev_b32 v7, 2, v3")
    a.I("v_add_u32 v6, v6, v7")
    a.I("v_mul_u32_u24 v6, 160, v6")
    a.I("v_and_b32 v7, 3, v3")
    a.I(f"v_lshl_add_u32 v{VT}, v7, 3, v6")
    a.I(f"v_add_u32 v{VT}, 32768, v{VT}")
    a.I(f"v_add_u32 v{VT+1}, {2*SL}, v{VT}")
    a.I("s_mul_i32 s42, s25, 5")
    a.I("s_add_u32 s42, s42, s26")
    a.I("s_lshr_b32 s42, s42, 1")
    a.I("s_mul_i32 s43, s40, 20")
    a.I("s_add_u32 s42, s42, s43")
    a.I("s_lshl_b32 s42, s42, 10")
    if XR_OFF:
        a.I(f"s_add_u32 s42, s42, {XR_OFF}")
    a.I("s_cmp_eq_u32 s26, 0")
    a.I("s_cselect_b32 s43, 3064, 0")
    a.I("s_add_u32 s43, s43, s42")
    a.I("s_sub_u32 s43, s43, 1016")
    a.I(f"v_lshl_add_u32 v{VST}, v1, 4, s42")
    a.I(f"v_lshl_add_u32 v{VST+1}, v1, 4, s43")
    a.I("s_lshl_b32 s41, s24, 1")
    a.I("s_add_u32 s41, s41, s25")
    a.I("s_and_b32 s48, s41, 7")
    a.I("s_mul_i32 s48, s48, 40960")
    a.I("s_add_u32 s49, s48, 20480")
    a.I("s_add_u32 s41, s41, 1")
    a.I("s_and_b32 s50, s41, 7")
    a.I("s_mul_i32 s50, s50, 40960")
    a.I("s_add_u32 s51, s50, 20480")
    a.I("s_waitcnt lgkmcnt(0)")
    srd(a, 36, 16, WS_BYTES)
    ACC = 24; RING = 104; XF = 136
    out = []; L = LdsQ(out)
    DEPTH = cfg.get("a_depth", 4)
    items = [(p, t) for p in range(20) for t in range(5)]
    def issue_item(k):
        p, t = items[k]
        P = p // 2; sl = P % 3
        so = (sl % 2) * SL
        if t == 0:
            if p % 2 == 0:
                L.wait_n(0) if L.q else None
                out.append("s_barrier")
                out.extend(st2(cfg, P))
            for u in range(4):
                L.issue(f"ds_read_b128 {vr(XF + 16*(p&1) + 4*u)}, v{VXR + 2*(sl//2) + (p&1)} offset:{so + u*2048}", ("x", p))
        reg = RING + 4 * (k % 8)
        off = so + (p & 1) * 5120 + t * 32
        L.issue(f"ds_read_b64_tr_b16 {vr(reg,2)}, v{VT + sl//2} offset:{off}", ("u", k))
        L.issue(f"ds_read_b64_tr_b16 {vr(reg+2,2)}, v{VT + sl//2} offset:{off+1280}", ("u", k))
    issued = 0
    for k in range(100):
        while issued < min(100, k + DEPTH):
            issue_item(issued); issued += 1
        p, t = items[k]
        L.need(("u", k))
        reg = RING + 4 * (k % 8)
        for u in range(4):
            acc = ACC + 4 * (5 * u + t)
            c = "0" if p == 0 else vr(acc)
            out.append(f"v_mfma_f32_16x16x32_bf16 {vr(acc)}, {vr(reg)}, {vr(XF + 16*(p&1) + 4*u)}, {c}")
    for x in out:
        a.I(x)
    a.I("s_nop 7")
    k = 0
    for u in range(4):
        so = ["s48", "s49", "s50", "s51"][u]
        for s in range(2):
            o = RING + 4 * k; k += 1
            a0 = ACC + 4 * (5 * u + 2 * s); a1 = a0 + 4
            a.I(f"v_cvt_pk_bf16_f32 v{o}, v{a0}, v{a0+1}")
            a.I(f"v_cvt_pk_bf16_f32 v{o+1}, v{a0+2}, v{a0+3}")
            a.I(f"v_cvt_pk_bf16_f32 v{o+2}, v{a1}, v{a1+1}")
            a.I(f"v_cvt_pk_bf16_f32 v{o+3}, v{a1+2}, v{a1+3}")
            a.I(f"buffer_store_dwordx4 {vr(o)}, v{VST}, s[36:39], {so} offen offset:{s*1024}{stf}")
        o = RING + 4 * k; k += 1
        a0 = ACC + 4 * (5 * u + 4)
        a.I(f"v_cvt_pk_bf16_f32 v{o}, v{a0}, v{a0+1}")
        a.I(f"v_cvt_pk_bf16_f32 v{o+1}, v{a0+2}, v{a0+3}")
        a.I(f"buffer_store_dwordx2 {vr(o,2)}, v{VST+1}, s[36:39], {so} offen{stf}")
    fin(a, cfg, 10)

def make_perm(cfg):
    lf = cfg.get("lf", 2)
    if lf == 0:
        return 4, [(n // 4, n % 4) for n in range(48)]
    if lf == 1:
        def sched(s, w):
            if w == 0:
                if s == 0: return (0, 0)
                if s <= 8: return (s + 3, 0)
                return (11, s - 8)
            if s == 0: return (w, 0)
            return (s - 1, w)
        return 4, [sched(n // 4, n % 4) for n in range(48)]
    if lf == 2:
        seq = [(0, 0), (1, 0), (0, 1), (1, 1)]
        for j in range(6):
            nx = j + 2
            per = []
            if nx < 6: per.append((nx, 0))
            per += [(j, 2), (j, 3), (j, 4)]
            if nx < 6: per.append((nx, 1))
            per += [(j, 5), (j, 6), (j, 7)]
            seq += per
        assert len(seq) == 48 and len(set(seq)) == 48
        return 8, seq
    if lf == 3:
        return 8, [(n // 8, n % 8) for n in range(48)]
    if lf == 4:
        return 4, [(n // 4, n % 4) for n in range(48)]
    if lf == 6:
        seq = [(0, 0), (0, 1), (0, 2), (0, 3), (1, 0), (0, 4), (0, 5), (0, 6)]
        for j in range(1, 6):
            seq += [(j, 1), (j - 1, 7), (j, 2), (j, 4)]
            seq += [(j + 1, 0) if j < 5 else (5, 7), (j, 6), (j, 3), (j, 5)]
        assert len(seq) == 48 and len(set(seq)) == 48
        return 8, seq
    if lf == 7:
        seq = [(0, 0), (0, 1), (0, 2), (0, 3)]
        for j in range(5):
            seq += [(j + 1, 0), (j, 4), (j, 5), (j + 1, 1)]
            seq += [(j + 1, 3), (j, 6), (j, 7), (j + 1, 2)]
        seq += [(5, 4), (5, 5), (5, 6), (5, 7)]
        assert len(seq) == 48 and len(set(seq)) == 48
        return 8, seq
    if lf == 8:
        seq = [(0,0),(0,1),(0,2),(0,3),
               (2,0),(1,1),(1,2),(1,0),
               (3,0),(1,3),(2,1),(2,2),
               (5,0),(2,3),(3,1),(4,0),
               (6,0),(3,2),(3,3),(4,1),
               (8,0),(4,2),(4,3),(7,0),
               (9,0),(5,1),(5,2),(5,3),
               (11,0),(6,1),(6,2),(10,0),
               (6,3)] + [(j, d) for j in range(7, 12) for d in (1, 2, 3)]
        assert len(seq) == 48 and len(set(seq)) == 48
        return 4, seq
    if lf == 9:
        seq = [(0,0),(0,1),(0,2),(0,3),
               (1,0),(1,1),(1,2),(1,3),
               (3,0),(2,1),(2,2),(2,0),
               (4,0),(2,3),(3,1),(3,2),
               (6,0),(3,3),(4,1),(5,0),
               (7,0),(4,2),(4,3),(5,1),
               (9,0),(5,2),(5,3),(8,0),
               (10,0),(6,1),(6,2),(6,3),
               (11,0),(7,1),(7,2),(7,3)] + [(j, d) for j in range(8, 12) for d in (1, 2, 3)]
        assert len(seq) == 48 and len(set(seq)) == 48
        return 4, seq
    if lf == 10:
        seq = [(j, 0) for j in range(12)] + [(j, d) for j in range(12) for d in (1, 2, 3)]
        return 4, seq
    if lf == 11:
        f = [(j, d) for j in range(12) for d in (1, 2, 3)]
        seq = [(j, 0) for j in range(6)] + f[:6] + [(j, 0) for j in range(6, 12)] + f[6:]
        return 4, seq
    if lf == 12:
        f = [(j, d) for j in range(12) for d in (1, 2, 3)]
        seq = [(j, 0) for j in range(4)] + f[:4] + [(j, 0) for j in range(4, 8)] + f[4:12] + [(j, 0) for j in range(8, 12)] + f[12:]
        return 4, seq
    if lf == 13:
        f = [(j, d) for j in range(12) for d in (1, 2, 3)]
        seq = [(j, 0) for j in range(8)] + f[:8] + [(j, 0) for j in range(8, 12)] + f[8:]
        return 4, seq
    if lf == 14:
        seq = [(j, 0) for j in range(6)] + [(j, 1) for j in range(6)] + [(j, d) for j in range(6) for d in range(2, 8)]
        return 8, seq
    if lf == 5:
        seq = [(0, 0), (0, 2), (1, 0), (1, 2), (2, 0), (0, 1), (0, 3), (1, 1)]
        for s in range(2, 11):
            seq += [(s + 1, 0), (s - 1, 3), (s, 1), (s, 2)]
        seq += [(10, 3), (11, 1), (11, 2), (11, 3)]
        assert len(seq) == 48 and len(set(seq)) == 48
        return 4, seq

def gen_k1_b(a, cfg):
    nt_q = " nt" if cfg.get("nt_q") else ""
    nt_v = " nt" if cfg.get("nt_v") else ""
    stf = FL[cfg.get("stb", 0)]
    mp = cfg.get("map", 1)
    GA = [0, 57344]; GB = [32768, 90112]; TBL = 114688
    lf = cfg.get("lf", 2)
    NC, perm = make_perm(cfg)
    xrot = cfg.get("xrot", 0)
    a.C("role B: T = dequant(qw) @ V, tile 80(d) x 64(g); waves 0-3 compute (k split), wave 4 loads")
    if mp:
        a.I("s_and_b32 s25, s20, 1")
        a.I("s_lshl_b32 s25, s25, 2")
        a.I("s_add_u32 s25, s25, s22")
        a.I("s_lshr_b32 s26, s20, 1")
        a.I("s_lshl_b32 s26, s26, 3")
        a.I("s_add_u32 s26, s26, s23")
        if NC == 8:
            a.I("s_lshl_b32 s42, s22, 1")
            a.I("s_add_u32 s42, s42, s23")
        else:
            if cfg.get("cls", 0):
                a.I("s_lshr_b32 s42, s23, 1")
                a.I("s_add_u32 s42, s42, s22")
            else:
                a.I("s_add_u32 s42, s22, s23")
    else:
        a.I("s_mul_i32 s26, s21, 43")
        a.I("s_lshr_b32 s26, s26, 8")
        a.I("s_mul_i32 s27, s26, 6")
        a.I("s_sub_u32 s27, s21, s27")
        a.I("s_add_u32 s42, s26, s27")
        a.I("s_and_b32 s25, s22, 1")
        a.I("s_lshl_b32 s25, s25, 2")
        a.I("s_add_u32 s25, s25, s26")
        a.I("s_lshl_b32 s26, s23, 1")
        a.I("s_lshr_b32 s40, s22, 1")
        a.I("s_add_u32 s26, s26, s40")
        a.I("s_mul_i32 s26, s26, 6")
        a.I("s_add_u32 s26, s26, s27")
    if not lf:
        a.I("s_mov_b32 s42, 0")
    a.I("s_and_b32 s27, s25, 1")
    a.I("s_cmp_eq_u32 s24, 0")
    a.I("s_cbranch_scc1 L_k1b_ld")
    VR = 10; VB = 14; VST = 18; VTL = 21; VT = 22
    VP = 4
    SZ = 24
    AF = 56
    BF = 64
    RAW = 80
    ACC = 104
    a.I("s_sub_u32 s18, s24, 1")
    a.I("s_and_b32 s24, s18, 3")
    a.I("v_subrev_u32 v0, 64, v0")
    a.I("s_mul_i32 s40, s25, 5")
    a.I("s_lshr_b32 s40, s40, 1")
    a.I("s_mul_i32 s43, s40, 3072")
    a.I(f"v_lshl_add_u32 v4, v0, 4, s43")
    a.I("s_movk_i32 s44, 8192")
    a.I("s_mov_b32 s58, 61440")
    a.I("s_mov_b32 s59, 0x00020000")
    a.I("s_mov_b32 s62, 61440")
    a.I("s_mov_b32 s63, 0x00020000")
    a.I("s_mul_i32 s45, s18, 43")
    a.I("s_lshr_b32 s45, s45, 7")
    a.I("s_mul_i32 s46, s45, 3")
    a.I("s_sub_u32 s46, s18, s46")
    a.I("s_sub_u32 s47, 2, s45")
    a.I("s_cmp_eq_u32 s27, 0")
    a.I("s_cselect_b32 s45, s45, s47")
    a.I(f"s_cselect_b32 s47, {2*12352}, 0")
    a.I("s_mul_i32 s45, s45, 12352")
    a.I("s_lshl_b32 s46, s46, 10")
    a.I("s_add_u32 s45, s45, s46")
    a.I(f"s_add_u32 s45, s45, {TBL}")
    a.I(f"v_lshl_add_u32 v{SZ}, v1, 4, s45")
    a.I(f"s_add_u32 s47, s47, {TBL + 2048}")
    a.I(f"v_lshl_add_u32 v{SZ+1}, v1, 4, s47")
    a.I("v_and_b32 v6, 6, v3")
    a.I("v_xor_b32 v6, v6, v2")
    a.I("v_lshl_add_u32 v6, v3, 3, v6")
    a.I("s_lshl_b32 s45, s24, 13")
    a.I("s_add_u32 s46, s45, 4096")
    a.I("s_mul_i32 s47, s24, 6144")
    a.I(f"s_add_u32 s47, s47, {GB[0]}")
    a.I("s_cmp_ge_u32 s18, 4")
    a.I("s_cselect_b32 s46, s47, s46")
    a.I(f"v_lshl_add_u32 v{VR}, v6, 4, s46")
    a.I(f"v_xor_b32 v{VR+1}, 64, v{VR}")
    a.I("v_and_b32 v8, 1, v2")
    a.I("v_lshrrev_b32 v6, 2, v3")
    a.I("v_lshl_add_u32 v8, v8, 2, v6")
    a.I("v_lshrrev_b32 v6, 1, v8")
    a.I("v_xor_b32 v6, s24, v6")
    a.I("v_lshl_add_u32 v6, v8, 2, v6")
    a.I(f"v_lshlrev_b32 v{VB}, 5, v6")
    a.I("v_and_b32 v6, 3, v3")
    a.I(f"v_lshl_add_u32 v{VB}, v6, 3, v{VB}")
    a.I("v_lshrrev_b32 v6, 1, v2")
    a.I(f"v_lshl_add_u32 v{VB}, v6, 10, v{VB}")
    a.I(f"v_add_u32 v{VB}, s45, v{VB}")
    a.I("s_waitcnt lgkmcnt(0)")
    a.I("s_mov_b32 s56, s8")
    a.I("s_and_b32 s57, s9, 0xffff")
    a.I("s_mov_b32 s60, s10")
    a.I("s_and_b32 s61, s11, 0xffff")
    a.I(f"buffer_load_dwordx4 {vr(RAW)}, v4, s[56:59], 0 offen")
    a.I(f"buffer_load_dwordx4 {vr(RAW+4)}, v4, s[60:63], 0 offen")
    a.I("s_cmp_lg_u32 s18, 0")
    a.I("s_cbranch_scc1 L_k1b_comp")
    a.I(f"buffer_load_dwordx4 {vr(RAW+8)}, v4, s[56:59], s44 offen")
    a.I(f"buffer_load_dwordx4 {vr(RAW+12)}, v4, s[60:63], s44 offen")
    a.I("s_branch L_k1b_comp")
    a.L("L_k1b_ld")
    a.I("s_mov_b32 s19, 4")
    VQ = 10; VV = 20
    a.I("v_lshrrev_b32 v4, 3, v1")
    a.I(f"v_mul_u32_u24 v{VV}, 3072, v4")
    a.I("v_bfe_u32 v6, v1, 1, 2")
    a.I("v_xor_b32 v6, v6, v2")
    a.I(f"v_lshl_add_u32 v{VV}, v6, 5, v{VV}")
    a.I("v_and_b32 v6, 1, v1")
    a.I(f"v_lshl_add_u32 v{VV}, v6, 4, v{VV}")
    a.I("s_lshl_b32 s43, s26, 7")
    a.I(f"v_add_u32 v{VV}, s43, v{VV}")
    for b in range(1, 4):
        a.I(f"v_add_u32 v{VV+b}, {b*(24576-1024)}, v{VV}")
    a.I(f"v_mul_u32_u24 v5, 6144, v4")
    a.I("v_and_b32 v6, 6, v4")
    a.I("v_and_b32 v7, 7, v1")
    a.I("v_xor_b32 v6, v6, v7")
    a.I(f"v_lshl_add_u32 v5, v6, 4, v5")
    a.I("s_mul_i32 s43, s25, 491520")
    a.I("s_cmp_eq_u32 s27, 0")
    a.I(f"s_cselect_b32 s60, 0, {3*98304}")
    a.I(f"s_cselect_b32 s61, 98304, 0")
    a.I(f"s_cselect_b32 s62, {4*98304}, 0")
    a.I(f"s_add_u32 s61, s61, 98304")
    for r in range(3):
        a.I(f"s_add_u32 s{60+r}, s{60+r}, s43")
        a.I(f"v_add_u32 v{VQ+4*r}, s{60+r}, v5")
        for u in range(1, 4 if r < 2 else 2):
            a.I(f"v_add_u32 v{VQ+4*r+u}, {u*(49152-1024)}, v{VQ+4*r}")
    NJ = 48 // NC
    for d in range(NC):
        a.I(f"s_add_u32 s43, s42, {d}")
        a.I(f"s_and_b32 s43, s43, {NC-1}")
        a.I(f"s_lshl_b32 s{44+d}, s43, 7")
    a.I(f"s_mul_i32 s43, s20, {xrot*128}")
    for j in range(NJ):
        a.I(f"s_add_u32 s{52+j}, s43, {j*NC*128}")
        if xrot:
            a.I(f"s_cmp_ge_u32 s{52+j}, {48*128}")
            a.I(f"s_cselect_b32 s40, {48*128}, 0")
            a.I(f"s_sub_u32 s{52+j}, s{52+j}, s40")
    a.I("s_waitcnt lgkmcnt(0)")
    if cfg.get("stamp2"):
        a.I("s_memtime s[86:87]")
    srd(a, 32, 14, 4718592)
    srd(a, 28, 6, 3932160)
    def gran(g, ws):
        s = g // 2; out = []
        for w in ws:
            j, d = perm[4 * s + w]
            kq = f"s_add_u32 s42, s{44+d}, s{52+j}"
            if g % 2 == 0:
                base = GA[s & 1] + w * 8192
                q = [f"buffer_load_dwordx4 v{VQ+u}, s[28:31], s42 offen offset:{u*1024}{nt_q} lds" for u in range(4)]
                v = [f"buffer_load_dwordx4 v{VV+b}, s[32:35], s41 offen offset:{b*1024}{nt_v} lds" for b in range(4)]
                out.append([f"s_mov_b32 m0, {base + 4096}", kq, q[0]])
                out += [[q[1]], [q[2]], [q[3]]]
                out.append([f"s_mov_b32 m0, {base}", "s_mul_i32 s41, s42, 768", v[0]])
                out += [[v[1]], [v[2]], [v[3]]]
            else:
                base = GB[s & 1] + w * 6144
                q = [f"buffer_load_dwordx4 v{VQ+4+u}, s[28:31], s42 offen offset:{(u%4)*1024}{nt_q} lds" for u in range(6)]
                out.append([f"s_mov_b32 m0, {base}", kq, q[0]])
                out += [[q[1]], [q[2]], [q[3]]]
                out.append([f"s_mov_b32 m0, {base + 4096}", "s_nop 0", q[4]])
                out += [[q[5]]]
        if cfg.get("b_noload"):
            out = [[x for x in grp if not x.startswith("buffer")] for grp in out]
        return out
    stf_ = lambda g: st2(cfg, g // 2) if g % 2 == 0 and g < 22 else []
    blag = cfg.get("b_lag", 40); blag0 = cfg.get("b_lag0", 50); bn0 = cfg.get("b_n0", 4)
    od = lambda g: ([1, 2, 3, 0] if g % 2 == 0 else [0, 1, 2, 3])
    if lf in (8, 9):
        od = lambda g: [1, 2, 3, 0] if g % 2 == 0 else [0, 3, 1, 2]
    if lf == 7:
        od = lambda g: [1, 2, 3, 0] if (g % 2 == 0 or (g // 2) % 2 == 0) else [0, 3, 1, 2]
    def last():
        s = 11; g22 = []; g22b = []; g23 = []
        for w in range(4):
            j, d = perm[4 * s + w]
            kq = f"s_add_u32 s42, s{44+d}, s{52+j}"
            bA = GA[1] + w * 8192; bB = GB[1] + w * 6144
            q = [f"buffer_load_dwordx4 v{VQ+u}, s[28:31], s42 offen offset:{(u%4)*1024}{nt_q} lds" for u in range(10)]
            v = [f"buffer_load_dwordx4 v{VV+b}, s[32:35], s41 offen offset:{b*1024}{nt_v} lds" for b in range(4)]
            g22 += [[f"s_mov_b32 m0, {bA + 4096}", kq, q[0]], [q[1]], [f"s_mov_b32 m0, {bA}", "s_mul_i32 s41, s42, 768", v[0]], [v[1]], [v[2]], [v[3]]]
            g22b += [[f"s_mov_b32 m0, {bB}", kq, q[4]], [q[5]], [q[6]], [q[7]]]
            g23 += [[f"s_mov_b32 m0, {bA + 4096}", kq, q[2]], [q[3]], [f"s_mov_b32 m0, {bB + 4096}", "s_nop 0", q[8]], [q[9]]]
        r = [g22 + g22b, g23]
        if cfg.get("b_noload"):
            r = [[[x for x in grp if not x.startswith("buffer")] for grp in g] for g in r]
        return r
    lagged(a, cfg, [gran(g, od(g)) for g in range(22)] + last(), lambda g: blag0 if g < bn0 else (min(blag, 48) if g == 20 else blag), stf_)
    fin(a, cfg, 12)
    a.L("L_k1b_comp")
    if cfg.get("stamp"):
        a.I("s_min_u32 s19, s24, 2")
        a.I("s_add_u32 s19, s19, 5")
        a.I("s_cmp_ge_u32 s18, 4")
        a.I("s_cselect_b32 s19, s24, s19")
    for t in range(1, 4):
        a.I(f"v_xor_b32 v{VB+t}, {32*t}, v{VB}")
    srd(a, 36, 16, WS_BYTES)
    a.I("s_lshl_b32 s43, s26, 2")
    a.I("s_add_u32 s43, s43, s24")
    a.I("s_mul_i32 s43, s43, 20")
    a.I("s_add_u32 s43, s43, s40")
    a.I("s_lshl_b32 s43, s43, 10")
    a.I(f"s_add_u32 s43, s43, {TT_OFF}")
    a.I("v_lshl_add_u32 v6, v1, 4, s43")
    a.I("s_cmp_eq_u32 s27, 0")
    a.I("s_cselect_b32 s43, 0, 2048")
    a.I(f"v_add_u32 v{VST}, s43, v6")
    a.I(f"v_add_u32 v{VST+1}, 1024, v6")
    a.I("s_cselect_b32 s43, 2048, 8")
    a.I(f"v_add_u32 v{VST+2}, s43, v6")
    a.I(f"v_lshlrev_b32 v8, 4, v1")
    for t in range(4):
        a.I(f"s_xor_b32 s43, s24, {t}")
        a.I(f"s_mul_i32 s43, s43, 15360")
        if t > 1: a.I(f"s_add_u32 s43, s43, {(t-1)*1024}")
        a.I(f"v_add_u32 v{VP+t}, s43, v8")
    a.I(f"v_and_b32 v8, 1, v2")
    a.I(f"v_mul_u32_u24 v8, 6176, v8")
    a.I(f"v_lshrrev_b32 v{VTL}, 1, v2")
    a.I(f"v_lshl_add_u32 v{VTL}, v{VTL}, 4, v8")
    a.I(f"v_add_u32 v{VTL}, {TBL}, v{VTL}")
    a.I("s_lshl_b32 s41, s24, 3")
    a.I(f"s_mul_i32 s40, s20, {xrot}")
    def kappa(s):
        P = sum(((perm[4*s+w][0] << 3) | perm[4*s+w][1]) << (8 * w) for w in range(4))
        o = [f"s_lshr_b32 s43, {P}, s41", f"s_add_u32 s44, s43, s42", f"s_and_b32 s44, s44, {NC-1}",
             f"s_bfe_u32 s43, s43, 0x40003", f"s_mul_i32 s43, s43, {NC}"]
        if xrot:
            o += [f"s_add_u32 s43, s43, s40", f"s_cmp_ge_u32 s43, 48", f"s_cselect_b32 s45, 48, 0", f"s_sub_u32 s43, s43, s45"]
        o += [f"s_add_u32 s44, s44, s43", f"v_lshl_add_u32 v{VT}, s44, 6, v{VTL}"]
        return o
    for x in kappa(0): a.I(x)
    a.I("s_mov_b32 s56, 0x71800000")
    a.I("s_mov_b32 s57, 0x71800000")
    a.I("s_mov_b32 s58, 0x58000000")
    a.I("s_mov_b32 s59, 0x58000000")
    a.I("s_mov_b32 s60, 0xa7000000")
    a.I("s_mov_b32 s61, 0xa7000000")
    def table(src, dst):
        T = BF
        for h in range(2):
            for k in range(2):
                a.I(f"v_lshlrev_b32 v{T+8*h+2*k}, 16, v{src+2*h+k}")
                a.I(f"v_and_b32 v{T+8*h+2*k+1}, 0xffff0000, v{src+2*h+k}")
                a.I(f"v_lshlrev_b32 v{T+8*h+4+2*k}, 16, v{src+4+2*h+k}")
                a.I(f"v_and_b32 v{T+8*h+4+2*k+1}, 0xffff0000, v{src+4+2*h+k}")
            for k in range(2):
                a.I(f"v_pk_mul_f32 {vr(T+8*h+4+2*k,2)}, {vr(T+8*h+4+2*k,2)}, {vr(T+8*h+2*k,2)}")
            for k in range(2):
                a.I(f"v_pk_mul_f32 {vr(T+8*h+2*k,2)}, {vr(T+8*h+2*k,2)}, s[56:57]")
            a.I(f"ds_write_b128 v{dst}, {vr(T+8*h)} offset:{6176*h}")
            for k in range(2):
                a.I(f"v_pk_mul_f32 {vr(T+8*h+4+2*k,2)}, {vr(T+8*h+4+2*k,2)}, s[60:61]")
            a.I(f"ds_write_b128 v{dst}, {vr(T+8*h+4)} offset:{6176*h+3072}")
    if cfg.get("probe2"): a.I("s_memtime s[66:67]")
    a.I("s_waitcnt vmcnt(0)")
    if cfg.get("probe2"): a.I("s_memtime s[68:69]")
    table(RAW, SZ)
    a.I("s_cmp_lg_u32 s18, 0")
    a.I("s_cbranch_scc1 L_k1b_t3")
    table(RAW + 8, SZ + 1)
    a.L("L_k1b_t3")
    if cfg.get("probe2"): a.I("s_memtime s[70:71]")
    a.I("s_cmp_ge_u32 s18, 4")
    a.I("s_cbranch_scc1 L_k1b_x")
    def gen_wave(isx):
        tiles = [2, 3, 4] if isx else [0, 1]
        nt = len(tiles)
        t0 = tiles[0]
        out = []
        def deq(i):
            z = SZ + 16 * ((i - t0) // 2); af = AF + 4 * (i & 1); r = RAW + 8 * (i - t0)
            v = []
            for h in range(2):
                for u in range(2):
                    v.append(f"v_pk_fma_f32 {vr(r+4*h+2*u,2)}, {vr(r+4*h+2*u,2)}, {vr(z+8*h+2*u,2)}, {vr(z+8*h+4+2*u,2)}")
            for k in range(4):
                v.append(f"v_cvt_pk_bf16_f32 v{af+k}, v{r+2*k}, v{r+2*k+1}")
            return v
        def acc(t, i): return ACC + 4 * (t * nt + i - t0)
        def mf(s, i, order=(0, 1, 2, 3)):
            af = AF + 4 * (i & 1)
            return [f"v_mfma_f32_16x16x32_bf16 {vr(acc(t, i))}, {vr(af)}, {vr(BF+4*t)}, {'0' if s == 0 else vr(acc(t, i))}" for t in order]
        def rdraw(s):
            po = GA[s & 1]
            return [f"ds_read_b128 {vr(RAW+8*k+4*h)}, v{VR+h} offset:{po + 2048*k}" for k in range(nt) for h in range(2)]
        def rdv(s):
            po = GA[s & 1]
            return [f"ds_read_b64_tr_b16 {vr(BF+4*t+2*hb,2)}, v{VB+t} offset:{po + 2048*hb}" for t in range(4) for hb in range(2)]
        def rdtab(s):
            rd = []
            for g in ([1, 2] if isx else [0]):
                for h in range(2):
                    for k in range(2):
                        rd.append(f"ds_read_b128 {vr(SZ+16*(g-(1 if isx else 0))+8*h+4*k)}, v{VT} offset:{12352*g + 32*h + 3072*k}")
            return rd
        def pw(i):
            return [f"ds_write_b128 v{VP+t}, {vr(acc(t, i))} offset:{i*3072}" for t in range(1, 4)]
        def prd(i, R):
            return [f"ds_read_b128 {vr(R + 4*(t-1))}, v{VP} offset:{i*3072 + (t-1)*1024}" for t in range(1, 4)]
        def psum(A, R, O):
            v = []
            for u in range(2):
                v.append(f"v_pk_add_f32 {vr(A+2*u,2)}, {vr(A+2*u,2)}, {vr(R+2*u,2)}")
                v.append(f"v_pk_add_f32 {vr(R+4+2*u,2)}, {vr(R+4+2*u,2)}, {vr(R+8+2*u,2)}")
            for u in range(2):
                v.append(f"v_pk_add_f32 {vr(A+2*u,2)}, {vr(A+2*u,2)}, {vr(R+4+2*u,2)}")
            for u in range(2):
                v.append(f"v_pk_mul_f32 {vr(A+2*u,2)}, {vr(A+2*u,2)}, s[58:59]")
            for u in range(2):
                v.append(f"v_cvt_pk_bf16_f32 v{O+u}, v{A+2*u}, v{A+2*u+1}")
            return v
        def ilv(d, m):
            return [d[0], d[1], m[0], d[2], d[3], m[1], d[4], d[5], m[2], d[6], d[7], m[3]]
        def bar(k):
            out.append("s_barrier")
            if cfg.get("probe2") and 2 <= k < 22: return
            out.extend(st2(cfg, k // 2) if k % 2 == (1 if isx else 0) else [])
        LO = (1, 2, 3, 0)
        if cfg.get("probe2"): out.append("s_memtime s[72:73]")
        out.append("s_waitcnt lgkmcnt(0)")
        if isx:
            bar(0)
            out.extend(rdtab(0))
            for s in range(11):
                out.append("s_waitcnt lgkmcnt(4)")
                out.extend(rdv(s))
                out.extend(kappa(s + 1))
                out.append("s_waitcnt lgkmcnt(0)")
                bar(2 * s + 1)
                out.extend(rdraw(s))
                out.append("s_waitcnt lgkmcnt(4)")
                out.extend(deq(2))
                out.append("s_waitcnt lgkmcnt(2)")
                out.extend(ilv(deq(3), mf(s, 2)))
                out.append("s_waitcnt lgkmcnt(0)")
                out.extend(ilv(deq(4), mf(s, 3)))
                if s < 10:
                    bar(2 * s + 2)
                    out.extend(mf(s, 4))
                    out.extend(rdtab(s + 1))
                else:
                    tb = rdtab(11); m = mf(s, 4)
                    out.extend([tb[0], tb[1], m[0], tb[2], tb[3], m[1], tb[4], tb[5], m[2], tb[6], tb[7], m[3]])
                    out.append("s_waitcnt lgkmcnt(0)")
                    bar(22)
            s = 11
            rr = rdraw(s)
            out.extend(rr[:2] + rdv(s) + rr[2:4])
            out.append("s_waitcnt lgkmcnt(10)")
            out.extend(deq(2))
            out.append("s_waitcnt lgkmcnt(0)")
            out.extend(ilv(deq(3), mf(s, 2, LO)))
            bar(23)
            out.extend(rr[4:])
            m = mf(s, 3, LO); w = pw(2)
            out.extend([m[0], m[1], m[2], w[0], m[3], w[1], w[2]])
            out.append("s_waitcnt lgkmcnt(3)")
            out.extend(deq(4))
            m = mf(s, 4, LO); w = pw(3)
            out.extend([w[0], w[1], m[0], w[2], m[1], m[2], m[3]])
            out.append("s_nop 4")
            out.extend(pw(4))
            if cfg.get("probe2"): out.append("s_memtime s[74:75]")
            out.append("s_waitcnt lgkmcnt(0)")
            if cfg.get("probe2"): out.append("s_memtime s[76:77]")
            out.append("s_barrier")
            if cfg.get("probe2"): out.append("s_memtime s[78:79]")
            out.extend(prd(2, SZ) + prd(3, SZ + 12) + prd(4, BF))
            out.append("s_waitcnt lgkmcnt(6)")
            out.extend(psum(acc(0, 2), SZ, RAW))
            out.append("s_waitcnt lgkmcnt(3)")
            out.extend(psum(acc(0, 3), SZ + 12, RAW + 2))
            out.append(f"buffer_store_dwordx4 {vr(RAW)}, v{VST+1}, s[36:39], 0 offen{stf}")
            out.append("s_waitcnt lgkmcnt(0)")
            out.extend(psum(acc(0, 4), BF, RAW + 4))
            out.append(f"buffer_store_dwordx2 {vr(RAW+4,2)}, v{VST+2}, s[36:39], 0 offen{stf}")
            if cfg.get("probe2"): out.append("s_memtime s[80:81]")
        else:
            for s in range(11):
                bar(2 * s)
                if s == 0:
                    out.extend(rdtab(0))
                    out.append("s_waitcnt lgkmcnt(0)")
                rr = rdraw(s); rv = rdv(s)
                out.extend(rr[:2] + rv + rr[2:])
                out.extend(kappa(s + 1))
                out.append("s_waitcnt lgkmcnt(10)")
                out.extend(deq(0))
                out.append("s_waitcnt lgkmcnt(0)")
                out.extend(ilv(deq(1), mf(s, 0)))
                bar(2 * s + 1)
                out.extend(mf(s, 1))
                out.extend(rdtab(s + 1))
                out.append("s_waitcnt lgkmcnt(0)")
            s = 11
            bar(22)
            rr = rdraw(s)
            out.extend(rr[:2] + rdv(s))
            out.append("s_waitcnt lgkmcnt(8)")
            out.extend(deq(0))
            out.append("s_waitcnt lgkmcnt(0)")
            out.append("s_nop 0")
            out.extend(mf(s, 0, LO))
            bar(23)
            out.extend(rr[2:])
            out.append("s_nop 2")
            out.extend(pw(0))
            out.append("s_waitcnt lgkmcnt(3)")
            out.extend(deq(1))
            out.append("s_nop 1")
            out.extend(mf(s, 1, LO))
            out.append("s_nop 4")
            out.extend(pw(1))
            out.append("s_waitcnt lgkmcnt(0)")
            out.append("s_barrier")
            out.extend(prd(0, SZ) + prd(1, SZ + 12))
            out.append("s_waitcnt lgkmcnt(3)")
            out.extend(psum(acc(0, 0), SZ, RAW))
            out.append("s_waitcnt lgkmcnt(0)")
            out.extend(psum(acc(0, 1), SZ + 12, RAW + 2))
            out.append(f"buffer_store_dwordx4 {vr(RAW)}, v{VST}, s[36:39], 0 offen{stf}")
        for x in out:
            if cfg.get("b_nocomp") and (x.startswith("v_") or x.startswith("ds_")): continue
            a.I(x)
        fin(a, cfg, 12, 19)
    gen_wave(False)
    a.L("L_k1b_x")
    gen_wave(True)

def gen_k2(a, cfg):
    K = "quip_s2_kernel"
    a.lines.append(f".globl {K}\n.p2align 8\n.type {K},@function")
    a.L(K)
    a.I("s_cmp_ge_u32 s2, 256")
    a.I("s_cbranch_scc1 L_k2_exit")
    stamp_begin(a, cfg)
    a.I("s_load_dwordx2 s[4:5], s[0:1], 48")
    a.I("s_load_dwordx2 s[6:7], s[0:1], 64")
    a.I("s_and_b32 s20, s2, 7")
    a.I("s_lshr_b32 s21, s2, 3")
    a.I("s_lshr_b32 s22, s20, 1")
    a.I("s_and_b32 s23, s20, 1")
    a.I("s_and_b32 s25, s21, 3")
    a.I("s_lshl_b32 s26, s22, 2")
    a.I("s_add_u32 s25, s25, s26")
    a.I("s_lshr_b32 s26, s21, 2")
    a.I("s_lshl_b32 s27, s23, 3")
    a.I("s_add_u32 s26, s26, s27")
    a.I("v_and_b32 v1, 63, v0")
    a.I("v_lshrrev_b32 v2, 6, v0")
    a.I("s_nop 0")
    a.I("v_readfirstlane_b32 s24, v2")
    a.I("v_lshlrev_b32 v3, 4, v1")
    a.I("s_lshl_b32 s40, s25, 3")
    a.I("s_lshl_b32 s41, s24, 1")
    a.I("s_add_u32 s40, s40, s41")
    a.I("s_mul_i32 s41, s40, 20480")
    if XR_OFF:
        a.I(f"s_add_u32 s41, s41, {XR_OFF}")
    a.I("v_add_u32 v4, s41, v3")
    a.I("v_add_u32 v5, 20480, v4")
    a.I("s_and_b32 s42, s24, 1")
    a.I("s_mul_i32 s42, s42, 60")
    a.I("s_lshr_b32 s43, s24, 1")
    a.I("s_add_u32 s42, s42, s43")
    a.I("s_lshl_b32 s42, s42, 10")
    a.I("v_add_u32 v6, s42, v3")
    a.I("v_add_u32 v11, 20480, v6")
    a.I("v_add_u32 v12, 40960, v6")
    a.I("s_mul_i32 s42, s24, 3072")
    a.I("s_mul_i32 s43, s26, 122880")
    a.I(f"s_add_u32 s43, s43, {TT_OFF}")
    a.I("v_add_u32 v8, 61440, v3")
    a.I("v_and_b32 v9, 15, v1")
    a.I("s_lshl_b32 s41, s40, 4")
    a.I("v_add_u32 v9, s41, v9")
    a.I("s_movk_i32 s41, 3072")
    a.I("v_mul_lo_u32 v9, v9, s41")
    a.I("v_bfe_u32 v10, v1, 4, 1")
    a.I("v_lshl_add_u32 v9, v10, 5, v9")
    a.I("v_lshrrev_b32 v10, 5, v1")
    a.I("v_lshl_add_u32 v9, v10, 4, v9")
    a.I("s_mul_i32 s41, s26, 192")
    a.I("v_add_u32 v9, s41, v9")
    a.I("v_add_u32 v10, 49152, v9")
    for n in range(1, 5):
        a.I(f"s_movk_i32 s{44+n}, {4096*n}")
    a.I("s_waitcnt lgkmcnt(0)")
    srd(a, 28, 6, WS_BYTES)
    srd(a, 32, 4, 6291456)
    ACC = 16; RING = 64; NR = 12
    NCH = 10
    def load_groups(c):
        g = []
        g.append([f"s_add_u32 m0, s42, {c*12288}", "s_nop 0",
                  "buffer_load_dwordx4 v6, s[28:31], s43 offen lds"])
        g.append([f"s_add_u32 m0, s42, {c*12288+1024}", "s_nop 0", "buffer_load_dwordx4 v11, s[28:31], s43 offen lds"])
        g.append([f"s_add_u32 m0, s42, {c*12288+2048}", "s_nop 0", "buffer_load_dwordx4 v12, s[28:31], s43 offen lds", "s_add_u32 s43, s43, 2048"])
        for pp in range(2):
            p = 2 * c + pp
            so = "0" if p < 4 else f"s{44 + p // 4}"
            for u in range(2):
                g.append([f"buffer_load_dwordx4 {vr(8*p+4*u, 4, 'a')}, v{4+u}, s[28:31], {so} offen offset:{(p % 4) * 1024}"])
        return g
    UP = cfg.get("k2_up", 3)
    DEPTH = 8
    for c in range(UP):
        for g in load_groups(c):
            for x in g:
                a.I(x)
    items = []
    for p in range(20):
        for t in range(6):
            it = {}
            def reads(reg, p=p, t=t):
                off = (p * 6 + t) * 1024
                if off >= 61440:
                    return [f"ds_read_b128 {vr(reg)}, v8 offset:{off-61440}"]
                return [f"ds_read_b128 {vr(reg)}, v3 offset:{off}"]
            def mfma(reg, p=p, t=t):
                out = []
                for u in range(2):
                    acc = ACC + 4 * (t * 2 + u)
                    cc = "0" if p == 0 else vr(acc)
                    out.append(f"v_mfma_f32_16x16x32_bf16 {vr(acc)}, {vr(reg)}, {vr(8*p+4*u,4,'a')}, {cc}")
                return out
            it["reads"] = reads; it["mfma"] = mfma
            items.append(it)
    pos = [0, 2, 3, 5, 7, 8, 10]
    issue_at = {}
    n_up = 7 * UP
    for c in range(NCH):
        if c + UP < NCH:
            for k, g in enumerate(load_groups(c + UP)):
                it = items[12 * c + pos[k]]
                it.setdefault("post", []).extend(g)
                issue_at[7 * (c + UP) + k] = 12 * c + pos[k]
    for c in range(NCH):
        kproc = max(0, 12 * c - DEPTH + 1)
        issued = n_up + sum(1 for v, at in issue_at.items() if at < kproc)
        need = 7 * (c + 1)
        assert issued >= need
        g = [f"s_waitcnt vmcnt({issued - need})", "s_barrier"]
        if cfg.get("stamp2"):
            g += [f"s_memtime s[{56+2*c}:{57+2*c}]"]
        items[12 * c]["gate"] = g
    rolling(a, items, depth=DEPTH, slots=[RING + 4*i for i in range(NR)])
    a.I("s_nop 7")
    O = RING
    k = 0
    for u in range(2):
        for s in range(3):
            o = O + 4 * k; k += 1
            a0 = ACC + 4 * ((2*s) * 2 + u); a1 = ACC + 4 * ((2*s+1) * 2 + u)
            a.I(f"v_cvt_pk_bf16_f32 v{o}, v{a0}, v{a0+1}")
            a.I(f"v_cvt_pk_bf16_f32 v{o+1}, v{a0+2}, v{a0+3}")
            a.I(f"v_cvt_pk_bf16_f32 v{o+2}, v{a1}, v{a1+1}")
            a.I(f"v_cvt_pk_bf16_f32 v{o+3}, v{a1+2}, v{a1+3}")
            a.I("s_nop 1")
            a.I(f"v_permlane16_swap_b32 v{o}, v{o+2}")
            a.I(f"v_permlane16_swap_b32 v{o+1}, v{o+3}")
            a.I(f"buffer_store_dwordx4 {vr(o)}, v{9+u}, s[32:35], 0 offen offset:{64*s}" + FL[cfg.get("st2f", 2)])
    stamp_end(a, cfg, 1, 6, 24)
    if cfg.get("stamp2"):
        a.I("s_lshl_b32 s88, s2, 2")
        a.I("s_add_u32 s88, s88, s24")
        a.I("s_lshl_b32 s88, s88, 6")
        a.I(f"s_add_u32 s88, s88, {STAMP_OFF + 0x80000}")
        a.I("v_mov_b32 v0, s88")
        for c in range(10):
            a.I(f"s_sub_u32 s89, s{56+2*c}, s82")
            a.I(f"v_mov_b32 v2, s89")
            a.I(f"global_store_dword v0, v2, s[6:7] offset:{4*c}")
        a.I(f"s_sub_u32 s89, s86, s82")
        a.I(f"v_mov_b32 v2, s89")
        a.I(f"global_store_dword v0, v2, s[6:7] offset:40")
    a.L("L_k2_exit")
    a.I("s_endpgm")

def kd(name, nfv, acc_off, sgpr=96, extra=""):
    return f""".p2align 6
.amdhsa_kernel {name}
{extra}  .amdhsa_next_free_vgpr {nfv}
  .amdhsa_next_free_sgpr {sgpr}
  .amdhsa_accum_offset {acc_off}
  .amdhsa_group_segment_fixed_size 0
  .amdhsa_kernarg_size 72
  .amdhsa_user_sgpr_count 2
  .amdhsa_user_sgpr_kernarg_segment_ptr 1
  .amdhsa_system_sgpr_workgroup_id_x 1
.end_amdhsa_kernel
"""

def gen(cfg):
    a = Asm()
    out = HEADER
    out += "; @launch kernel=quip_s1_kernel grid=(256,1,1) block=(576,1,1) lds=163840\n"
    out += "; @launch kernel=quip_s2_kernel grid=(256,1,1) block=(256,1,1) lds=122880\n"
    out += '.amdgcn_target "amdgcn-amd-amdhsa--gfx950"\n.text\n'
    gen_k1(a, cfg)
    gen_k2(a, cfg)
    out += a.text()
    out += '.section .rodata,"a"\n'
    out += kd("quip_s1_kernel", 168, 168, 100, "  .amdhsa_float_denorm_mode_32 3\n")
    out += kd("quip_s2_kernel", 288, 128)
    return out

if __name__ == "__main__":
    cfg = {}
    outp = sys.argv[1] if len(sys.argv) > 1 else "standalone__weight_only_int_quip__prompt.s"
    for kv in sys.argv[2:]:
        k, v = kv.split("=")
        cfg[k] = int(v)
    open(outp, "w").write(gen(cfg))
```

```python
import sys

HEADER = open("standalone__weight_only_int_quip__prompt.s.ref").read().split("; Override launch")[0]

XR_OFF = 0
TT_OFF = 0x300000
WS_BYTES = 0x500000

class Asm:
    def __init__(self):
        self.lines = []
    def I(self, s):
        self.lines.append("    " + s)
    def L(self, s):
        self.lines.append(s + ":")
    def C(self, s):
        self.lines.append("    ; " + s)
    def text(self):
        return "\n".join(self.lines) + "\n"

def vr(b, n=4, p="v"):
    return f"{p}[{b}:{b+n-1}]" if n > 1 else f"{p}{b}"

STAMP_OFF = 0x600000
def stamp_begin(a, cfg, B=80):
    if cfg.get("stamp"):
        a.I(f"s_memrealtime s[{B}:{B+1}]")
        a.I(f"s_memtime s[{B+2}:{B+3}]")

def stamp_end(a, cfg, kidx, ws_lo, wave_sgpr, B=80):
    if cfg.get("stamp"):
        a.I("s_waitcnt vmcnt(0) lgkmcnt(0)")
        a.I(f"s_memrealtime s[{B+4}:{B+5}]")
        a.I(f"s_memtime s[{B+6}:{B+7}]")
        a.I(f"s_lshl_b32 s{B+8}, s2, 3")
        a.I(f"s_add_u32 s{B+8}, s{B+8}, s{wave_sgpr}")
        a.I(f"s_lshl_b32 s{B+8}, s{B+8}, 5")
        a.I(f"s_add_u32 s{B+8}, s{B+8}, {STAMP_OFF + kidx*0x40000}")
        a.I(f"s_getreg_b32 s{B+9}, hwreg(HW_REG_XCC_ID)")
        a.I("s_waitcnt lgkmcnt(0)")
        a.I(f"v_mov_b32 v0, s{B+8}")
        for k in range(8):
            a.I(f"v_mov_b32 v{2+k}, s{B+k}")
        a.I(f"v_mov_b32 v5, s{B+9}")
        a.I(f"global_store_dwordx4 v0, v[2:5], s[{ws_lo}:{ws_lo+1}]")
        a.I(f"global_store_dwordx4 v0, v[6:9], s[{ws_lo}:{ws_lo+1}] offset:16")

def gate_stamps_out(a, cfg, n, base_sgpr, ws_lo, wave_sgpr, off, B=88):
    a.I(f"s_lshl_b32 s{B+8}, s2, 3")
    a.I(f"s_add_u32 s{B+8}, s{B+8}, s{wave_sgpr}")
    a.I(f"s_lshl_b32 s{B+8}, s{B+8}, 6")
    a.I(f"s_add_u32 s{B+8}, s{B+8}, {off}")
    a.I(f"v_mov_b32 v0, s{B+8}")
    for c in range(n):
        a.I(f"s_sub_u32 s{B+9}, s{base_sgpr+2*c}, s{B+2}")
        a.I(f"v_mov_b32 v2, s{B+9}")
        a.I(f"global_store_dword v0, v2, s[{ws_lo}:{ws_lo+1}] offset:{4*c}")
    a.I(f"s_sub_u32 s{B+9}, s{B+6}, s{B+2}")
    a.I(f"v_mov_b32 v2, s{B+9}")
    a.I(f"global_store_dword v0, v2, s[{ws_lo}:{ws_lo+1}] offset:{4*n}")

def srd(a, d, base, nbytes):
    a.I(f"s_mov_b32 s{d}, s{base}")
    a.I(f"s_and_b32 s{d+1}, s{base+1}, 0xffff")
    a.I(f"s_mov_b32 s{d+2}, {nbytes}")
    a.I(f"s_mov_b32 s{d+3}, 0x00020000")

def rolling(a, items, depth, slots):
    n = len(items)
    issued = 0
    nreads = []
    for k in range(n):
        while issued < min(n, k + depth):
            it = items[issued]
            if it.get("gate"):
                for g in it["gate"]:
                    a.I(g)
            rd = it["reads"](slots[issued % len(slots)])
            for r in rd:
                a.I(r)
            nreads.append(len(rd))
            issued += 1
        cnt = sum(nreads[k + 1:issued])
        assert cnt <= 15
        a.I(f"s_waitcnt lgkmcnt({cnt})")
        for m in items[k]["mfma"](slots[k % len(slots)]):
            a.I(m)
        for m in items[k].get("post", []):
            a.I(m)

def merge(comp, loads, policy):
    if not loads:
        return list(comp)
    if policy == 0:
        return [x for g in loads for x in g] + list(comp)
    if policy == 1:
        return list(comp) + [x for g in loads for x in g]
    n = len(comp); m = len(loads)
    out = []
    pos = [(k * n) // m for k in range(m)] if policy == 2 else [((k + 1) * n) // m for k in range(m)]
    li = 0
    for i in range(n + 1):
        while li < m and pos[li] == i:
            out.extend(loads[li]); li += 1
        if i < n:
            out.append(comp[i])
    return out

class LdsQ:
    def __init__(self, out):
        self.out = out; self.q = []
    def issue(self, instr, tag):
        if len(self.q) >= 15:
            self.wait_n(14)
        self.out.append(instr); self.q.append(tag)
    def wait_n(self, n):
        self.out.append(f"s_waitcnt lgkmcnt({n})")
        self.q = self.q[len(self.q) - n:] if n else []
    def need(self, tag):
        idx = [i for i, t in enumerate(self.q) if t == tag]
        if idx:
            self.wait_n(len(self.q) - 1 - idx[-1])

FL = ["", " sc1", " nt", " sc0 sc1", " sc0"]

def gen_k1(a, cfg):
    K = "quip_s1_kernel"
    mp = cfg.get("map", 1)
    a.lines.append(f".globl {K}\n.p2align 8\n.type {K},@function")
    a.L(K)
    a.I("s_cmp_ge_u32 s2, 256")
    a.I("s_cbranch_scc1 L_k1_exit")
    stamp_begin(a, cfg, 88)
    a.I("s_load_dwordx8 s[4:11], s[0:1], 0")
    a.I("s_load_dwordx4 s[12:15], s[0:1], 32")
    a.I("s_load_dwordx2 s[16:17], s[0:1], 64")
    a.I("s_lshr_b32 s21, s2, 3")
    a.I("s_and_b32 s20, s2, 7")
    a.I("v_and_b32 v1, 63, v0")
    a.I("v_lshrrev_b32 v2, 6, v0")
    a.I("v_and_b32 v3, 15, v1")
    a.I("v_readfirstlane_b32 s24, v2")
    a.I("v_lshrrev_b32 v2, 4, v1")
    if cfg.get("cpf", 1):
        a.I("s_getpc_b64 s[40:41]")
        a.L("L_k1_pc")
        a.I("v_subrev_u32 v4, 64, v0")
        a.I("v_lshl_add_u32 v5, s21, 4, v4")
        a.I("v_lshlrev_b32 v5, 7, v5")
        a.I("v_cmp_gt_u32 vcc, 16, v4")
        a.I("s_mov_b32 s42, L_code_end-L_k1_pc")
        a.I("v_cmp_gt_u32 s[44:45], s42, v5")
        a.I("s_and_b64 exec, vcc, s[44:45]")
        a.I("global_load_dword v23, v5, s[40:41]")
        a.I("s_mov_b64 exec, -1")
    if mp:
        a.I("s_lshr_b32 s22, s21, 3")
        a.I(f"s_add_u32 s23, s21, {cfg.get('c8rot', 0)}")
        a.I("s_and_b32 s23, s23, 7")
        a.I("s_cmp_ge_u32 s20, 6")
    else:
        a.I("s_lshr_b32 s22, s20, 1")
        a.I("s_and_b32 s23, s20, 1")
        a.I("s_cmp_ge_u32 s21, 24")
    a.I("s_cbranch_scc1 L_k1_roleA")
    gen_k1_b(a, cfg)
    a.L("L_k1_roleA")
    gen_k1_a(a, cfg)
    a.L("L_k1_exit")
    a.I("s_endpgm")

def lagged(a, cfg, grans, N, stampf):
    flat = []; ends = []
    for g in grans:
        flat += g; ends.append(len(flat))
    nb = 0
    Nf = N if callable(N) else (lambda g: N)
    for k in range(len(flat) + 1):
        while nb < len(grans) and (k == len(flat) or k >= ends[nb] + Nf(nb)):
            a.I(f"s_waitcnt vmcnt({k - ends[nb]})")
            a.I("s_barrier")
            for x in stampf(nb): a.I(x)
            nb += 1
        if k < len(flat):
            for x in flat[k]: a.I(x)
            if cfg.get("probe") and k in (0, 4, 7, 15, 23, 31):
                n = (0, 4, 7, 15, 23, 31).index(k)
                a.I("s_waitcnt vmcnt(0)")
                a.I(f"s_memtime s[{66+2*n}:{67+2*n}]")

def early(a, cfg, grans, R, stampf):
    n = len(grans)
    for g in range(min(R - 1, n)):
        for grp in grans[g]:
            for x in grp: a.I(x)
    for g in range(n):
        cnt = sum(len(grans[k]) for k in range(g + 1, min(n, g + R - 1)))
        a.I(f"s_waitcnt vmcnt({cnt})")
        a.I("s_barrier")
        for x in stampf(g): a.I(x)
        if g + R - 1 < n:
            for grp in grans[g + R - 1]:
                for x in grp: a.I(x)

def st2(cfg, k, base=64):
    if cfg.get("stamp2") and k < 12:
        return [f"s_memtime s[{base+2*k}:{base+2*k+1}]"]
    return []

def fin(a, cfg, n, ws=19):
    stamp_end(a, cfg, 0, 16, ws, 88)
    if cfg.get("stamp2"):
        for k in range(n, 12):
            a.I(f"s_mov_b32 s{64+2*k}, s90")
        gate_stamps_out(a, cfg, 12, 64, 16, ws, STAMP_OFF + 0x100000)
    a.I("s_endpgm")

def gen_k1_a(a, cfg):
    nt_x = " nt" if cfg.get("nt_x") else ""
    nt_u = " nt" if cfg.get("nt_u") else ""
    stf = FL[cfg.get("sta", 0)]
    mp = cfg.get("map", 1)
    SL = 43008
    a.C("role A: xr = x @ U, tile 256(m) x 80(e); waves 0-3 compute (64 x 80), wave 4 loads")
    if cfg.get("a_off"):
        a.I("s_endpgm")
    if mp:
        a.I("s_mov_b32 s25, s23")
        a.I("s_sub_u32 s20, s20, 6")
        a.I("s_lshl_b32 s20, s20, 2")
        a.I("s_add_u32 s20, s20, s22")
    else:
        a.I("s_sub_u32 s25, s21, 24")
        a.I("s_mov_b32 s22, 0")
    a.I("s_and_b32 s26, s25, 1")
    apf = cfg.get("a_pf", 1)
    a.I(f"s_cmp_gt_u32 s24, {4 if apf else 5}")
    a.I("s_cbranch_scc1 L_k1_exit")
    a.I("s_sub_u32 s19, s24, 1")
    a.I("s_cmp_lt_u32 s19, 4")
    a.I("s_cbranch_scc1 L_k1a_comp")
    a.I("s_cmp_eq_u32 s24, 0")
    a.I("s_cselect_b32 s19, 4, 5")
    VX = 10; VU = 14
    a.I("s_movk_i32 s41, 1280")
    a.I("s_lshl_b32 s42, s20, 8")
    a.I("v_lshrrev_b32 v7, 3, v1")
    a.I("v_add_u32 v6, s42, v7")
    a.I(f"v_mul_lo_u32 v{VX}, v6, s41")
    a.I("v_and_b32 v7, 6, v7")
    a.I("v_and_b32 v6, 7, v1")
    a.I("v_xor_b32 v6, v6, v7")
    a.I(f"v_lshl_add_u32 v{VX}, v6, 4, v{VX}")
    for b in range(1, 4):
        a.I(f"v_add_u32 v{VX+b}, {b*(10240-1024)}, v{VX}")
    a.I("s_mul_i32 s46, s25, 160")
    for n in range(5):
        a.I(f"v_add_u32 v6, {64*n}, v1")
        a.I(f"v_mul_u32_u24 v7, 205, v6")
        a.I(f"v_lshrrev_b32 v7, 11, v7")
        a.I(f"v_mul_u32_u24 v8, 10, v7")
        a.I(f"v_sub_u32 v8, v6, v8")
        a.I(f"v_lshrrev_b32 v6, 1, v7")
        a.I(f"v_xor_b32 v6, v6, v7")
        a.I(f"v_and_b32 v6, 4, v6")
        a.I(f"v_mul_u32_u24 v6, 3, v6")
        a.I(f"v_xor_b32 v7, v7, v6")
        a.I(f"v_mul_u32_u24 v7, 1280, v7")
        a.I(f"v_lshl_add_u32 v8, s26, 1, v8")
        a.I(f"v_subrev_u32 v6, 10, v8")
        a.I(f"v_min_u32 v8, v8, v6")
        a.I(f"v_lshl_add_u32 v7, v8, 4, v7")
        a.I(f"v_add_u32 v{VU+n}, s46, v7")
        a.I(f"v_add_u32 v{VU+5+n}, {40960 - ((5+n)%4)*1024}, v{VU+n}")
        if n % 4:
            a.I(f"v_subrev_u32 v{VU+n}, {(n%4)*1024}, v{VU+n}")
    for gam in range(8):
        a.I(f"s_add_u32 s43, s25, {gam}")
        a.I(f"s_and_b32 s43, s43, 7")
        a.I(f"s_mul_i32 s{56+gam}, s43, 40960")
    rot = cfg.get("a_rot", 0)
    if rot:
        a.I(f"s_mul_i32 s44, s22, {rot-1}")
        a.I("s_add_u32 s44, s44, s25")
        a.I("s_cmp_ge_u32 s44, 10")
        a.I("s_cselect_b32 s45, 10, 0")
        a.I("s_sub_u32 s44, s44, s45")
    else:
        a.I("s_mov_b32 s44, 0")
    if apf:
        a.I("s_lshl_b32 s43, s25, 5")
        a.I("s_add_u32 s43, s43, s42")
        a.I("v_and_b32 v6, 31, v1")
        a.I("v_add_u32 v6, s43, v6")
        a.I("v_mul_u32_u24 v30, 1280, v6")
        a.I("v_lshrrev_b32 v6, 5, v1")
        a.I("v_lshl_add_u32 v30, v6, 7, v30")
        a.I("s_lshl_b32 s43, s21, 13")
        a.I("v_lshl_add_u32 v31, v1, 7, s43")
        a.I("s_mov_b32 s47, 0x40000")
        a.I("s_mov_b32 s48, 0x80000")
        a.I("s_mov_b32 s49, 0xc0000")
    a.I("s_waitcnt lgkmcnt(0)")
    srd(a, 28, 4, 2621440)
    srd(a, 32, 12, 819200)
    def apre(ns):
        o = []
        for n in ns:
            o.append([f"buffer_load_dword v32, v30, s[28:31], 0 offen offset:{256*n}"])
            if n < 4:
                o.append([f"buffer_load_dword v32, v31, s[32:35], {['0','s47','s48','s49'][n]} offen"])
        return o
    def stage(P, lead):
        base = (P % 3) * SL
        g = []
        pre = ["s_lshl_b32 s45, s44, 7", "s_mul_i32 s46, s44, 81920"]
        for b in (range(32) if lead == 2 else range(4) if lead else range(4, 32)):
            ld = f"buffer_load_dwordx4 v{VX+b%4}, s[28:31], s54 offen offset:{(b%4)*1024}{nt_x} lds"
            if b % 4 == 0:
                g.append([f"s_mov_b32 m0, {base + b*1024}", f"s_add_u32 s54, s45, s{56+b//4}", ld])
            else:
                g.append([ld])
        for n in (range(10) if lead else []):
            ld = f"buffer_load_dwordx4 v{VU+n}, s[32:35], s46 offen offset:{(n%4)*1024}{nt_u} lds"
            if n % 4 == 0:
                g.append([f"s_mov_b32 m0, {base + 32768 + n*1024}", "s_nop 0", ld])
            else:
                g.append([ld])
        g[0] = pre + g[0]
        g[-1] = g[-1] + ["s_add_u32 s44, s44, 1", "s_cmp_eq_u32 s44, 10", "s_cselect_b32 s44, 0, s44"]
        return g
    if apf:
        st = [stage(P, 2) for P in range(10)]
        if apf == 1:
            st[0] = apre(range(5)) + st[0]
        elif apf == 2:
            st[0] = apre(range(2)) + st[0]
            st[2] = apre(range(2, 5)) + st[2]
        elif apf == 3:
            st[0] = apre(range(3)) + st[0]
            st[3] = apre(range(3, 5)) + st[3]
        lagged(a, cfg, st, cfg.get("a_lag", 40), lambda g: st2(cfg, g))
        fin(a, cfg, 10)
    else:
        a.I("s_cmp_eq_u32 s24, 5")
        a.I("s_cbranch_scc1 L_k1a_lead")
        lagged(a, cfg, [stage(P, 0) for P in range(10)], cfg.get("a_lag", 28), lambda g: st2(cfg, g))
        fin(a, cfg, 10)
        a.L("L_k1a_lead")
        early(a, cfg, [stage(P, 1) for P in range(10)], 3, lambda g: st2(cfg, g))
        fin(a, cfg, 10)
    a.L("L_k1a_comp")
    a.I("s_mov_b32 s24, s19")
    a.I("s_lshl_b32 s40, s20, 4")
    VXR = 10; VT = 14; VST = 16
    a.I("s_lshl_b32 s45, s24, 13")
    a.I("v_and_b32 v6, 6, v3")
    a.I("v_xor_b32 v6, v6, v2")
    a.I("v_lshl_add_u32 v6, v3, 3, v6")
    a.I(f"v_lshl_add_u32 v{VXR}, v6, 4, s45")
    a.I(f"v_xor_b32 v{VXR+1}, 64, v{VXR}")
    a.I(f"v_add_u32 v{VXR+2}, {2*SL}, v{VXR}")
    a.I(f"v_add_u32 v{VXR+3}, {2*SL}, v{VXR+1}")
    a.I("v_lshrrev_b32 v6, 1, v2")
    a.I("v_lshlrev_b32 v6, 4, v6")
    a.I("v_and_b32 v7, 1, v2")
    a.I("v_lshl_add_u32 v6, v7, 2, v6")
    a.I("v_lshrrev_b32 v7, 2, v3")
    a.I("v_add_u32 v6, v6, v7")
    a.I("v_mul_u32_u24 v6, 160, v6")
    a.I("v_and_b32 v7, 3, v3")
    a.I(f"v_lshl_add_u32 v{VT}, v7, 3, v6")
    a.I(f"v_add_u32 v{VT}, 32768, v{VT}")
    a.I(f"v_add_u32 v{VT+1}, {2*SL}, v{VT}")
    a.I("s_mul_i32 s42, s25, 5")
    a.I("s_add_u32 s42, s42, s26")
    a.I("s_lshr_b32 s42, s42, 1")
    a.I("s_mul_i32 s43, s40, 20")
    a.I("s_add_u32 s42, s42, s43")
    a.I("s_lshl_b32 s42, s42, 10")
    if XR_OFF:
        a.I(f"s_add_u32 s42, s42, {XR_OFF}")
    a.I("s_cmp_eq_u32 s26, 0")
    a.I("s_cselect_b32 s43, 3064, 0")
    a.I("s_add_u32 s43, s43, s42")
    a.I("s_sub_u32 s43, s43, 1016")
    a.I(f"v_lshl_add_u32 v{VST}, v1, 4, s42")
    a.I(f"v_lshl_add_u32 v{VST+1}, v1, 4, s43")
    a.I("s_lshl_b32 s41, s24, 1")
    a.I("s_add_u32 s41, s41, s25")
    a.I("s_and_b32 s48, s41, 7")
    a.I("s_mul_i32 s48, s48, 40960")
    a.I("s_add_u32 s49, s48, 20480")
    a.I("s_add_u32 s41, s41, 1")
    a.I("s_and_b32 s50, s41, 7")
    a.I("s_mul_i32 s50, s50, 40960")
    a.I("s_add_u32 s51, s50, 20480")
    a.I("s_waitcnt lgkmcnt(0)")
    srd(a, 36, 16, WS_BYTES)
    ACC = 24; RING = 104; XF = 136
    out = []; L = LdsQ(out)
    DEPTH = cfg.get("a_depth", 4)
    items = [(p, t) for p in range(20) for t in range(5)]
    def issue_item(k):
        p, t = items[k]
        P = p // 2; sl = P % 3
        so = (sl % 2) * SL
        if t == 0:
            if p % 2 == 0:
                L.wait_n(0) if L.q else None
                out.append("s_barrier")
                out.extend(st2(cfg, P))
            for u in range(4):
                L.issue(f"ds_read_b128 {vr(XF + 16*(p&1) + 4*u)}, v{VXR + 2*(sl//2) + (p&1)} offset:{so + u*2048}", ("x", p))
        reg = RING + 4 * (k % 8)
        off = so + (p & 1) * 5120 + t * 32
        L.issue(f"ds_read_b64_tr_b16 {vr(reg,2)}, v{VT + sl//2} offset:{off}", ("u", k))
        L.issue(f"ds_read_b64_tr_b16 {vr(reg+2,2)}, v{VT + sl//2} offset:{off+1280}", ("u", k))
    issued = 0
    for k in range(100):
        while issued < min(100, k + DEPTH):
            issue_item(issued); issued += 1
        p, t = items[k]
        L.need(("u", k))
        reg = RING + 4 * (k % 8)
        for u in range(4):
            acc = ACC + 4 * (5 * u + t)
            c = "0" if p == 0 else vr(acc)
            out.append(f"v_mfma_f32_16x16x32_bf16 {vr(acc)}, {vr(reg)}, {vr(XF + 16*(p&1) + 4*u)}, {c}")
    for x in out:
        a.I(x)
    a.I("s_nop 7")
    k = 0
    for u in range(4):
        so = ["s48", "s49", "s50", "s51"][u]
        for s in range(2):
            o = RING + 4 * k; k += 1
            a0 = ACC + 4 * (5 * u + 2 * s); a1 = a0 + 4
            a.I(f"v_cvt_pk_bf16_f32 v{o}, v{a0}, v{a0+1}")
            a.I(f"v_cvt_pk_bf16_f32 v{o+1}, v{a0+2}, v{a0+3}")
            a.I(f"v_cvt_pk_bf16_f32 v{o+2}, v{a1}, v{a1+1}")
            a.I(f"v_cvt_pk_bf16_f32 v{o+3}, v{a1+2}, v{a1+3}")
            a.I(f"buffer_store_dwordx4 {vr(o)}, v{VST}, s[36:39], {so} offen offset:{s*1024}{stf}")
        o = RING + 4 * k; k += 1
        a0 = ACC + 4 * (5 * u + 4)
        a.I(f"v_cvt_pk_bf16_f32 v{o}, v{a0}, v{a0+1}")
        a.I(f"v_cvt_pk_bf16_f32 v{o+1}, v{a0+2}, v{a0+3}")
        a.I(f"buffer_store_dwordx2 {vr(o,2)}, v{VST+1}, s[36:39], {so} offen{stf}")
    fin(a, cfg, 10)

def make_perm(cfg):
    lf = cfg.get("lf", 2)
    if lf == 0:
        return 4, [(n // 4, n % 4) for n in range(48)]
    if lf == 1:
        def sched(s, w):
            if w == 0:
                if s == 0: return (0, 0)
                if s <= 8: return (s + 3, 0)
                return (11, s - 8)
            if s == 0: return (w, 0)
            return (s - 1, w)
        return 4, [sched(n // 4, n % 4) for n in range(48)]
    if lf == 2:
        seq = [(0, 0), (1, 0), (0, 1), (1, 1)]
        for j in range(6):
            nx = j + 2
            per = []
            if nx < 6: per.append((nx, 0))
            per += [(j, 2), (j, 3), (j, 4)]
            if nx < 6: per.append((nx, 1))
            per += [(j, 5), (j, 6), (j, 7)]
            seq += per
        assert len(seq) == 48 and len(set(seq)) == 48
        return 8, seq
    if lf == 3:
        return 8, [(n // 8, n % 8) for n in range(48)]
    if lf == 4:
        return 4, [(n // 4, n % 4) for n in range(48)]
    if lf == 6:
        seq = [(0, 0), (0, 1), (0, 2), (0, 3), (1, 0), (0, 4), (0, 5), (0, 6)]
        for j in range(1, 6):
            seq += [(j, 1), (j - 1, 7), (j, 2), (j, 4)]
            seq += [(j + 1, 0) if j < 5 else (5, 7), (j, 6), (j, 3), (j, 5)]
        assert len(seq) == 48 and len(set(seq)) == 48
        return 8, seq
    if lf == 7:
        seq = [(0, 0), (0, 1), (0, 2), (0, 3)]
        for j in range(5):
            seq += [(j + 1, 0), (j, 4), (j, 5), (j + 1, 1)]
            seq += [(j + 1, 3), (j, 6), (j, 7), (j + 1, 2)]
        seq += [(5, 4), (5, 5), (5, 6), (5, 7)]
        assert len(seq) == 48 and len(set(seq)) == 48
        return 8, seq
    if lf == 8:
        seq = [(0,0),(0,1),(0,2),(0,3),
               (2,0),(1,1),(1,2),(1,0),
               (3,0),(1,3),(2,1),(2,2),
               (5,0),(2,3),(3,1),(4,0),
               (6,0),(3,2),(3,3),(4,1),
               (8,0),(4,2),(4,3),(7,0),
               (9,0),(5,1),(5,2),(5,3),
               (11,0),(6,1),(6,2),(10,0),
               (6,3)] + [(j, d) for j in range(7, 12) for d in (1, 2, 3)]
        assert len(seq) == 48 and len(set(seq)) == 48
        return 4, seq
    if lf == 9:
        seq = [(0,0),(0,1),(0,2),(0,3),
               (1,0),(1,1),(1,2),(1,3),
               (3,0),(2,1),(2,2),(2,0),
               (4,0),(2,3),(3,1),(3,2),
               (6,0),(3,3),(4,1),(5,0),
               (7,0),(4,2),(4,3),(5,1),
               (9,0),(5,2),(5,3),(8,0),
               (10,0),(6,1),(6,2),(6,3),
               (11,0),(7,1),(7,2),(7,3)] + [(j, d) for j in range(8, 12) for d in (1, 2, 3)]
        assert len(seq) == 48 and len(set(seq)) == 48
        return 4, seq
    if lf == 10:
        seq = [(j, 0) for j in range(12)] + [(j, d) for j in range(12) for d in (1, 2, 3)]
        return 4, seq
    if lf == 11:
        f = [(j, d) for j in range(12) for d in (1, 2, 3)]
        seq = [(j, 0) for j in range(6)] + f[:6] + [(j, 0) for j in range(6, 12)] + f[6:]
        return 4, seq
    if lf == 12:
        f = [(j, d) for j in range(12) for d in (1, 2, 3)]
        seq = [(j, 0) for j in range(4)] + f[:4] + [(j, 0) for j in range(4, 8)] + f[4:12] + [(j, 0) for j in range(8, 12)] + f[12:]
        return 4, seq
    if lf == 13:
        f = [(j, d) for j in range(12) for d in (1, 2, 3)]
        seq = [(j, 0) for j in range(8)] + f[:8] + [(j, 0) for j in range(8, 12)] + f[8:]
        return 4, seq
    if lf == 14:
        seq = [(j, 0) for j in range(6)] + [(j, 1) for j in range(6)] + [(j, d) for j in range(6) for d in range(2, 8)]
        return 8, seq
    if lf == 20:
        seq = [(0,0),(1,0),(0,2),(0,4),
               (0,1),(1,1),(2,0),(0,6),
               (1,2),(1,4),(1,6),(0,3),
               (0,5),(0,7),(2,1),(3,0),
               (1,3),(1,5),(1,7),(2,2),
               (2,4),(2,6),(3,1),(4,0),
               (2,3),(2,5),(2,7),(3,2),
               (3,4),(3,6),(4,1),(5,0),
               (3,3),(3,5),(3,7),(4,2),
               (4,4),(4,6),(5,1),(4,3),
               (4,5),(4,7),(5,2),(5,4),
               (5,6),(5,3),(5,5),(5,7)]
        assert len(seq) == 48 and len(set(seq)) == 48
        return 8, seq
    if lf == 21:
        seq = [(0,0),(1,0),(2,0),(0,2),
               (0,4),(0,1),(1,1),(2,1),
               (0,6),(1,2),(1,4),(1,6),
               (2,2),(2,4),(2,6),(3,0),
               (0,3),(0,5),(0,7),(1,3),
               (1,5),(1,7),(3,1),(4,0),
               (2,3),(2,5),(2,7),(3,2),
               (3,4),(3,6),(4,1),(5,0),
               (3,3),(3,5),(3,7),(4,2),
               (4,4),(4,6),(5,1),(4,3),
               (4,5),(4,7),(5,2),(5,4),
               (5,6),(5,3),(5,5),(5,7)]
        assert len(seq) == 48 and len(set(seq)) == 48
        return 8, seq
    if lf == 22:
        seq = [(0,0),(0,2),(0,4),(1,0),
               (0,1),(0,6),(2,0),(1,2),
               (1,4),(1,6),(1,1),(0,3),
               (0,5),(0,7),(2,1),(3,0),
               (2,2),(2,4),(1,3),(1,5),
               (1,7),(2,6),(3,1),(4,0),
               (2,3),(2,5),(2,7),(3,2),
               (3,4),(3,6),(4,1),(5,0),
               (3,3),(3,5),(3,7),(4,2),
               (4,4),(4,6),(5,1),(4,3),
               (4,5),(4,7),(5,2),(5,4),
               (5,6),(5,3),(5,5),(5,7)]
        assert len(seq) == 48 and len(set(seq)) == 48
        return 8, seq
    if lf == 5:
        seq = [(0, 0), (0, 2), (1, 0), (1, 2), (2, 0), (0, 1), (0, 3), (1, 1)]
        for s in range(2, 11):
            seq += [(s + 1, 0), (s - 1, 3), (s, 1), (s, 2)]
        seq += [(10, 3), (11, 1), (11, 2), (11, 3)]
        assert len(seq) == 48 and len(set(seq)) == 48
        return 4, seq

def xoff(a, cfg, d, t, mul):
    xrot = cfg.get("xrot", 0)
    if xrot == 1:
        tab = sum(((3 * (x & 1) + 2 * (x >> 1)) % 6) << (4 * x) for x in range(6))
        a.I(f"s_lshl_b32 {t}, s20, 2")
        a.I(f"s_lshr_b32 {d}, {tab}, {t}")
        a.I(f"s_and_b32 {d}, {d}, 7")
        a.I(f"s_mul_i32 {d}, {d}, {8*mul}")
    else:
        a.I(f"s_mul_i32 {d}, s20, {xrot*mul}")

def gen_k1_b(a, cfg):
    nt_q = " nt" if cfg.get("nt_q") else ""
    nt_v = " nt" if cfg.get("nt_v") else ""
    stf = FL[cfg.get("stb", 0)]
    mp = cfg.get("map", 1)
    GA = [0, 57344]; GB = [32768, 90112]; TBL = 114688
    lf = cfg.get("lf", 2)
    NC, perm = make_perm(cfg)
    xrot = cfg.get("xrot", 0)
    a.C("role B: T = dequant(qw) @ V, tile 80(d) x 64(g); waves 0-3 compute (k split), wave 4 loads")
    if mp:
        a.I("s_and_b32 s25, s20, 1")
        a.I("s_lshl_b32 s25, s25, 2")
        a.I("s_add_u32 s25, s25, s22")
        a.I("s_lshr_b32 s26, s20, 1")
        a.I("s_lshl_b32 s26, s26, 3")
        a.I("s_add_u32 s26, s26, s23")
        if NC == 8:
            a.I("s_lshl_b32 s42, s22, 1")
            a.I("s_add_u32 s42, s42, s23")
        else:
            if cfg.get("cls", 0):
                a.I("s_lshr_b32 s42, s23, 1")
                a.I("s_add_u32 s42, s42, s22")
            else:
                a.I("s_add_u32 s42, s22, s23")
    else:
        a.I("s_mul_i32 s26, s21, 43")
        a.I("s_lshr_b32 s26, s26, 8")
        a.I("s_mul_i32 s27, s26, 6")
        a.I("s_sub_u32 s27, s21, s27")
        a.I("s_add_u32 s42, s26, s27")
        a.I("s_and_b32 s25, s22, 1")
        a.I("s_lshl_b32 s25, s25, 2")
        a.I("s_add_u32 s25, s25, s26")
        a.I("s_lshl_b32 s26, s23, 1")
        a.I("s_lshr_b32 s40, s22, 1")
        a.I("s_add_u32 s26, s26, s40")
        a.I("s_mul_i32 s26, s26, 6")
        a.I("s_add_u32 s26, s26, s27")
    if not lf:
        a.I("s_mov_b32 s42, 0")
    a.I("s_and_b32 s27, s25, 1")
    a.I("s_cmp_eq_u32 s24, 0")
    a.I("s_cbranch_scc1 L_k1b_ld")
    VR = 10; VB = 14; VST = 18; VTL = 21; VT = 22
    VP = 4
    SZ = 24
    AF = 56
    BF = 64
    RAW = 80
    ACC = 104
    a.I("s_sub_u32 s18, s24, 1")
    a.I("s_and_b32 s24, s18, 3")
    a.I("v_subrev_u32 v0, 64, v0")
    a.I("s_mul_i32 s40, s25, 5")
    a.I("s_lshr_b32 s40, s40, 1")
    a.I("s_mul_i32 s43, s40, 3072")
    a.I(f"v_lshl_add_u32 v4, v0, 4, s43")
    a.I("s_movk_i32 s44, 8192")
    a.I("s_mov_b32 s58, 61440")
    a.I("s_mov_b32 s59, 0x00020000")
    a.I("s_mov_b32 s62, 61440")
    a.I("s_mov_b32 s63, 0x00020000")
    a.I("s_waitcnt lgkmcnt(0)")
    a.I("s_mov_b32 s56, s8")
    a.I("s_and_b32 s57, s9, 0xffff")
    a.I("s_mov_b32 s60, s10")
    a.I("s_and_b32 s61, s11, 0xffff")
    a.I(f"buffer_load_dwordx4 {vr(RAW)}, v4, s[56:59], 0 offen")
    a.I(f"buffer_load_dwordx4 {vr(RAW+4)}, v4, s[60:63], 0 offen")
    a.I("s_cmp_lg_u32 s18, 0")
    a.I("s_cbranch_scc1 L_k1b_cpre")
    a.I(f"buffer_load_dwordx4 {vr(RAW+8)}, v4, s[56:59], s44 offen")
    a.I(f"buffer_load_dwordx4 {vr(RAW+12)}, v4, s[60:63], s44 offen")
    a.I("s_branch L_k1b_cpre")
    a.L("L_k1b_ld")
    a.I("s_mov_b32 s19, 4")
    VQ = 10; VV = 20
    a.I("v_lshrrev_b32 v4, 3, v1")
    a.I(f"v_mul_u32_u24 v{VV}, 3072, v4")
    a.I("v_bfe_u32 v6, v1, 1, 2")
    a.I("v_xor_b32 v6, v6, v2")
    a.I(f"v_lshl_add_u32 v{VV}, v6, 5, v{VV}")
    a.I("v_and_b32 v6, 1, v1")
    a.I(f"v_lshl_add_u32 v{VV}, v6, 4, v{VV}")
    a.I("s_lshl_b32 s43, s26, 7")
    a.I(f"v_add_u32 v{VV}, s43, v{VV}")
    for b in range(1, 4):
        a.I(f"v_add_u32 v{VV+b}, {b*(24576-1024)}, v{VV}")
    a.I(f"v_mul_u32_u24 v5, 6144, v4")
    a.I("v_and_b32 v6, 6, v4")
    a.I("v_and_b32 v7, 7, v1")
    a.I("v_xor_b32 v6, v6, v7")
    a.I(f"v_lshl_add_u32 v5, v6, 4, v5")
    a.I("s_mul_i32 s43, s25, 491520")
    a.I("s_cmp_eq_u32 s27, 0")
    a.I(f"s_cselect_b32 s60, 0, {3*98304}")
    a.I(f"s_cselect_b32 s61, 98304, 0")
    a.I(f"s_cselect_b32 s62, {4*98304}, 0")
    a.I(f"s_add_u32 s61, s61, 98304")
    for r in range(3):
        a.I(f"s_add_u32 s{60+r}, s{60+r}, s43")
        a.I(f"v_add_u32 v{VQ+4*r}, s{60+r}, v5")
        for u in range(1, 4 if r < 2 else 2):
            a.I(f"v_add_u32 v{VQ+4*r+u}, {u*(49152-1024)}, v{VQ+4*r}")
    NJ = 48 // NC
    for d in range(NC):
        a.I(f"s_add_u32 s43, s42, {d}")
        a.I(f"s_and_b32 s43, s43, {NC-1}")
        a.I(f"s_lshl_b32 s{44+d}, s43, 7")
    xoff(a, cfg, "s43", "s40", 128)
    for j in range(NJ):
        a.I(f"s_add_u32 s{52+j}, s43, {j*NC*128}")
        if xrot:
            a.I(f"s_cmp_ge_u32 s{52+j}, {48*128}")
            a.I(f"s_cselect_b32 s40, {48*128}, 0")
            a.I(f"s_sub_u32 s{52+j}, s{52+j}, s40")
    a.I("s_waitcnt lgkmcnt(0)")
    if cfg.get("stamp2"):
        a.I("s_memtime s[86:87]")
    srd(a, 32, 14, 4718592)
    srd(a, 28, 6, 3932160)
    def gran(g, ws):
        s = g // 2; out = []
        for w in ws:
            j, d = perm[4 * s + w]
            kq = f"s_add_u32 s42, s{44+d}, s{52+j}"
            if g % 2 == 0:
                base = GA[s & 1] + w * 8192
                q = [f"buffer_load_dwordx4 v{VQ+u}, s[28:31], s42 offen offset:{u*1024}{nt_q} lds" for u in range(4)]
                v = [f"buffer_load_dwordx4 v{VV+b}, s[32:35], s41 offen offset:{b*1024}{nt_v} lds" for b in range(4)]
                out.append([f"s_mov_b32 m0, {base + 4096}", kq, q[0]])
                out += [[q[1]], [q[2]], [q[3]]]
                out.append([f"s_mov_b32 m0, {base}", "s_mul_i32 s41, s42, 768", v[0]])
                out += [[v[1]], [v[2]], [v[3]]]
            else:
                base = GB[s & 1] + w * 6144
                q = [f"buffer_load_dwordx4 v{VQ+4+u}, s[28:31], s42 offen offset:{(u%4)*1024}{nt_q} lds" for u in range(6)]
                out.append([f"s_mov_b32 m0, {base}", kq, q[0]])
                out += [[q[1]], [q[2]], [q[3]]]
                out.append([f"s_mov_b32 m0, {base + 4096}", "s_nop 0", q[4]])
                out += [[q[5]]]
        if cfg.get("b_noload"):
            out = [[x for x in grp if not x.startswith("buffer")] for grp in out]
        return out
    def gran2(g):
        s = g // 2; out = []
        isq = lambda w: perm[4*s+w][1] == 0
        isv = lambda w: perm[4*s+w][1] <= 1
        first = s in cfg.get("front", (0,))
        if g % 2 == 0:
            items = [(w, p) for w in range(4) for p in "qv"]
            miss = [it for it in items if (isq(it[0]) if it[1] == "q" else isv(it[0]))]
            hit = [it for it in items if it not in miss]
            miss.sort(key=lambda it: (isq(it[0]), it[0], it[1] == "q"))
            items = miss + hit if first else hit + miss
            have = None
            for w, p in items:
                j, d = perm[4 * s + w]
                kq = f"s_add_u32 s42, s{44+d}, s{52+j}"
                base = GA[s & 1] + w * 8192
                pre = [] if have == w else [kq]
                have = w
                if p == "q":
                    q = [f"buffer_load_dwordx4 v{VQ+u}, s[28:31], s42 offen offset:{u*1024}{nt_q} lds" for u in range(4)]
                    out.append([f"s_mov_b32 m0, {base + 4096}"] + (pre or ["s_nop 0"]) + [q[0]])
                    out += [[q[1]], [q[2]], [q[3]]]
                else:
                    v = [f"buffer_load_dwordx4 v{VV+b}, s[32:35], s41 offen offset:{b*1024}{nt_v} lds" for b in range(4)]
                    out.append(pre + [f"s_mov_b32 m0, {base}", "s_mul_i32 s41, s42, 768", v[0]])
                    out += [[v[1]], [v[2]], [v[3]]]
            return out
        ws = [w for w in range(4) if isq(w)] + [w for w in range(4) if not isq(w)]
        return gran(g, ws)
    stf_ = lambda g: st2(cfg, g // 2) if g % 2 == 0 and g < 22 else []
    blag = cfg.get("b_lag", 40); blag0 = cfg.get("b_lag0", 50); bn0 = cfg.get("b_n0", 4)
    od = lambda g: ([1, 2, 3, 0] if g % 2 == 0 else [0, 1, 2, 3])
    if lf in (8, 9):
        od = lambda g: [1, 2, 3, 0] if g % 2 == 0 else [0, 3, 1, 2]
    if lf == 7:
        od = lambda g: [1, 2, 3, 0] if (g % 2 == 0 or (g // 2) % 2 == 0) else [0, 3, 1, 2]
    def last():
        s = 11; g22 = []; g22b = []; g23 = []
        for w in range(4):
            j, d = perm[4 * s + w]
            kq = f"s_add_u32 s42, s{44+d}, s{52+j}"
            bA = GA[1] + w * 8192; bB = GB[1] + w * 6144
            q = [f"buffer_load_dwordx4 v{VQ+u}, s[28:31], s42 offen offset:{(u%4)*1024}{nt_q} lds" for u in range(10)]
            v = [f"buffer_load_dwordx4 v{VV+b}, s[32:35], s41 offen offset:{b*1024}{nt_v} lds" for b in range(4)]
            g22 += [[f"s_mov_b32 m0, {bA + 4096}", kq, q[0]], [q[1]], [f"s_mov_b32 m0, {bA}", "s_mul_i32 s41, s42, 768", v[0]], [v[1]], [v[2]], [v[3]]]
            g22b += [[f"s_mov_b32 m0, {bB}", kq, q[4]], [q[5]], [q[6]], [q[7]]]
            g23 += [[f"s_mov_b32 m0, {bA + 4096}", kq, q[2]], [q[3]], [f"s_mov_b32 m0, {bB + 4096}", "s_nop 0", q[8]], [q[9]]]
        r = [g22 + g22b, g23]
        if cfg.get("b_noload"):
            r = [[[x for x in grp if not x.startswith("buffer")] for grp in g] for g in r]
        return r
    lagged(a, cfg, [(gran2(g) if lf >= 20 else gran(g, od(g))) for g in range(22)] + last(), lambda g: blag0 if g < bn0 else (min(blag, 48) if g == 20 else blag), stf_)
    fin(a, cfg, 12)
    a.L("L_k1b_cpre")
    a.I("s_mul_i32 s45, s18, 43")
    a.I("s_lshr_b32 s45, s45, 7")
    a.I("s_mul_i32 s46, s45, 3")
    a.I("s_sub_u32 s46, s18, s46")
    a.I("s_sub_u32 s47, 2, s45")
    a.I("s_cmp_eq_u32 s27, 0")
    a.I("s_cselect_b32 s45, s45, s47")
    a.I(f"s_cselect_b32 s47, {2*12352}, 0")
    a.I("s_mul_i32 s45, s45, 12352")
    a.I("s_lshl_b32 s46, s46, 10")
    a.I("s_add_u32 s45, s45, s46")
    a.I(f"s_add_u32 s45, s45, {TBL}")
    a.I(f"v_lshl_add_u32 v{SZ}, v1, 4, s45")
    a.I(f"s_add_u32 s47, s47, {TBL + 2048}")
    a.I(f"v_lshl_add_u32 v{SZ+1}, v1, 4, s47")
    a.I("v_and_b32 v6, 6, v3")
    a.I("v_xor_b32 v6, v6, v2")
    a.I("v_lshl_add_u32 v6, v3, 3, v6")
    a.I("s_lshl_b32 s45, s24, 13")
    a.I("s_add_u32 s46, s45, 4096")
    a.I("s_mul_i32 s47, s24, 6144")
    a.I(f"s_add_u32 s47, s47, {GB[0]}")
    a.I("s_cmp_ge_u32 s18, 4")
    a.I("s_cselect_b32 s46, s47, s46")
    a.I(f"v_lshl_add_u32 v{VR}, v6, 4, s46")
    a.I(f"v_xor_b32 v{VR+1}, 64, v{VR}")
    a.I("v_and_b32 v8, 1, v2")
    a.I("v_lshrrev_b32 v6, 2, v3")
    a.I("v_lshl_add_u32 v8, v8, 2, v6")
    a.I("v_lshrrev_b32 v6, 1, v8")
    a.I("v_xor_b32 v6, s24, v6")
    a.I("v_lshl_add_u32 v6, v8, 2, v6")
    a.I(f"v_lshlrev_b32 v{VB}, 5, v6")
    a.I("v_and_b32 v6, 3, v3")
    a.I(f"v_lshl_add_u32 v{VB}, v6, 3, v{VB}")
    a.I("v_lshrrev_b32 v6, 1, v2")
    a.I(f"v_lshl_add_u32 v{VB}, v6, 10, v{VB}")
    a.I(f"v_add_u32 v{VB}, s45, v{VB}")
    a.L("L_k1b_comp")
    if cfg.get("stamp"):
        a.I("s_min_u32 s19, s24, 2")
        a.I("s_add_u32 s19, s19, 5")
        a.I("s_cmp_ge_u32 s18, 4")
        a.I("s_cselect_b32 s19, s24, s19")
    for t in range(1, 4):
        a.I(f"v_xor_b32 v{VB+t}, {32*t}, v{VB}")
    srd(a, 36, 16, WS_BYTES)
    a.I("s_lshl_b32 s43, s26, 2")
    a.I("s_add_u32 s43, s43, s24")
    a.I("s_mul_i32 s43, s43, 20")
    a.I("s_add_u32 s43, s43, s40")
    a.I("s_lshl_b32 s43, s43, 10")
    a.I(f"s_add_u32 s43, s43, {TT_OFF}")
    a.I("v_lshl_add_u32 v6, v1, 4, s43")
    a.I("s_cmp_eq_u32 s27, 0")
    a.I("s_cselect_b32 s43, 0, 2048")
    a.I(f"v_add_u32 v{VST}, s43, v6")
    a.I(f"v_add_u32 v{VST+1}, 1024, v6")
    a.I("s_cselect_b32 s43, 2048, 8")
    a.I(f"v_add_u32 v{VST+2}, s43, v6")
    a.I(f"v_lshlrev_b32 v8, 4, v1")
    for t in range(4):
        a.I(f"s_xor_b32 s43, s24, {t}")
        a.I(f"s_mul_i32 s43, s43, 15360")
        if t > 1: a.I(f"s_add_u32 s43, s43, {(t-1)*1024}")
        a.I(f"v_add_u32 v{VP+t}, s43, v8")
    a.I(f"v_and_b32 v8, 1, v2")
    a.I(f"v_mul_u32_u24 v8, 6176, v8")
    a.I(f"v_lshrrev_b32 v{VTL}, 1, v2")
    a.I(f"v_lshl_add_u32 v{VTL}, v{VTL}, 4, v8")
    a.I(f"v_add_u32 v{VTL}, {TBL}, v{VTL}")
    a.I("s_lshl_b32 s41, s24, 3")
    xoff(a, cfg, "s40", "s43", 1)
    def kappa(s):
        P = sum(((perm[4*s+w][0] << 3) | perm[4*s+w][1]) << (8 * w) for w in range(4))
        o = [f"s_lshr_b32 s43, {P}, s41", f"s_add_u32 s44, s43, s42", f"s_and_b32 s44, s44, {NC-1}",
             f"s_bfe_u32 s43, s43, 0x40003", f"s_mul_i32 s43, s43, {NC}"]
        if xrot:
            o += [f"s_add_u32 s43, s43, s40", f"s_cmp_ge_u32 s43, 48", f"s_cselect_b32 s45, 48, 0", f"s_sub_u32 s43, s43, s45"]
        o += [f"s_add_u32 s44, s44, s43", f"v_lshl_add_u32 v{VT}, s44, 6, v{VTL}"]
        return o
    for x in kappa(0): a.I(x)
    a.I("s_mov_b32 s56, 0x71800000")
    a.I("s_mov_b32 s57, 0x71800000")
    a.I("s_mov_b32 s58, 0x58000000")
    a.I("s_mov_b32 s59, 0x58000000")
    a.I("s_mov_b32 s60, 0xa7000000")
    a.I("s_mov_b32 s61, 0xa7000000")
    def table(src, dst):
        T = BF
        for h in range(2):
            for k in range(2):
                a.I(f"v_lshlrev_b32 v{T+8*h+2*k}, 16, v{src+2*h+k}")
                a.I(f"v_and_b32 v{T+8*h+2*k+1}, 0xffff0000, v{src+2*h+k}")
                a.I(f"v_lshlrev_b32 v{T+8*h+4+2*k}, 16, v{src+4+2*h+k}")
                a.I(f"v_and_b32 v{T+8*h+4+2*k+1}, 0xffff0000, v{src+4+2*h+k}")
            for k in range(2):
                a.I(f"v_pk_mul_f32 {vr(T+8*h+4+2*k,2)}, {vr(T+8*h+4+2*k,2)}, {vr(T+8*h+2*k,2)}")
            for k in range(2):
                a.I(f"v_pk_mul_f32 {vr(T+8*h+2*k,2)}, {vr(T+8*h+2*k,2)}, s[56:57]")
            a.I(f"ds_write_b128 v{dst}, {vr(T+8*h)} offset:{6176*h}")
            for k in range(2):
                a.I(f"v_pk_mul_f32 {vr(T+8*h+4+2*k,2)}, {vr(T+8*h+4+2*k,2)}, s[60:61]")
            a.I(f"ds_write_b128 v{dst}, {vr(T+8*h+4)} offset:{6176*h+3072}")
    if cfg.get("probe2"): a.I("s_memtime s[66:67]")
    a.I("s_waitcnt vmcnt(0)")
    if cfg.get("probe2"): a.I("s_memtime s[68:69]")
    table(RAW, SZ)
    a.I("s_cmp_lg_u32 s18, 0")
    a.I("s_cbranch_scc1 L_k1b_t3")
    table(RAW + 8, SZ + 1)
    a.L("L_k1b_t3")
    if cfg.get("probe2"): a.I("s_memtime s[70:71]")
    a.I("s_cmp_ge_u32 s18, 4")
    a.I("s_cbranch_scc1 L_k1b_x")
    def gen_wave(isx):
        tiles = [2, 3, 4] if isx else [0, 1]
        nt = len(tiles)
        t0 = tiles[0]
        out = []
        def deq(i):
            z = SZ + 16 * ((i - t0) // 2); af = AF + 4 * (i & 1); r = RAW + 8 * (i - t0)
            v = []
            for h in range(2):
                for u in range(2):
                    v.append(f"v_pk_fma_f32 {vr(r+4*h+2*u,2)}, {vr(r+4*h+2*u,2)}, {vr(z+8*h+2*u,2)}, {vr(z+8*h+4+2*u,2)}")
            for k in range(4):
                v.append(f"v_cvt_pk_bf16_f32 v{af+k}, v{r+2*k}, v{r+2*k+1}")
            return v
        def acc(t, i): return ACC + 4 * (t * nt + i - t0)
        def mf(s, i, order=(0, 1, 2, 3)):
            af = AF + 4 * (i & 1)
            return [f"v_mfma_f32_16x16x32_bf16 {vr(acc(t, i))}, {vr(af)}, {vr(BF+4*t)}, {'0' if s == 0 else vr(acc(t, i))}" for t in order]
        def rdraw(s):
            po = GA[s & 1]
            return [f"ds_read_b128 {vr(RAW+8*k+4*h)}, v{VR+h} offset:{po + 2048*k}" for k in range(nt) for h in range(2)]
        def rdv(s):
            po = GA[s & 1]
            return [f"ds_read_b64_tr_b16 {vr(BF+4*t+2*hb,2)}, v{VB+t} offset:{po + 2048*hb}" for t in range(4) for hb in range(2)]
        def rdtab(s):
            rd = []
            for g in ([1, 2] if isx else [0]):
                for h in range(2):
                    for k in range(2):
                        rd.append(f"ds_read_b128 {vr(SZ+16*(g-(1 if isx else 0))+8*h+4*k)}, v{VT} offset:{12352*g + 32*h + 3072*k}")
            return rd
        def pw(i):
            return [f"ds_write_b128 v{VP+t}, {vr(acc(t, i))} offset:{i*3072}" for t in range(1, 4)]
        def prd(i, R):
            return [f"ds_read_b128 {vr(R + 4*(t-1))}, v{VP} offset:{i*3072 + (t-1)*1024}" for t in range(1, 4)]
        def psum(A, R, O):
            v = []
            for u in range(2):
                v.append(f"v_pk_add_f32 {vr(A+2*u,2)}, {vr(A+2*u,2)}, {vr(R+2*u,2)}")
                v.append(f"v_pk_add_f32 {vr(R+4+2*u,2)}, {vr(R+4+2*u,2)}, {vr(R+8+2*u,2)}")
            for u in range(2):
                v.append(f"v_pk_add_f32 {vr(A+2*u,2)}, {vr(A+2*u,2)}, {vr(R+4+2*u,2)}")
            for u in range(2):
                v.append(f"v_pk_mul_f32 {vr(A+2*u,2)}, {vr(A+2*u,2)}, s[58:59]")
            for u in range(2):
                v.append(f"v_cvt_pk_bf16_f32 v{O+u}, v{A+2*u}, v{A+2*u+1}")
            return v
        def ilv(d, m):
            return [d[0], d[1], m[0], d[2], d[3], m[1], d[4], d[5], m[2], d[6], d[7], m[3]]
        def bar(k):
            out.append("s_barrier")
            if cfg.get("probe2") and 2 <= k < 22: return
            out.extend(st2(cfg, k // 2) if k % 2 == (1 if isx else 0) else [])
        LO = (1, 2, 3, 0)
        if cfg.get("probe2"): out.append("s_memtime s[72:73]")
        out.append("s_waitcnt lgkmcnt(0)")
        if isx:
            bar(0)
            out.extend(rdtab(0))
            for s in range(11):
                out.append("s_waitcnt lgkmcnt(4)")
                out.extend(rdv(s))
                out.extend(kappa(s + 1))
                out.append("s_waitcnt lgkmcnt(0)")
                bar(2 * s + 1)
                out.extend(rdraw(s))
                out.append("s_waitcnt lgkmcnt(4)")
                out.extend(deq(2))
                out.append("s_waitcnt lgkmcnt(2)")
                out.extend(ilv(deq(3), mf(s, 2)))
                out.append("s_waitcnt lgkmcnt(0)")
                out.extend(ilv(deq(4), mf(s, 3)))
                if s < 10:
                    bar(2 * s + 2)
                    out.extend(mf(s, 4))
                    out.extend(rdtab(s + 1))
                else:
                    tb = rdtab(11); m = mf(s, 4)
                    out.extend([tb[0], tb[1], m[0], tb[2], tb[3], m[1], tb[4], tb[5], m[2], tb[6], tb[7], m[3]])
                    out.append("s_waitcnt lgkmcnt(0)")
                    bar(22)
            s = 11
            rr = rdraw(s)
            out.extend(rr[:2] + rdv(s) + rr[2:4])
            out.append("s_waitcnt lgkmcnt(10)")
            out.extend(deq(2))
            out.append("s_waitcnt lgkmcnt(0)")
            out.extend(ilv(deq(3), mf(s, 2, LO)))
            bar(23)
            out.extend(rr[4:])
            m = mf(s, 3, LO); w = pw(2)
            out.extend([m[0], m[1], m[2], w[0], m[3], w[1], w[2]])
            out.append("s_waitcnt lgkmcnt(3)")
            out.extend(deq(4))
            m = mf(s, 4, LO); w = pw(3)
            out.extend([w[0], w[1], m[0], w[2], m[1], m[2], m[3]])
            out.append("s_nop 4")
            out.extend(pw(4))
            if cfg.get("probe2"): out.append("s_memtime s[74:75]")
            out.append("s_waitcnt lgkmcnt(0)")
            if cfg.get("probe2"): out.append("s_memtime s[76:77]")
            out.append("s_barrier")
            if cfg.get("probe2"): out.append("s_memtime s[78:79]")
            out.extend(prd(2, SZ) + prd(3, SZ + 12) + prd(4, BF))
            out.append("s_waitcnt lgkmcnt(6)")
            out.extend(psum(acc(0, 2), SZ, RAW))
            out.append("s_waitcnt lgkmcnt(3)")
            out.extend(psum(acc(0, 3), SZ + 12, RAW + 2))
            out.append(f"buffer_store_dwordx4 {vr(RAW)}, v{VST+1}, s[36:39], 0 offen{stf}")
            out.append("s_waitcnt lgkmcnt(0)")
            out.extend(psum(acc(0, 4), BF, RAW + 4))
            out.append(f"buffer_store_dwordx2 {vr(RAW+4,2)}, v{VST+2}, s[36:39], 0 offen{stf}")
            if cfg.get("probe2"): out.append("s_memtime s[80:81]")
        else:
            for s in range(11):
                bar(2 * s)
                if s == 0:
                    out.extend(rdtab(0))
                    out.append("s_waitcnt lgkmcnt(0)")
                rr = rdraw(s); rv = rdv(s)
                out.extend(rr[:2] + rv + rr[2:])
                out.extend(kappa(s + 1))
                out.append("s_waitcnt lgkmcnt(10)")
                out.extend(deq(0))
                out.append("s_waitcnt lgkmcnt(0)")
                out.extend(ilv(deq(1), mf(s, 0)))
                bar(2 * s + 1)
                out.extend(mf(s, 1))
                out.extend(rdtab(s + 1))
                out.append("s_waitcnt lgkmcnt(0)")
            s = 11
            bar(22)
            rr = rdraw(s)
            out.extend(rr[:2] + rdv(s))
            out.append("s_waitcnt lgkmcnt(8)")
            out.extend(deq(0))
            out.append("s_waitcnt lgkmcnt(0)")
            out.append("s_nop 0")
            out.extend(mf(s, 0, LO))
            bar(23)
            out.extend(rr[2:])
            out.append("s_nop 2")
            out.extend(pw(0))
            out.append("s_waitcnt lgkmcnt(3)")
            out.extend(deq(1))
            out.append("s_nop 1")
            out.extend(mf(s, 1, LO))
            out.append("s_nop 4")
            out.extend(pw(1))
            out.append("s_waitcnt lgkmcnt(0)")
            out.append("s_barrier")
            out.extend(prd(0, SZ) + prd(1, SZ + 12))
            out.append("s_waitcnt lgkmcnt(3)")
            out.extend(psum(acc(0, 0), SZ, RAW))
            out.append("s_waitcnt lgkmcnt(0)")
            out.extend(psum(acc(0, 1), SZ + 12, RAW + 2))
            out.append(f"buffer_store_dwordx4 {vr(RAW)}, v{VST}, s[36:39], 0 offen{stf}")
        for x in out:
            if cfg.get("b_nocomp") and (x.startswith("v_") or x.startswith("ds_")): continue
            a.I(x)
        fin(a, cfg, 12, 19)
    gen_wave(False)
    a.L("L_k1b_x")
    gen_wave(True)

def gen_k2(a, cfg):
    K = "quip_s2_kernel"
    a.lines.append(f".globl {K}\n.p2align 8\n.type {K},@function")
    a.L(K)
    a.I("s_cmp_ge_u32 s2, 256")
    a.I("s_cbranch_scc1 L_k2_exit")
    stamp_begin(a, cfg)
    a.I("s_load_dwordx2 s[4:5], s[0:1], 48")
    a.I("s_load_dwordx2 s[6:7], s[0:1], 64")
    a.I("s_and_b32 s20, s2, 7")
    a.I("s_lshr_b32 s21, s2, 3")
    a.I("s_lshr_b32 s22, s20, 1")
    a.I("s_and_b32 s23, s20, 1")
    a.I("s_and_b32 s25, s21, 3")
    a.I("s_lshl_b32 s26, s22, 2")
    a.I("s_add_u32 s25, s25, s26")
    a.I("s_lshr_b32 s26, s21, 2")
    a.I("s_lshl_b32 s27, s23, 3")
    a.I("s_add_u32 s26, s26, s27")
    a.I("v_and_b32 v1, 63, v0")
    a.I("v_lshrrev_b32 v2, 6, v0")
    a.I("s_nop 0")
    a.I("v_readfirstlane_b32 s24, v2")
    a.I("v_lshlrev_b32 v3, 4, v1")
    if cfg.get("cpf2", 1):
        a.I("s_getpc_b64 s[40:41]")
        a.L("L_k2_pc")
        a.I("v_subrev_u32 v4, 192, v0")
        a.I("v_lshlrev_b32 v5, 7, v4")
        a.I("v_cmp_gt_u32 vcc, 64, v4")
        a.I("s_mov_b32 s42, L_code_end-L_k2_pc")
        a.I("v_cmp_gt_u32 s[44:45], s42, v5")
        a.I("s_and_b64 exec, vcc, s[44:45]")
        a.I("global_load_dword v13, v5, s[40:41]")
        a.I("s_mov_b64 exec, -1")
    a.I("s_lshl_b32 s40, s25, 3")
    a.I("s_lshl_b32 s41, s24, 1")
    a.I("s_add_u32 s40, s40, s41")
    a.I("s_mul_i32 s41, s40, 20480")
    if XR_OFF:
        a.I(f"s_add_u32 s41, s41, {XR_OFF}")
    a.I("v_add_u32 v4, s41, v3")
    a.I("v_add_u32 v5, 20480, v4")
    a.I("s_and_b32 s42, s24, 1")
    a.I("s_mul_i32 s42, s42, 60")
    a.I("s_lshr_b32 s43, s24, 1")
    a.I("s_add_u32 s42, s42, s43")
    a.I("s_lshl_b32 s42, s42, 10")
    a.I("v_add_u32 v6, s42, v3")
    a.I("v_add_u32 v11, 20480, v6")
    a.I("v_add_u32 v12, 40960, v6")
    a.I("s_mul_i32 s42, s24, 3072")
    a.I("s_mul_i32 s43, s26, 122880")
    a.I(f"s_add_u32 s43, s43, {TT_OFF}")
    a.I("v_add_u32 v8, 61440, v3")
    a.I("v_and_b32 v9, 15, v1")
    a.I("s_lshl_b32 s41, s40, 4")
    a.I("v_add_u32 v9, s41, v9")
    a.I("s_movk_i32 s41, 3072")
    a.I("v_mul_lo_u32 v9, v9, s41")
    a.I("v_bfe_u32 v10, v1, 4, 1")
    a.I("v_lshl_add_u32 v9, v10, 5, v9")
    a.I("v_lshrrev_b32 v10, 5, v1")
    a.I("v_lshl_add_u32 v9, v10, 4, v9")
    a.I("s_mul_i32 s41, s26, 192")
    a.I("v_add_u32 v9, s41, v9")
    a.I("v_add_u32 v10, 49152, v9")
    for n in range(1, 5):
        a.I(f"s_movk_i32 s{44+n}, {4096*n}")
    a.I("s_waitcnt lgkmcnt(0)")
    srd(a, 28, 6, WS_BYTES)
    srd(a, 32, 4, 6291456)
    ACC = 16; RING = 64; NR = 12
    NCH = 10
    def load_groups(c):
        g = []
        g.append([f"s_add_u32 m0, s42, {c*12288}", "s_nop 0",
                  "buffer_load_dwordx4 v6, s[28:31], s43 offen lds"])
        g.append([f"s_add_u32 m0, s42, {c*12288+1024}", "s_nop 0", "buffer_load_dwordx4 v11, s[28:31], s43 offen lds"])
        g.append([f"s_add_u32 m0, s42, {c*12288+2048}", "s_nop 0", "buffer_load_dwordx4 v12, s[28:31], s43 offen lds", "s_add_u32 s43, s43, 2048"])
        for pp in range(2):
            p = 2 * c + pp
            so = "0" if p < 4 else f"s{44 + p // 4}"
            for u in range(2):
                g.append([f"buffer_load_dwordx4 {vr(8*p+4*u, 4, 'a')}, v{4+u}, s[28:31], {so} offen offset:{(p % 4) * 1024}"])
        return g
    UP = cfg.get("k2_up", 3)
    DEPTH = 8
    for c in range(UP):
        for g in load_groups(c):
            for x in g:
                a.I(x)
    items = []
    for p in range(20):
        for t in range(6):
            it = {}
            def reads(reg, p=p, t=t):
                off = (p * 6 + t) * 1024
                if off >= 61440:
                    return [f"ds_read_b128 {vr(reg)}, v8 offset:{off-61440}"]
                return [f"ds_read_b128 {vr(reg)}, v3 offset:{off}"]
            def mfma(reg, p=p, t=t):
                out = []
                for u in range(2):
                    acc = ACC + 4 * (t * 2 + u)
                    cc = "0" if p == 0 else vr(acc)
                    out.append(f"v_mfma_f32_16x16x32_bf16 {vr(acc)}, {vr(reg)}, {vr(8*p+4*u,4,'a')}, {cc}")
                return out
            it["reads"] = reads; it["mfma"] = mfma
            items.append(it)
    pos = [0, 2, 3, 5, 7, 8, 10]
    issue_at = {}
    n_up = 7 * UP
    for c in range(NCH):
        if c + UP < NCH:
            for k, g in enumerate(load_groups(c + UP)):
                it = items[12 * c + pos[k]]
                it.setdefault("post", []).extend(g)
                issue_at[7 * (c + UP) + k] = 12 * c + pos[k]
    for c in range(NCH):
        kproc = max(0, 12 * c - DEPTH + 1)
        issued = n_up + sum(1 for v, at in issue_at.items() if at < kproc)
        need = 7 * (c + 1)
        assert issued >= need
        g = [f"s_waitcnt vmcnt({issued - need})", "s_barrier"]
        if cfg.get("stamp2"):
            g += [f"s_memtime s[{56+2*c}:{57+2*c}]"]
        items[12 * c]["gate"] = g
    rolling(a, items, depth=DEPTH, slots=[RING + 4*i for i in range(NR)])
    a.I("s_nop 7")
    O = RING
    k = 0
    for u in range(2):
        for s in range(3):
            o = O + 4 * k; k += 1
            a0 = ACC + 4 * ((2*s) * 2 + u); a1 = ACC + 4 * ((2*s+1) * 2 + u)
            a.I(f"v_cvt_pk_bf16_f32 v{o}, v{a0}, v{a0+1}")
            a.I(f"v_cvt_pk_bf16_f32 v{o+1}, v{a0+2}, v{a0+3}")
            a.I(f"v_cvt_pk_bf16_f32 v{o+2}, v{a1}, v{a1+1}")
            a.I(f"v_cvt_pk_bf16_f32 v{o+3}, v{a1+2}, v{a1+3}")
            a.I("s_nop 1")
            a.I(f"v_permlane16_swap_b32 v{o}, v{o+2}")
            a.I(f"v_permlane16_swap_b32 v{o+1}, v{o+3}")
            a.I(f"buffer_store_dwordx4 {vr(o)}, v{9+u}, s[32:35], 0 offen offset:{64*s}" + FL[cfg.get("st2f", 2)])
    stamp_end(a, cfg, 1, 6, 24)
    if cfg.get("stamp2"):
        a.I("s_lshl_b32 s88, s2, 2")
        a.I("s_add_u32 s88, s88, s24")
        a.I("s_lshl_b32 s88, s88, 6")
        a.I(f"s_add_u32 s88, s88, {STAMP_OFF + 0x80000}")
        a.I("v_mov_b32 v0, s88")
        for c in range(10):
            a.I(f"s_sub_u32 s89, s{56+2*c}, s82")
            a.I(f"v_mov_b32 v2, s89")
            a.I(f"global_store_dword v0, v2, s[6:7] offset:{4*c}")
        a.I(f"s_sub_u32 s89, s86, s82")
        a.I(f"v_mov_b32 v2, s89")
        a.I(f"global_store_dword v0, v2, s[6:7] offset:40")
    a.L("L_k2_exit")
    a.I("s_endpgm")
    a.L("L_code_end")

def kd(name, nfv, acc_off, sgpr=96, extra=""):
    return f""".p2align 6
.amdhsa_kernel {name}
{extra}  .amdhsa_next_free_vgpr {nfv}
  .amdhsa_next_free_sgpr {sgpr}
  .amdhsa_accum_offset {acc_off}
  .amdhsa_group_segment_fixed_size 0
  .amdhsa_kernarg_size 72
  .amdhsa_user_sgpr_count 2
  .amdhsa_user_sgpr_kernarg_segment_ptr 1
  .amdhsa_system_sgpr_workgroup_id_x 1
.end_amdhsa_kernel
"""

def gen(cfg):
    a = Asm()
    out = HEADER
    out += "; @launch kernel=quip_s1_kernel grid=(256,1,1) block=(576,1,1) lds=163840\n"
    out += "; @launch kernel=quip_s2_kernel grid=(256,1,1) block=(256,1,1) lds=122880\n"
    out += '.amdgcn_target "amdgcn-amd-amdhsa--gfx950"\n.text\n'
    gen_k1(a, cfg)
    gen_k2(a, cfg)
    out += a.text()
    out += '.section .rodata,"a"\n'
    out += kd("quip_s1_kernel", 168, 168, 100, "  .amdhsa_float_denorm_mode_32 3\n")
    out += kd("quip_s2_kernel", 288, 128)
    return out

if __name__ == "__main__":
    cfg = {}
    outp = sys.argv[1] if len(sys.argv) > 1 else "standalone__weight_only_int_quip__prompt.s"
    for kv in sys.argv[2:]:
        k, v = kv.split("=")
        cfg[k] = int(v)
    open(outp, "w").write(gen(cfg))
```

```python
import sys

HEADER = open("standalone__weight_only_int_quip__prompt.s.ref").read().split("; Override launch")[0]

XR_OFF = 0
TT_OFF = 0x300000
WS_BYTES = 0x500000

class Asm:
    def __init__(self):
        self.lines = []
    def I(self, s):
        self.lines.append("    " + s)
    def L(self, s):
        self.lines.append(s + ":")
    def C(self, s):
        self.lines.append("    ; " + s)
    def text(self):
        return "\n".join(self.lines) + "\n"

def vr(b, n=4, p="v"):
    return f"{p}[{b}:{b+n-1}]" if n > 1 else f"{p}{b}"

STAMP_OFF = 0x600000
def stamp_begin(a, cfg, B=80):
    if cfg.get("stamp"):
        a.I(f"s_memrealtime s[{B}:{B+1}]")
        a.I(f"s_memtime s[{B+2}:{B+3}]")

def stamp_end(a, cfg, kidx, ws_lo, wave_sgpr, B=80):
    if cfg.get("stamp"):
        a.I("s_waitcnt vmcnt(0) lgkmcnt(0)")
        a.I(f"s_memrealtime s[{B+4}:{B+5}]")
        a.I(f"s_memtime s[{B+6}:{B+7}]")
        a.I(f"s_lshl_b32 s{B+8}, s2, 3")
        a.I(f"s_add_u32 s{B+8}, s{B+8}, s{wave_sgpr}")
        a.I(f"s_lshl_b32 s{B+8}, s{B+8}, 5")
        a.I(f"s_add_u32 s{B+8}, s{B+8}, {STAMP_OFF + kidx*0x40000}")
        a.I(f"s_getreg_b32 s{B+9}, hwreg(HW_REG_XCC_ID)")
        a.I("s_waitcnt lgkmcnt(0)")
        a.I(f"v_mov_b32 v0, s{B+8}")
        for k in range(8):
            a.I(f"v_mov_b32 v{2+k}, s{B+k}")
        a.I(f"v_mov_b32 v5, s{B+9}")
        a.I(f"global_store_dwordx4 v0, v[2:5], s[{ws_lo}:{ws_lo+1}]")
        a.I(f"global_store_dwordx4 v0, v[6:9], s[{ws_lo}:{ws_lo+1}] offset:16")

def gate_stamps_out(a, cfg, n, base_sgpr, ws_lo, wave_sgpr, off, B=88):
    a.I(f"s_lshl_b32 s{B+8}, s2, 3")
    a.I(f"s_add_u32 s{B+8}, s{B+8}, s{wave_sgpr}")
    a.I(f"s_lshl_b32 s{B+8}, s{B+8}, 6")
    a.I(f"s_add_u32 s{B+8}, s{B+8}, {off}")
    a.I(f"v_mov_b32 v0, s{B+8}")
    for c in range(n):
        a.I(f"s_sub_u32 s{B+9}, s{base_sgpr+2*c}, s{B+2}")
        a.I(f"v_mov_b32 v2, s{B+9}")
        a.I(f"global_store_dword v0, v2, s[{ws_lo}:{ws_lo+1}] offset:{4*c}")
    a.I(f"s_sub_u32 s{B+9}, s{B+6}, s{B+2}")
    a.I(f"v_mov_b32 v2, s{B+9}")
    a.I(f"global_store_dword v0, v2, s[{ws_lo}:{ws_lo+1}] offset:{4*n}")

def srd(a, d, base, nbytes):
    a.I(f"s_mov_b32 s{d}, s{base}")
    a.I(f"s_and_b32 s{d+1}, s{base+1}, 0xffff")
    a.I(f"s_mov_b32 s{d+2}, {nbytes}")
    a.I(f"s_mov_b32 s{d+3}, 0x00020000")

def rolling(a, items, depth, slots):
    n = len(items)
    issued = 0
    nreads = []
    for k in range(n):
        while issued < min(n, k + depth):
            it = items[issued]
            if it.get("gate"):
                for g in it["gate"]:
                    a.I(g)
            rd = it["reads"](slots[issued % len(slots)])
            for r in rd:
                a.I(r)
            nreads.append(len(rd))
            issued += 1
        cnt = sum(nreads[k + 1:issued])
        assert cnt <= 15
        a.I(f"s_waitcnt lgkmcnt({cnt})")
        for m in items[k]["mfma"](slots[k % len(slots)]):
            a.I(m)
        for m in items[k].get("post", []):
            a.I(m)

def merge(comp, loads, policy):
    if not loads:
        return list(comp)
    if policy == 0:
        return [x for g in loads for x in g] + list(comp)
    if policy == 1:
        return list(comp) + [x for g in loads for x in g]
    n = len(comp); m = len(loads)
    out = []
    pos = [(k * n) // m for k in range(m)] if policy == 2 else [((k + 1) * n) // m for k in range(m)]
    li = 0
    for i in range(n + 1):
        while li < m and pos[li] == i:
            out.extend(loads[li]); li += 1
        if i < n:
            out.append(comp[i])
    return out

class LdsQ:
    def __init__(self, out):
        self.out = out; self.q = []
    def issue(self, instr, tag):
        if len(self.q) >= 15:
            self.wait_n(14)
        self.out.append(instr); self.q.append(tag)
    def wait_n(self, n):
        self.out.append(f"s_waitcnt lgkmcnt({n})")
        self.q = self.q[len(self.q) - n:] if n else []
    def need(self, tag):
        idx = [i for i, t in enumerate(self.q) if t == tag]
        if idx:
            self.wait_n(len(self.q) - 1 - idx[-1])

FL = ["", " sc1", " nt", " sc0 sc1", " sc0"]

def gen_k1(a, cfg):
    K = "quip_s1_kernel"
    mp = cfg.get("map", 1)
    a.lines.append(f".globl {K}\n.p2align 8\n.type {K},@function")
    a.L(K)
    a.I("s_cmp_ge_u32 s2, 256")
    a.I("s_cbranch_scc1 L_k1_exit")
    stamp_begin(a, cfg, 88)
    a.I("s_load_dwordx8 s[4:11], s[0:1], 0")
    a.I("s_load_dwordx4 s[12:15], s[0:1], 32")
    a.I("s_load_dwordx2 s[16:17], s[0:1], 64")
    a.I("s_lshr_b32 s21, s2, 3")
    a.I("s_and_b32 s20, s2, 7")
    a.I("v_and_b32 v1, 63, v0")
    a.I("v_lshrrev_b32 v2, 6, v0")
    a.I("v_and_b32 v3, 15, v1")
    a.I("v_readfirstlane_b32 s24, v2")
    a.I("v_lshrrev_b32 v2, 4, v1")
    if cfg.get("cpf", 1):
        a.I("s_getpc_b64 s[40:41]")
        a.L("L_k1_pc")
        a.I("v_subrev_u32 v4, 64, v0")
        a.I("v_lshl_add_u32 v5, s21, 4, v4")
        a.I("v_lshlrev_b32 v5, 7, v5")
        a.I("v_cmp_gt_u32 vcc, 16, v4")
        a.I("s_mov_b32 s42, L_code_end-L_k1_pc")
        a.I("v_cmp_gt_u32 s[44:45], s42, v5")
        a.I("s_and_b64 exec, vcc, s[44:45]")
        a.I("global_load_dword v23, v5, s[40:41]")
        a.I("s_mov_b64 exec, -1")
    if mp:
        a.I("s_lshr_b32 s22, s21, 3")
        a.I(f"s_add_u32 s23, s21, {cfg.get('c8rot', 0)}")
        a.I("s_and_b32 s23, s23, 7")
        a.I("s_cmp_ge_u32 s20, 6")
    else:
        a.I("s_lshr_b32 s22, s20, 1")
        a.I("s_and_b32 s23, s20, 1")
        a.I("s_cmp_ge_u32 s21, 24")
    a.I("s_cbranch_scc1 L_k1_roleA")
    gen_k1_b(a, cfg)
    a.L("L_k1_roleA")
    gen_k1_a(a, cfg)
    a.L("L_k1_exit")
    a.I("s_endpgm")

def lagged(a, cfg, grans, N, stampf):
    flat = []; ends = []
    for g in grans:
        flat += g; ends.append(len(flat))
    nb = 0
    Nf = N if callable(N) else (lambda g: N)
    for k in range(len(flat) + 1):
        while nb < len(grans) and (k == len(flat) or k >= ends[nb] + Nf(nb)):
            a.I(f"s_waitcnt vmcnt({k - ends[nb]})")
            a.I("s_barrier")
            for x in stampf(nb): a.I(x)
            nb += 1
        if k < len(flat):
            for x in flat[k]: a.I(x)
            if cfg.get("probe") and k in (0, 4, 7, 15, 23, 31):
                n = (0, 4, 7, 15, 23, 31).index(k)
                a.I("s_waitcnt vmcnt(0)")
                a.I(f"s_memtime s[{66+2*n}:{67+2*n}]")

def early(a, cfg, grans, R, stampf):
    n = len(grans)
    for g in range(min(R - 1, n)):
        for grp in grans[g]:
            for x in grp: a.I(x)
    for g in range(n):
        cnt = sum(len(grans[k]) for k in range(g + 1, min(n, g + R - 1)))
        a.I(f"s_waitcnt vmcnt({cnt})")
        a.I("s_barrier")
        for x in stampf(g): a.I(x)
        if g + R - 1 < n:
            for grp in grans[g + R - 1]:
                for x in grp: a.I(x)

def st2(cfg, k, base=64):
    if cfg.get("stamp2") and k < 12:
        return [f"s_memtime s[{base+2*k}:{base+2*k+1}]"]
    return []

def fin(a, cfg, n, ws=19):
    stamp_end(a, cfg, 0, 16, ws, 88)
    if cfg.get("stamp2"):
        for k in range(n, 12):
            a.I(f"s_mov_b32 s{64+2*k}, s90")
        gate_stamps_out(a, cfg, 12, 64, 16, ws, STAMP_OFF + 0x100000)
    a.I("s_endpgm")

def gen_k1_a(a, cfg):
    nt_x = " nt" if cfg.get("nt_x") else ""
    nt_u = " nt" if cfg.get("nt_u") else ""
    stf = FL[cfg.get("sta", 0)]
    mp = cfg.get("map", 1)
    SL = 43008
    a.C("role A: xr = x @ U, tile 256(m) x 80(e); waves 0-3 compute (64 x 80), wave 4 loads")
    if cfg.get("a_off"):
        a.I("s_endpgm")
    if mp:
        a.I("s_mov_b32 s25, s23")
        a.I("s_sub_u32 s20, s20, 6")
        a.I("s_lshl_b32 s20, s20, 2")
        a.I("s_add_u32 s20, s20, s22")
    else:
        a.I("s_sub_u32 s25, s21, 24")
        a.I("s_mov_b32 s22, 0")
    a.I("s_and_b32 s26, s25, 1")
    apf = cfg.get("a_pf", 1)
    a.I(f"s_cmp_gt_u32 s24, {4 if apf else 5}")
    a.I("s_cbranch_scc1 L_k1_exit")
    a.I("s_sub_u32 s19, s24, 1")
    a.I("s_cmp_lt_u32 s19, 4")
    a.I("s_cbranch_scc1 L_k1a_comp")
    a.I("s_cmp_eq_u32 s24, 0")
    a.I("s_cselect_b32 s19, 4, 5")
    VX = 10; VU = 14
    a.I("s_movk_i32 s41, 1280")
    a.I("s_lshl_b32 s42, s20, 8")
    a.I("v_lshrrev_b32 v7, 3, v1")
    a.I("v_add_u32 v6, s42, v7")
    a.I(f"v_mul_lo_u32 v{VX}, v6, s41")
    a.I("v_and_b32 v7, 6, v7")
    a.I("v_and_b32 v6, 7, v1")
    a.I("v_xor_b32 v6, v6, v7")
    a.I(f"v_lshl_add_u32 v{VX}, v6, 4, v{VX}")
    for b in range(1, 4):
        a.I(f"v_add_u32 v{VX+b}, {b*(10240-1024)}, v{VX}")
    a.I("s_mul_i32 s46, s25, 160")
    for n in range(5):
        a.I(f"v_add_u32 v6, {64*n}, v1")
        a.I(f"v_mul_u32_u24 v7, 205, v6")
        a.I(f"v_lshrrev_b32 v7, 11, v7")
        a.I(f"v_mul_u32_u24 v8, 10, v7")
        a.I(f"v_sub_u32 v8, v6, v8")
        a.I(f"v_lshrrev_b32 v6, 1, v7")
        a.I(f"v_xor_b32 v6, v6, v7")
        a.I(f"v_and_b32 v6, 4, v6")
        a.I(f"v_mul_u32_u24 v6, 3, v6")
        a.I(f"v_xor_b32 v7, v7, v6")
        a.I(f"v_mul_u32_u24 v7, 1280, v7")
        a.I(f"v_lshl_add_u32 v8, s26, 1, v8")
        a.I(f"v_subrev_u32 v6, 10, v8")
        a.I(f"v_min_u32 v8, v8, v6")
        a.I(f"v_lshl_add_u32 v7, v8, 4, v7")
        a.I(f"v_add_u32 v{VU+n}, s46, v7")
        a.I(f"v_add_u32 v{VU+5+n}, {40960 - ((5+n)%4)*1024}, v{VU+n}")
        if n % 4:
            a.I(f"v_subrev_u32 v{VU+n}, {(n%4)*1024}, v{VU+n}")
    for gam in range(8):
        a.I(f"s_add_u32 s43, s25, {gam}")
        a.I(f"s_and_b32 s43, s43, 7")
        a.I(f"s_mul_i32 s{56+gam}, s43, 40960")
    rot = cfg.get("a_rot", 0)
    if rot:
        a.I(f"s_mul_i32 s44, s22, {rot-1}")
        a.I("s_add_u32 s44, s44, s25")
        a.I("s_cmp_ge_u32 s44, 10")
        a.I("s_cselect_b32 s45, 10, 0")
        a.I("s_sub_u32 s44, s44, s45")
    else:
        a.I("s_mov_b32 s44, 0")
    if apf:
        a.I("s_lshl_b32 s43, s25, 5")
        a.I("s_add_u32 s43, s43, s42")
        a.I("v_and_b32 v6, 31, v1")
        a.I("v_add_u32 v6, s43, v6")
        a.I("v_mul_u32_u24 v30, 1280, v6")
        a.I("v_lshrrev_b32 v6, 5, v1")
        a.I("v_lshl_add_u32 v30, v6, 7, v30")
        a.I("s_lshl_b32 s43, s21, 13")
        a.I("v_lshl_add_u32 v31, v1, 7, s43")
        a.I("s_mov_b32 s47, 0x40000")
        a.I("s_mov_b32 s48, 0x80000")
        a.I("s_mov_b32 s49, 0xc0000")
    a.I("s_waitcnt lgkmcnt(0)")
    srd(a, 28, 4, 2621440)
    srd(a, 32, 12, 819200)
    def apre(ns):
        o = []
        for n in ns:
            o.append([f"buffer_load_dword v32, v30, s[28:31], 0 offen offset:{256*n}"])
            if n < 4:
                o.append([f"buffer_load_dword v32, v31, s[32:35], {['0','s47','s48','s49'][n]} offen"])
        return o
    def stage(P, lead):
        base = (P % 3) * SL
        g = []
        pre = ["s_lshl_b32 s45, s44, 7", "s_mul_i32 s46, s44, 81920"]
        for b in (range(32) if lead == 2 else range(4) if lead else range(4, 32)):
            ld = f"buffer_load_dwordx4 v{VX+b%4}, s[28:31], s54 offen offset:{(b%4)*1024}{nt_x} lds"
            if b % 4 == 0:
                g.append([f"s_mov_b32 m0, {base + b*1024}", f"s_add_u32 s54, s45, s{56+b//4}", ld])
            else:
                g.append([ld])
        for n in (range(10) if lead else []):
            ld = f"buffer_load_dwordx4 v{VU+n}, s[32:35], s46 offen offset:{(n%4)*1024}{nt_u} lds"
            if n % 4 == 0:
                g.append([f"s_mov_b32 m0, {base + 32768 + n*1024}", "s_nop 0", ld])
            else:
                g.append([ld])
        g[0] = pre + g[0]
        g[-1] = g[-1] + ["s_add_u32 s44, s44, 1", "s_cmp_eq_u32 s44, 10", "s_cselect_b32 s44, 0, s44"]
        return g
    if apf:
        st = [stage(P, 2) for P in range(10)]
        if apf == 1:
            st[0] = apre(range(5)) + st[0]
        elif apf == 2:
            st[0] = apre(range(2)) + st[0]
            st[2] = apre(range(2, 5)) + st[2]
        elif apf == 3:
            st[0] = apre(range(3)) + st[0]
            st[3] = apre(range(3, 5)) + st[3]
        lagged(a, cfg, st, cfg.get("a_lag", 40), lambda g: st2(cfg, g))
        fin(a, cfg, 10)
    else:
        a.I("s_cmp_eq_u32 s24, 5")
        a.I("s_cbranch_scc1 L_k1a_lead")
        lagged(a, cfg, [stage(P, 0) for P in range(10)], cfg.get("a_lag", 28), lambda g: st2(cfg, g))
        fin(a, cfg, 10)
        a.L("L_k1a_lead")
        early(a, cfg, [stage(P, 1) for P in range(10)], 3, lambda g: st2(cfg, g))
        fin(a, cfg, 10)
    a.L("L_k1a_comp")
    a.I("s_mov_b32 s24, s19")
    a.I("s_lshl_b32 s40, s20, 4")
    VXR = 10; VT = 14; VST = 16
    a.I("s_lshl_b32 s45, s24, 13")
    a.I("v_and_b32 v6, 6, v3")
    a.I("v_xor_b32 v6, v6, v2")
    a.I("v_lshl_add_u32 v6, v3, 3, v6")
    a.I(f"v_lshl_add_u32 v{VXR}, v6, 4, s45")
    a.I(f"v_xor_b32 v{VXR+1}, 64, v{VXR}")
    a.I(f"v_add_u32 v{VXR+2}, {2*SL}, v{VXR}")
    a.I(f"v_add_u32 v{VXR+3}, {2*SL}, v{VXR+1}")
    a.I("v_lshrrev_b32 v6, 1, v2")
    a.I("v_lshlrev_b32 v6, 4, v6")
    a.I("v_and_b32 v7, 1, v2")
    a.I("v_lshl_add_u32 v6, v7, 2, v6")
    a.I("v_lshrrev_b32 v7, 2, v3")
    a.I("v_add_u32 v6, v6, v7")
    a.I("v_mul_u32_u24 v6, 160, v6")
    a.I("v_and_b32 v7, 3, v3")
    a.I(f"v_lshl_add_u32 v{VT}, v7, 3, v6")
    a.I(f"v_add_u32 v{VT}, 32768, v{VT}")
    a.I(f"v_add_u32 v{VT+1}, {2*SL}, v{VT}")
    a.I("s_mul_i32 s42, s25, 5")
    a.I("s_add_u32 s42, s42, s26")
    a.I("s_lshr_b32 s42, s42, 1")
    a.I("s_mul_i32 s43, s40, 20")
    a.I("s_add_u32 s42, s42, s43")
    a.I("s_lshl_b32 s42, s42, 10")
    if XR_OFF:
        a.I(f"s_add_u32 s42, s42, {XR_OFF}")
    a.I("s_cmp_eq_u32 s26, 0")
    a.I("s_cselect_b32 s43, 3064, 0")
    a.I("s_add_u32 s43, s43, s42")
    a.I("s_sub_u32 s43, s43, 1016")
    a.I(f"v_lshl_add_u32 v{VST}, v1, 4, s42")
    a.I(f"v_lshl_add_u32 v{VST+1}, v1, 4, s43")
    a.I("s_lshl_b32 s41, s24, 1")
    a.I("s_add_u32 s41, s41, s25")
    a.I("s_and_b32 s48, s41, 7")
    a.I("s_mul_i32 s48, s48, 40960")
    a.I("s_add_u32 s49, s48, 20480")
    a.I("s_add_u32 s41, s41, 1")
    a.I("s_and_b32 s50, s41, 7")
    a.I("s_mul_i32 s50, s50, 40960")
    a.I("s_add_u32 s51, s50, 20480")
    a.I("s_waitcnt lgkmcnt(0)")
    srd(a, 36, 16, WS_BYTES)
    ACC = 24; RING = 104; XF = 136
    out = []; L = LdsQ(out)
    DEPTH = cfg.get("a_depth", 4)
    items = [(p, t) for p in range(20) for t in range(5)]
    def issue_item(k):
        p, t = items[k]
        P = p // 2; sl = P % 3
        so = (sl % 2) * SL
        if t == 0:
            if p % 2 == 0:
                L.wait_n(0) if L.q else None
                out.append("s_barrier")
                out.extend(st2(cfg, P))
            for u in range(4):
                L.issue(f"ds_read_b128 {vr(XF + 16*(p&1) + 4*u)}, v{VXR + 2*(sl//2) + (p&1)} offset:{so + u*2048}", ("x", p))
        reg = RING + 4 * (k % 8)
        off = so + (p & 1) * 5120 + t * 32
        L.issue(f"ds_read_b64_tr_b16 {vr(reg,2)}, v{VT + sl//2} offset:{off}", ("u", k))
        L.issue(f"ds_read_b64_tr_b16 {vr(reg+2,2)}, v{VT + sl//2} offset:{off+1280}", ("u", k))
    issued = 0
    for k in range(100):
        while issued < min(100, k + DEPTH):
            issue_item(issued); issued += 1
        p, t = items[k]
        L.need(("u", k))
        reg = RING + 4 * (k % 8)
        for u in range(4):
            acc = ACC + 4 * (5 * u + t)
            c = "0" if p == 0 else vr(acc)
            out.append(f"v_mfma_f32_16x16x32_bf16 {vr(acc)}, {vr(reg)}, {vr(XF + 16*(p&1) + 4*u)}, {c}")
    for x in out:
        a.I(x)
    a.I("s_nop 7")
    k = 0
    for u in range(4):
        so = ["s48", "s49", "s50", "s51"][u]
        for s in range(2):
            o = RING + 4 * k; k += 1
            a0 = ACC + 4 * (5 * u + 2 * s); a1 = a0 + 4
            a.I(f"v_cvt_pk_bf16_f32 v{o}, v{a0}, v{a0+1}")
            a.I(f"v_cvt_pk_bf16_f32 v{o+1}, v{a0+2}, v{a0+3}")
            a.I(f"v_cvt_pk_bf16_f32 v{o+2}, v{a1}, v{a1+1}")
            a.I(f"v_cvt_pk_bf16_f32 v{o+3}, v{a1+2}, v{a1+3}")
            a.I(f"buffer_store_dwordx4 {vr(o)}, v{VST}, s[36:39], {so} offen offset:{s*1024}{stf}")
        o = RING + 4 * k; k += 1
        a0 = ACC + 4 * (5 * u + 4)
        a.I(f"v_cvt_pk_bf16_f32 v{o}, v{a0}, v{a0+1}")
        a.I(f"v_cvt_pk_bf16_f32 v{o+1}, v{a0+2}, v{a0+3}")
        a.I(f"buffer_store_dwordx2 {vr(o,2)}, v{VST+1}, s[36:39], {so} offen{stf}")
    fin(a, cfg, 10)

def fill(leads, gap=1):
    perms = []
    at = [{x: sl for sl, xs in L.items() for x in xs} for L in leads]
    for g, L in enumerate(leads):
        fol = []
        for b in range(6):
            for d in (2, 4, 6): fol.append((at[g][(b, 0)], at[g][(b, 0)] * 0 + b, d))
            for d in (3, 5, 7): fol.append((max(at[g][(b, 1)], at[1 - g][(b, 0)]), b, d))
        fol.sort(key=lambda x: x[0])
        p = []
        for sl in range(12):
            cur = list(L.get(sl, []))
            while len(cur) < 4:
                t, b, d = fol.pop(0)
                cur.append((b, d))
            p += cur
        assert not fol
        perms.append(p)
    return perms

F = lambda b: (b, 0)
VL = lambda b: (b, 1)
SCHED = {
    30: dict(perm=fill([{0: [F(0), F(1), F(2)], 1: [VL(0), VL(1), VL(2)], 3: [F(3)], 5: [VL(3), F(4)], 7: [VL(4), F(5)], 9: [VL(5)]}] * 2), n0=2),
    31: dict(perm=fill([{0: [F(0), F(1)], 2: [VL(0), VL(1), F(2)], 4: [VL(2), F(3)], 6: [VL(3), F(4)], 8: [VL(4), F(5)], 10: [VL(5)]},
                        {0: [F(0)], 1: [F(1), VL(0), F(2)], 3: [VL(1), VL(2), F(3)], 5: [VL(3), F(4)], 7: [VL(4), F(5)], 9: [VL(5)]}]), n0=1),
    32: dict(perm=fill([{0: [F(0), F(1), F(2)], 2: [VL(0), VL(1), VL(2)], 4: [F(3), F(4)], 6: [VL(3), VL(4), F(5)], 9: [VL(5)]},
                        {0: [F(0)], 1: [F(1), F(2), VL(0)], 3: [VL(1), VL(2), F(3)], 5: [F(4), VL(3)], 7: [F(5), VL(4)], 9: [VL(5)]}]), n0=1),
    33: dict(perm=fill([{0: [F(0), F(1)], 1: [VL(0), VL(1)], 2: [F(2)], 4: [VL(2), F(3)], 6: [VL(3), F(4)], 8: [VL(4), F(5)], 10: [VL(5)]},
                        {0: [F(0), F(1)], 1: [VL(0), VL(1)], 3: [F(2), VL(2), F(3)], 5: [VL(3), F(4)], 7: [VL(4), F(5)], 9: [VL(5)]}]), n0=2),
    34: dict(perm=fill([{0: [F(0), F(1)], 1: [VL(0), VL(1)], 2: [F(2)], 3: [VL(2)], 4: [F(3)], 6: [VL(3), F(4)], 8: [VL(4), F(5)], 10: [VL(5)]},
                        {0: [F(0), F(1)], 1: [VL(0), VL(1)], 2: [F(2)], 3: [VL(2)], 5: [F(3), VL(3)], 7: [F(4), VL(4), F(5)], 9: [VL(5)]}]), n0=2),
}

def make_perm(cfg):
    lf = cfg.get("lf", 2)
    if lf >= 30:
        sd = cfg.get("sched") or SCHED[lf]
        for p in sd["perm"]:
            assert len(p) == 48 and len(set(map(tuple, p))) == 48
        return 8, [tuple(x) for x in sd["perm"][0]]
    if lf == 0:
        return 4, [(n // 4, n % 4) for n in range(48)]
    if lf == 1:
        def sched(s, w):
            if w == 0:
                if s == 0: return (0, 0)
                if s <= 8: return (s + 3, 0)
                return (11, s - 8)
            if s == 0: return (w, 0)
            return (s - 1, w)
        return 4, [sched(n // 4, n % 4) for n in range(48)]
    if lf == 2:
        seq = [(0, 0), (1, 0), (0, 1), (1, 1)]
        for j in range(6):
            nx = j + 2
            per = []
            if nx < 6: per.append((nx, 0))
            per += [(j, 2), (j, 3), (j, 4)]
            if nx < 6: per.append((nx, 1))
            per += [(j, 5), (j, 6), (j, 7)]
            seq += per
        assert len(seq) == 48 and len(set(seq)) == 48
        return 8, seq
    if lf == 3:
        return 8, [(n // 8, n % 8) for n in range(48)]
    if lf == 4:
        return 4, [(n // 4, n % 4) for n in range(48)]
    if lf == 6:
        seq = [(0, 0), (0, 1), (0, 2), (0, 3), (1, 0), (0, 4), (0, 5), (0, 6)]
        for j in range(1, 6):
            seq += [(j, 1), (j - 1, 7), (j, 2), (j, 4)]
            seq += [(j + 1, 0) if j < 5 else (5, 7), (j, 6), (j, 3), (j, 5)]
        assert len(seq) == 48 and len(set(seq)) == 48
        return 8, seq
    if lf == 7:
        seq = [(0, 0), (0, 1), (0, 2), (0, 3)]
        for j in range(5):
            seq += [(j + 1, 0), (j, 4), (j, 5), (j + 1, 1)]
            seq += [(j + 1, 3), (j, 6), (j, 7), (j + 1, 2)]
        seq += [(5, 4), (5, 5), (5, 6), (5, 7)]
        assert len(seq) == 48 and len(set(seq)) == 48
        return 8, seq
    if lf == 8:
        seq = [(0,0),(0,1),(0,2),(0,3),
               (2,0),(1,1),(1,2),(1,0),
               (3,0),(1,3),(2,1),(2,2),
               (5,0),(2,3),(3,1),(4,0),
               (6,0),(3,2),(3,3),(4,1),
               (8,0),(4,2),(4,3),(7,0),
               (9,0),(5,1),(5,2),(5,3),
               (11,0),(6,1),(6,2),(10,0),
               (6,3)] + [(j, d) for j in range(7, 12) for d in (1, 2, 3)]
        assert len(seq) == 48 and len(set(seq)) == 48
        return 4, seq
    if lf == 9:
        seq = [(0,0),(0,1),(0,2),(0,3),
               (1,0),(1,1),(1,2),(1,3),
               (3,0),(2,1),(2,2),(2,0),
               (4,0),(2,3),(3,1),(3,2),
               (6,0),(3,3),(4,1),(5,0),
               (7,0),(4,2),(4,3),(5,1),
               (9,0),(5,2),(5,3),(8,0),
               (10,0),(6,1),(6,2),(6,3),
               (11,0),(7,1),(7,2),(7,3)] + [(j, d) for j in range(8, 12) for d in (1, 2, 3)]
        assert len(seq) == 48 and len(set(seq)) == 48
        return 4, seq
    if lf == 10:
        seq = [(j, 0) for j in range(12)] + [(j, d) for j in range(12) for d in (1, 2, 3)]
        return 4, seq
    if lf == 11:
        f = [(j, d) for j in range(12) for d in (1, 2, 3)]
        seq = [(j, 0) for j in range(6)] + f[:6] + [(j, 0) for j in range(6, 12)] + f[6:]
        return 4, seq
    if lf == 12:
        f = [(j, d) for j in range(12) for d in (1, 2, 3)]
        seq = [(j, 0) for j in range(4)] + f[:4] + [(j, 0) for j in range(4, 8)] + f[4:12] + [(j, 0) for j in range(8, 12)] + f[12:]
        return 4, seq
    if lf == 13:
        f = [(j, d) for j in range(12) for d in (1, 2, 3)]
        seq = [(j, 0) for j in range(8)] + f[:8] + [(j, 0) for j in range(8, 12)] + f[8:]
        return 4, seq
    if lf == 14:
        seq = [(j, 0) for j in range(6)] + [(j, 1) for j in range(6)] + [(j, d) for j in range(6) for d in range(2, 8)]
        return 8, seq
    if lf == 20:
        seq = [(0,0),(1,0),(0,2),(0,4),
               (0,1),(1,1),(2,0),(0,6),
               (1,2),(1,4),(1,6),(0,3),
               (0,5),(0,7),(2,1),(3,0),
               (1,3),(1,5),(1,7),(2,2),
               (2,4),(2,6),(3,1),(4,0),
               (2,3),(2,5),(2,7),(3,2),
               (3,4),(3,6),(4,1),(5,0),
               (3,3),(3,5),(3,7),(4,2),
               (4,4),(4,6),(5,1),(4,3),
               (4,5),(4,7),(5,2),(5,4),
               (5,6),(5,3),(5,5),(5,7)]
        assert len(seq) == 48 and len(set(seq)) == 48
        return 8, seq
    if lf == 21:
        seq = [(0,0),(1,0),(2,0),(0,2),
               (0,4),(0,1),(1,1),(2,1),
               (0,6),(1,2),(1,4),(1,6),
               (2,2),(2,4),(2,6),(3,0),
               (0,3),(0,5),(0,7),(1,3),
               (1,5),(1,7),(3,1),(4,0),
               (2,3),(2,5),(2,7),(3,2),
               (3,4),(3,6),(4,1),(5,0),
               (3,3),(3,5),(3,7),(4,2),
               (4,4),(4,6),(5,1),(4,3),
               (4,5),(4,7),(5,2),(5,4),
               (5,6),(5,3),(5,5),(5,7)]
        assert len(seq) == 48 and len(set(seq)) == 48
        return 8, seq
    if lf == 22:
        seq = [(0,0),(0,2),(0,4),(1,0),
               (0,1),(0,6),(2,0),(1,2),
               (1,4),(1,6),(1,1),(0,3),
               (0,5),(0,7),(2,1),(3,0),
               (2,2),(2,4),(1,3),(1,5),
               (1,7),(2,6),(3,1),(4,0),
               (2,3),(2,5),(2,7),(3,2),
               (3,4),(3,6),(4,1),(5,0),
               (3,3),(3,5),(3,7),(4,2),
               (4,4),(4,6),(5,1),(4,3),
               (4,5),(4,7),(5,2),(5,4),
               (5,6),(5,3),(5,5),(5,7)]
        assert len(seq) == 48 and len(set(seq)) == 48
        return 8, seq
    if lf == 5:
        seq = [(0, 0), (0, 2), (1, 0), (1, 2), (2, 0), (0, 1), (0, 3), (1, 1)]
        for s in range(2, 11):
            seq += [(s + 1, 0), (s - 1, 3), (s, 1), (s, 2)]
        seq += [(10, 3), (11, 1), (11, 2), (11, 3)]
        assert len(seq) == 48 and len(set(seq)) == 48
        return 4, seq

def xoff(a, cfg, d, t, mul):
    xrot = cfg.get("xrot", 0)
    if xrot == 1:
        tab = sum(((3 * (x & 1) + 2 * (x >> 1)) % 6) << (4 * x) for x in range(6))
        a.I(f"s_lshl_b32 {t}, s20, 2")
        a.I(f"s_lshr_b32 {d}, {tab}, {t}")
        a.I(f"s_and_b32 {d}, {d}, 7")
        a.I(f"s_mul_i32 {d}, {d}, {8*mul}")
    else:
        a.I(f"s_mul_i32 {d}, s20, {xrot*mul}")

def gen_k1_b(a, cfg):
    nt_q = " nt" if cfg.get("nt_q") else ""
    nt_v = " nt" if cfg.get("nt_v") else ""
    stf = FL[cfg.get("stb", 0)]
    mp = cfg.get("map", 1)
    GA = [0, 57344]; GB = [32768, 90112]; TBL = 114688
    lf = cfg.get("lf", 2)
    NC, perm = make_perm(cfg)
    xrot = cfg.get("xrot", 0)
    a.C("role B: T = dequant(qw) @ V, tile 80(d) x 64(g); waves 0-3 compute (k split), wave 4 loads")
    if mp:
        a.I("s_and_b32 s25, s20, 1")
        a.I("s_lshl_b32 s25, s25, 2")
        a.I("s_add_u32 s25, s25, s22")
        a.I("s_lshr_b32 s26, s20, 1")
        a.I("s_lshl_b32 s26, s26, 3")
        a.I("s_add_u32 s26, s26, s23")
        if NC == 8:
            a.I("s_lshl_b32 s42, s22, 1")
            a.I("s_add_u32 s42, s42, s23")
        else:
            if cfg.get("cls", 0):
                a.I("s_lshr_b32 s42, s23, 1")
                a.I("s_add_u32 s42, s42, s22")
            else:
                a.I("s_add_u32 s42, s22, s23")
    else:
        a.I("s_mul_i32 s26, s21, 43")
        a.I("s_lshr_b32 s26, s26, 8")
        a.I("s_mul_i32 s27, s26, 6")
        a.I("s_sub_u32 s27, s21, s27")
        a.I("s_add_u32 s42, s26, s27")
        a.I("s_and_b32 s25, s22, 1")
        a.I("s_lshl_b32 s25, s25, 2")
        a.I("s_add_u32 s25, s25, s26")
        a.I("s_lshl_b32 s26, s23, 1")
        a.I("s_lshr_b32 s40, s22, 1")
        a.I("s_add_u32 s26, s26, s40")
        a.I("s_mul_i32 s26, s26, 6")
        a.I("s_add_u32 s26, s26, s27")
    if not lf:
        a.I("s_mov_b32 s42, 0")
    a.I("s_and_b32 s27, s25, 1")
    a.I("s_cmp_eq_u32 s24, 0")
    a.I("s_cbranch_scc1 L_k1b_ld")
    VR = 10; VB = 14; VST = 18; VTL = 21; VT = 22
    VP = 4
    SZ = 24
    AF = 56
    BF = 64
    RAW = 80
    ACC = 104
    a.I("s_sub_u32 s18, s24, 1")
    a.I("s_and_b32 s24, s18, 3")
    a.I("v_subrev_u32 v0, 64, v0")
    a.I("s_mul_i32 s40, s25, 5")
    a.I("s_lshr_b32 s40, s40, 1")
    a.I("s_mul_i32 s43, s40, 3072")
    a.I(f"v_lshl_add_u32 v4, v0, 4, s43")
    a.I("s_movk_i32 s44, 8192")
    a.I("s_mov_b32 s58, 61440")
    a.I("s_mov_b32 s59, 0x00020000")
    a.I("s_mov_b32 s62, 61440")
    a.I("s_mov_b32 s63, 0x00020000")
    a.I("s_waitcnt lgkmcnt(0)")
    a.I("s_mov_b32 s56, s8")
    a.I("s_and_b32 s57, s9, 0xffff")
    a.I("s_mov_b32 s60, s10")
    a.I("s_and_b32 s61, s11, 0xffff")
    a.I(f"buffer_load_dwordx4 {vr(RAW)}, v4, s[56:59], 0 offen")
    a.I(f"buffer_load_dwordx4 {vr(RAW+4)}, v4, s[60:63], 0 offen")
    a.I("s_cmp_lg_u32 s18, 0")
    a.I("s_cbranch_scc1 L_k1b_cpre")
    a.I(f"buffer_load_dwordx4 {vr(RAW+8)}, v4, s[56:59], s44 offen")
    a.I(f"buffer_load_dwordx4 {vr(RAW+12)}, v4, s[60:63], s44 offen")
    a.I("s_branch L_k1b_cpre")
    a.L("L_k1b_ld")
    if cfg.get("probe4"): a.I("s_memtime s[64:65]")
    a.I("s_mov_b32 s19, 4")
    VQ = 10; VV = 20
    a.I("v_lshrrev_b32 v4, 3, v1")
    a.I(f"v_mul_u32_u24 v{VV}, 3072, v4")
    a.I("v_bfe_u32 v6, v1, 1, 2")
    a.I("v_xor_b32 v6, v6, v2")
    a.I(f"v_lshl_add_u32 v{VV}, v6, 5, v{VV}")
    a.I("v_and_b32 v6, 1, v1")
    a.I(f"v_lshl_add_u32 v{VV}, v6, 4, v{VV}")
    a.I("s_lshl_b32 s43, s26, 7")
    a.I(f"v_add_u32 v{VV}, s43, v{VV}")
    for b in range(1, 4):
        a.I(f"v_add_u32 v{VV+b}, {b*(24576-1024)}, v{VV}")
    a.I(f"v_mul_u32_u24 v5, 6144, v4")
    a.I("v_and_b32 v6, 6, v4")
    a.I("v_and_b32 v7, 7, v1")
    a.I("v_xor_b32 v6, v6, v7")
    a.I(f"v_lshl_add_u32 v5, v6, 4, v5")
    a.I("s_mul_i32 s43, s25, 491520")
    a.I("s_cmp_eq_u32 s27, 0")
    a.I(f"s_cselect_b32 s60, 0, {3*98304}")
    a.I(f"s_cselect_b32 s61, 98304, 0")
    a.I(f"s_cselect_b32 s62, {4*98304}, 0")
    a.I(f"s_add_u32 s61, s61, 98304")
    for r in range(3):
        a.I(f"s_add_u32 s{60+r}, s{60+r}, s43")
        a.I(f"v_add_u32 v{VQ+4*r}, s{60+r}, v5")
        for u in range(1, 4 if r < 2 else 2):
            a.I(f"v_add_u32 v{VQ+4*r+u}, {u*(49152-1024)}, v{VQ+4*r}")
    NJ = 48 // NC
    for d in range(NC):
        a.I(f"s_add_u32 s43, s42, {d}")
        a.I(f"s_and_b32 s43, s43, {NC-1}")
        a.I(f"s_lshl_b32 s{44+d}, s43, 7")
    xoff(a, cfg, "s43", "s40", 128)
    for j in range(NJ):
        a.I(f"s_add_u32 s{52+j}, s43, {j*NC*128}")
        if xrot:
            a.I(f"s_cmp_ge_u32 s{52+j}, {48*128}")
            a.I(f"s_cselect_b32 s40, {48*128}, 0")
            a.I(f"s_sub_u32 s{52+j}, s{52+j}, s40")
    def ldhead():
        if cfg.get("probe4"): a.I("s_memtime s[66:67]")
        a.I("s_waitcnt lgkmcnt(0)")
        if cfg.get("stamp2"):
            a.I("s_memtime s[86:87]")
        srd(a, 32, 14, 4718592)
        srd(a, 28, 6, 3932160)
    if lf < 30:
        ldhead()
    def gran(g, ws):
        s = g // 2; out = []
        for w in ws:
            j, d = perm[4 * s + w]
            kq = f"s_add_u32 s42, s{44+d}, s{52+j}"
            if g % 2 == 0:
                base = GA[s & 1] + w * 8192
                q = [f"buffer_load_dwordx4 v{VQ+u}, s[28:31], s42 offen offset:{u*1024}{nt_q} lds" for u in range(4)]
                v = [f"buffer_load_dwordx4 v{VV+b}, s[32:35], s41 offen offset:{b*1024}{nt_v} lds" for b in range(4)]
                out.append([f"s_mov_b32 m0, {base + 4096}", kq, q[0]])
                out += [[q[1]], [q[2]], [q[3]]]
                out.append([f"s_mov_b32 m0, {base}", "s_mul_i32 s41, s42, 768", v[0]])
                out += [[v[1]], [v[2]], [v[3]]]
            else:
                base = GB[s & 1] + w * 6144
                q = [f"buffer_load_dwordx4 v{VQ+4+u}, s[28:31], s42 offen offset:{(u%4)*1024}{nt_q} lds" for u in range(6)]
                out.append([f"s_mov_b32 m0, {base}", kq, q[0]])
                out += [[q[1]], [q[2]], [q[3]]]
                out.append([f"s_mov_b32 m0, {base + 4096}", "s_nop 0", q[4]])
                out += [[q[5]]]
        if cfg.get("b_noload"):
            out = [[x for x in grp if not x.startswith("buffer")] for grp in out]
        return out
    def gran2(g):
        s = g // 2; out = []
        isq = lambda w: perm[4*s+w][1] == 0
        isv = lambda w: perm[4*s+w][1] <= 1
        first = s in cfg.get("front", (0,))
        if g % 2 == 0:
            items = [(w, p) for w in range(4) for p in "qv"]
            miss = [it for it in items if (isq(it[0]) if it[1] == "q" else isv(it[0]))]
            hit = [it for it in items if it not in miss]
            miss.sort(key=lambda it: (isq(it[0]), it[0], it[1] == "q"))
            items = miss + hit if first else hit + miss
            have = None
            for w, p in items:
                j, d = perm[4 * s + w]
                kq = f"s_add_u32 s42, s{44+d}, s{52+j}"
                base = GA[s & 1] + w * 8192
                pre = [] if have == w else [kq]
                have = w
                if p == "q":
                    q = [f"buffer_load_dwordx4 v{VQ+u}, s[28:31], s42 offen offset:{u*1024}{nt_q} lds" for u in range(4)]
                    out.append([f"s_mov_b32 m0, {base + 4096}"] + (pre or ["s_nop 0"]) + [q[0]])
                    out += [[q[1]], [q[2]], [q[3]]]
                else:
                    v = [f"buffer_load_dwordx4 v{VV+b}, s[32:35], s41 offen offset:{b*1024}{nt_v} lds" for b in range(4)]
                    out.append(pre + [f"s_mov_b32 m0, {base}", "s_mul_i32 s41, s42, 768", v[0]])
                    out += [[v[1]], [v[2]], [v[3]]]
            return out
        ws = [w for w in range(4) if isq(w)] + [w for w in range(4) if not isq(w)]
        return gran(g, ws)
    stf_ = lambda g: st2(cfg, g // 2) if g % 2 == 0 and g < 22 and not (cfg.get("probe4") and g < 8) else []
    blag = cfg.get("b_lag", 40); blag0 = cfg.get("b_lag0", 50); bn0 = cfg.get("b_n0", 4)
    od = lambda g: ([1, 2, 3, 0] if g % 2 == 0 else [0, 1, 2, 3])
    if lf in (8, 9):
        od = lambda g: [1, 2, 3, 0] if g % 2 == 0 else [0, 3, 1, 2]
    if lf == 7:
        od = lambda g: [1, 2, 3, 0] if (g % 2 == 0 or (g // 2) % 2 == 0) else [0, 3, 1, 2]
    def last():
        s = 11; g22 = []; g22b = []; g23 = []
        for w in range(4):
            j, d = perm[4 * s + w]
            kq = f"s_add_u32 s42, s{44+d}, s{52+j}"
            bA = GA[1] + w * 8192; bB = GB[1] + w * 6144
            q = [f"buffer_load_dwordx4 v{VQ+u}, s[28:31], s42 offen offset:{(u%4)*1024}{nt_q} lds" for u in range(10)]
            v = [f"buffer_load_dwordx4 v{VV+b}, s[32:35], s41 offen offset:{b*1024}{nt_v} lds" for b in range(4)]
            g22 += [[f"s_mov_b32 m0, {bA + 4096}", kq, q[0]], [q[1]], [f"s_mov_b32 m0, {bA}", "s_mul_i32 s41, s42, 768", v[0]], [v[1]], [v[2]], [v[3]]]
            g22b += [[f"s_mov_b32 m0, {bB}", kq, q[4]], [q[5]], [q[6]], [q[7]]]
            g23 += [[f"s_mov_b32 m0, {bA + 4096}", kq, q[2]], [q[3]], [f"s_mov_b32 m0, {bB + 4096}", "s_nop 0", q[8]], [q[9]]]
        r = [g22 + g22b, g23]
        if cfg.get("b_noload"):
            r = [[[x for x in grp if not x.startswith("buffer")] for grp in g] for g in r]
        return r
    def loader3(pm, n0):
        nonlocal perm
        perm = pm
        ldhead()
        isq = lambda n: pm[n][1] == 0
        isv = lambda n: pm[n][1] <= 1
        miss = lambda it: isv(it[0]) if it[1] == "v" else isq(it[0])
        order = []
        for s in range(11):
            A = [(4*s+w, p) for w in range(4) for p in "av"]
            B = [(4*s+w, "b") for w in range(4)]
            mA = sorted([it for it in A if miss(it)], key=lambda it: (isq(it[0]), it[0], it[1] == "a"))
            order += [it for it in A if not miss(it)] + mA + [it for it in B if miss(it)] + [it for it in B if not miss(it)]
        k0 = 12 * n0
        head = order[:k0]
        hm = sorted([it for it in head if miss(it)], key=lambda it: (not isq(it[0]), it[0], "vab".index(it[1])))
        order = hm + [it for it in head if not miss(it)] + order[k0:]
        flat = []
        have = None
        for n, p in order:
            s, w = divmod(n, 4)
            j, d = pm[n]
            kq = f"s_add_u32 s42, s{44+d}, s{52+j}"
            pre = [] if have == n else [kq]
            have = n
            if p == "a":
                base = GA[s & 1] + w * 8192
                q = [f"buffer_load_dwordx4 v{VQ+u}, s[28:31], s42 offen offset:{u*1024} lds" for u in range(4)]
                gs = [[f"s_mov_b32 m0, {base + 4096}"] + (pre or ["s_nop 0"]) + [q[0]], [q[1]], [q[2]], [q[3]]]
            elif p == "v":
                base = GA[s & 1] + w * 8192
                v = [f"buffer_load_dwordx4 v{VV+b}, s[32:35], s41 offen offset:{b*1024} lds" for b in range(4)]
                gs = [pre + [f"s_mov_b32 m0, {base}", "s_mul_i32 s41, s42, 768", v[0]], [v[1]], [v[2]], [v[3]]]
            else:
                base = GB[s & 1] + w * 6144
                q = [f"buffer_load_dwordx4 v{VQ+4+u}, s[28:31], s42 offen offset:{(u%4)*1024} lds" for u in range(6)]
                gs = [[f"s_mov_b32 m0, {base}"] + (pre or ["s_nop 0"]) + [q[0]], [q[1]], [q[2]], [q[3]],
                      [f"s_mov_b32 m0, {base + 4096}", "s_nop 0", q[4]], [q[5]]]
            flat += [(2 * s + (p == "b"), g) for g in gs]
        l22, l23 = last()
        flat += [(22, g) for g in l22] + [(23, g) for g in l23]
        n22a = len(l22) - 16
        ends = {}; firsts = {}
        for k, (g, _) in enumerate(flat):
            ends[g] = k + 1
            firsts.setdefault(g, k)
        lim = {g: firsts.get(g + 3, len(flat)) for g in range(24)}
        lim[20] = min(lim[20], firsts[22] + n22a)
        nb = 0
        for k in range(len(flat) + 1):
            while nb < 24 and k >= ends[nb] and (k == len(flat) or k >= ends[nb] + (blag0 if nb < bn0 else blag) or k >= lim[nb]):
                assert k - ends[nb] <= 63
                a.I(f"s_waitcnt vmcnt({k - ends[nb]})")
                a.I("s_barrier")
                for x in stf_(nb): a.I(x)
                nb += 1
            assert nb == 24 or k < lim[nb] or k == len(flat), (nb, k)
            if k < len(flat):
                for x in flat[k][1]: a.I(x)
                if cfg.get("probe4") and k == 13:
                    a.I("s_memtime s[68:69]")
                    a.I("s_waitcnt vmcnt(13)")
                    a.I("s_memtime s[70:71]")
        fin(a, cfg, 12)
    if lf >= 30:
        sd = cfg.get("sched") or SCHED[lf]
        pms = [[tuple(x) for x in p] for p in sd["perm"]]
        if pms[0] != pms[1]:
            a.I("s_bitcmp1_b32 s23, 0")
            a.I("s_cbranch_scc1 L_k1b_ld1")
        loader3(pms[0], sd["n0"])
        if pms[0] != pms[1]:
            a.L("L_k1b_ld1")
            loader3(pms[1], sd["n0"])
        perm = pms[0]
    else:
        lagged(a, cfg, [(gran2(g) if lf >= 20 else gran(g, od(g))) for g in range(22)] + last(), lambda g: blag0 if g < bn0 else (min(blag, 48) if g == 20 else blag), stf_)
        fin(a, cfg, 12)
    a.L("L_k1b_cpre")
    a.I("s_mul_i32 s45, s18, 43")
    a.I("s_lshr_b32 s45, s45, 7")
    a.I("s_mul_i32 s46, s45, 3")
    a.I("s_sub_u32 s46, s18, s46")
    a.I("s_sub_u32 s47, 2, s45")
    a.I("s_cmp_eq_u32 s27, 0")
    a.I("s_cselect_b32 s45, s45, s47")
    a.I(f"s_cselect_b32 s47, {2*12352}, 0")
    a.I("s_mul_i32 s45, s45, 12352")
    a.I("s_lshl_b32 s46, s46, 10")
    a.I("s_add_u32 s45, s45, s46")
    a.I(f"s_add_u32 s45, s45, {TBL}")
    a.I(f"v_lshl_add_u32 v{SZ}, v1, 4, s45")
    a.I(f"s_add_u32 s47, s47, {TBL + 2048}")
    a.I(f"v_lshl_add_u32 v{SZ+1}, v1, 4, s47")
    a.I("v_and_b32 v6, 6, v3")
    a.I("v_xor_b32 v6, v6, v2")
    a.I("v_lshl_add_u32 v6, v3, 3, v6")
    a.I("s_lshl_b32 s45, s24, 13")
    a.I("s_add_u32 s46, s45, 4096")
    a.I("s_mul_i32 s47, s24, 6144")
    a.I(f"s_add_u32 s47, s47, {GB[0]}")
    a.I("s_cmp_ge_u32 s18, 4")
    a.I("s_cselect_b32 s46, s47, s46")
    a.I(f"v_lshl_add_u32 v{VR}, v6, 4, s46")
    a.I(f"v_xor_b32 v{VR+1}, 64, v{VR}")
    a.I("v_and_b32 v8, 1, v2")
    a.I("v_lshrrev_b32 v6, 2, v3")
    a.I("v_lshl_add_u32 v8, v8, 2, v6")
    a.I("v_lshrrev_b32 v6, 1, v8")
    a.I("v_xor_b32 v6, s24, v6")
    a.I("v_lshl_add_u32 v6, v8, 2, v6")
    a.I(f"v_lshlrev_b32 v{VB}, 5, v6")
    a.I("v_and_b32 v6, 3, v3")
    a.I(f"v_lshl_add_u32 v{VB}, v6, 3, v{VB}")
    a.I("v_lshrrev_b32 v6, 1, v2")
    a.I(f"v_lshl_add_u32 v{VB}, v6, 10, v{VB}")
    a.I(f"v_add_u32 v{VB}, s45, v{VB}")
    a.L("L_k1b_comp")
    if cfg.get("stamp"):
        a.I("s_min_u32 s19, s24, 2")
        a.I("s_add_u32 s19, s19, 5")
        a.I("s_cmp_ge_u32 s18, 4")
        a.I("s_cselect_b32 s19, s24, s19")
    for t in range(1, 4):
        a.I(f"v_xor_b32 v{VB+t}, {32*t}, v{VB}")
    srd(a, 36, 16, WS_BYTES)
    a.I("s_lshl_b32 s43, s26, 2")
    a.I("s_add_u32 s43, s43, s24")
    a.I("s_mul_i32 s43, s43, 20")
    a.I("s_add_u32 s43, s43, s40")
    a.I("s_lshl_b32 s43, s43, 10")
    a.I(f"s_add_u32 s43, s43, {TT_OFF}")
    a.I("v_lshl_add_u32 v6, v1, 4, s43")
    a.I("s_cmp_eq_u32 s27, 0")
    a.I("s_cselect_b32 s43, 0, 2048")
    a.I(f"v_add_u32 v{VST}, s43, v6")
    a.I(f"v_add_u32 v{VST+1}, 1024, v6")
    a.I("s_cselect_b32 s43, 2048, 8")
    a.I(f"v_add_u32 v{VST+2}, s43, v6")
    a.I(f"v_lshlrev_b32 v8, 4, v1")
    for t in range(4):
        a.I(f"s_xor_b32 s43, s24, {t}")
        a.I(f"s_mul_i32 s43, s43, 15360")
        if t > 1: a.I(f"s_add_u32 s43, s43, {(t-1)*1024}")
        a.I(f"v_add_u32 v{VP+t}, s43, v8")
    a.I(f"v_and_b32 v8, 1, v2")
    a.I(f"v_mul_u32_u24 v8, 6176, v8")
    a.I(f"v_lshrrev_b32 v{VTL}, 1, v2")
    a.I(f"v_lshl_add_u32 v{VTL}, v{VTL}, 4, v8")
    a.I(f"v_add_u32 v{VTL}, {TBL}, v{VTL}")
    a.I("s_lshl_b32 s41, s24, 3")
    xoff(a, cfg, "s40", "s43", 1)
    def kappa(s):
        PP = [sum(((pm[4*s+w][0] << 3) | pm[4*s+w][1]) << (8 * w) for w in range(4)) for pm in (pms if lf >= 30 else [perm, perm])]
        P = PP[0]
        o = []
        if PP[0] != PP[1]:
            o = [f"s_mov_b32 s43, {PP[0]}", "s_bitcmp1_b32 s23, 0", f"s_cmov_b32 s43, {PP[1]}"]
            P = "s43"
        o += [f"s_lshr_b32 s43, {P}, s41", f"s_add_u32 s44, s43, s42", f"s_and_b32 s44, s44, {NC-1}",
             f"s_bfe_u32 s43, s43, 0x40003", f"s_mul_i32 s43, s43, {NC}"]
        if xrot:
            o += [f"s_add_u32 s43, s43, s40", f"s_cmp_ge_u32 s43, 48", f"s_cselect_b32 s45, 48, 0", f"s_sub_u32 s43, s43, s45"]
        o += [f"s_add_u32 s44, s44, s43", f"v_lshl_add_u32 v{VT}, s44, 6, v{VTL}"]
        return o
    for x in kappa(0): a.I(x)
    a.I("s_mov_b32 s56, 0x71800000")
    a.I("s_mov_b32 s57, 0x71800000")
    a.I("s_mov_b32 s58, 0x58000000")
    a.I("s_mov_b32 s59, 0x58000000")
    a.I("s_mov_b32 s60, 0xa7000000")
    a.I("s_mov_b32 s61, 0xa7000000")
    def table(src, dst):
        T = BF
        for h in range(2):
            for k in range(2):
                a.I(f"v_lshlrev_b32 v{T+8*h+2*k}, 16, v{src+2*h+k}")
                a.I(f"v_and_b32 v{T+8*h+2*k+1}, 0xffff0000, v{src+2*h+k}")
                a.I(f"v_lshlrev_b32 v{T+8*h+4+2*k}, 16, v{src+4+2*h+k}")
                a.I(f"v_and_b32 v{T+8*h+4+2*k+1}, 0xffff0000, v{src+4+2*h+k}")
            for k in range(2):
                a.I(f"v_pk_mul_f32 {vr(T+8*h+4+2*k,2)}, {vr(T+8*h+4+2*k,2)}, {vr(T+8*h+2*k,2)}")
            for k in range(2):
                a.I(f"v_pk_mul_f32 {vr(T+8*h+2*k,2)}, {vr(T+8*h+2*k,2)}, s[56:57]")
            a.I(f"ds_write_b128 v{dst}, {vr(T+8*h)} offset:{6176*h}")
            for k in range(2):
                a.I(f"v_pk_mul_f32 {vr(T+8*h+4+2*k,2)}, {vr(T+8*h+4+2*k,2)}, s[60:61]")
            a.I(f"ds_write_b128 v{dst}, {vr(T+8*h+4)} offset:{6176*h+3072}")
    if cfg.get("probe2"): a.I("s_memtime s[66:67]")
    a.I("s_waitcnt vmcnt(0)")
    if cfg.get("probe2"): a.I("s_memtime s[68:69]")
    table(RAW, SZ)
    a.I("s_cmp_lg_u32 s18, 0")
    a.I("s_cbranch_scc1 L_k1b_t3")
    table(RAW + 8, SZ + 1)
    a.L("L_k1b_t3")
    if cfg.get("probe2"): a.I("s_memtime s[70:71]")
    a.I("s_cmp_ge_u32 s18, 4")
    a.I("s_cbranch_scc1 L_k1b_x")
    def gen_wave(isx):
        tiles = [2, 3, 4] if isx else [0, 1]
        nt = len(tiles)
        t0 = tiles[0]
        out = []
        def deq(i):
            z = SZ + 16 * ((i - t0) // 2); af = AF + 4 * (i & 1); r = RAW + 8 * (i - t0)
            v = []
            for h in range(2):
                for u in range(2):
                    v.append(f"v_pk_fma_f32 {vr(r+4*h+2*u,2)}, {vr(r+4*h+2*u,2)}, {vr(z+8*h+2*u,2)}, {vr(z+8*h+4+2*u,2)}")
            for k in range(4):
                v.append(f"v_cvt_pk_bf16_f32 v{af+k}, v{r+2*k}, v{r+2*k+1}")
            return v
        def acc(t, i): return ACC + 4 * (t * nt + i - t0)
        def mf(s, i, order=(0, 1, 2, 3)):
            af = AF + 4 * (i & 1)
            return [f"v_mfma_f32_16x16x32_bf16 {vr(acc(t, i))}, {vr(af)}, {vr(BF+4*t)}, {'0' if s == 0 else vr(acc(t, i))}" for t in order]
        def rdraw(s):
            po = GA[s & 1]
            return [f"ds_read_b128 {vr(RAW+8*k+4*h)}, v{VR+h} offset:{po + 2048*k}" for k in range(nt) for h in range(2)]
        def rdv(s):
            po = GA[s & 1]
            return [f"ds_read_b64_tr_b16 {vr(BF+4*t+2*hb,2)}, v{VB+t} offset:{po + 2048*hb}" for t in range(4) for hb in range(2)]
        def rdtab(s):
            rd = []
            for g in ([1, 2] if isx else [0]):
                for h in range(2):
                    for k in range(2):
                        rd.append(f"ds_read_b128 {vr(SZ+16*(g-(1 if isx else 0))+8*h+4*k)}, v{VT} offset:{12352*g + 32*h + 3072*k}")
            return rd
        def pw(i):
            return [f"ds_write_b128 v{VP+t}, {vr(acc(t, i))} offset:{i*3072}" for t in range(1, 4)]
        def prd(i, R):
            return [f"ds_read_b128 {vr(R + 4*(t-1))}, v{VP} offset:{i*3072 + (t-1)*1024}" for t in range(1, 4)]
        def psum(A, R, O):
            v = []
            for u in range(2):
                v.append(f"v_pk_add_f32 {vr(A+2*u,2)}, {vr(A+2*u,2)}, {vr(R+2*u,2)}")
                v.append(f"v_pk_add_f32 {vr(R+4+2*u,2)}, {vr(R+4+2*u,2)}, {vr(R+8+2*u,2)}")
            for u in range(2):
                v.append(f"v_pk_add_f32 {vr(A+2*u,2)}, {vr(A+2*u,2)}, {vr(R+4+2*u,2)}")
            for u in range(2):
                v.append(f"v_pk_mul_f32 {vr(A+2*u,2)}, {vr(A+2*u,2)}, s[58:59]")
            for u in range(2):
                v.append(f"v_cvt_pk_bf16_f32 v{O+u}, v{A+2*u}, v{A+2*u+1}")
            return v
        def ilv(d, m):
            return [d[0], d[1], m[0], d[2], d[3], m[1], d[4], d[5], m[2], d[6], d[7], m[3]]
        def bar(k):
            out.append("s_barrier")
            if cfg.get("probe2") and 2 <= k < 22: return
            out.extend(st2(cfg, k // 2) if k % 2 == (1 if isx else 0) else [])
        LO = (1, 2, 3, 0)
        if cfg.get("probe2"): out.append("s_memtime s[72:73]")
        out.append("s_waitcnt lgkmcnt(0)")
        if isx:
            bar(0)
            out.extend(rdtab(0))
            for s in range(11):
                out.append("s_waitcnt lgkmcnt(4)")
                out.extend(rdv(s))
                out.extend(kappa(s + 1))
                out.append("s_waitcnt lgkmcnt(0)")
                bar(2 * s + 1)
                out.extend(rdraw(s))
                out.append("s_waitcnt lgkmcnt(4)")
                out.extend(deq(2))
                out.append("s_waitcnt lgkmcnt(2)")
                out.extend(ilv(deq(3), mf(s, 2)))
                out.append("s_waitcnt lgkmcnt(0)")
                out.extend(ilv(deq(4), mf(s, 3)))
                if s < 10:
                    bar(2 * s + 2)
                    out.extend(mf(s, 4))
                    out.extend(rdtab(s + 1))
                else:
                    tb = rdtab(11); m = mf(s, 4)
                    out.extend([tb[0], tb[1], m[0], tb[2], tb[3], m[1], tb[4], tb[5], m[2], tb[6], tb[7], m[3]])
                    out.append("s_waitcnt lgkmcnt(0)")
                    bar(22)
            s = 11
            rr = rdraw(s)
            out.extend(rr[:2] + rdv(s) + rr[2:4])
            out.append("s_waitcnt lgkmcnt(10)")
            out.extend(deq(2))
            out.append("s_waitcnt lgkmcnt(0)")
            out.extend(ilv(deq(3), mf(s, 2, LO)))
            bar(23)
            out.extend(rr[4:])
            m = mf(s, 3, LO); w = pw(2)
            out.extend([m[0], m[1], m[2], w[0], m[3], w[1], w[2]])
            out.append("s_waitcnt lgkmcnt(3)")
            out.extend(deq(4))
            m = mf(s, 4, LO); w = pw(3)
            out.extend([w[0], w[1], m[0], w[2], m[1], m[2], m[3]])
            out.append("s_nop 4")
            out.extend(pw(4))
            if cfg.get("probe2"): out.append("s_memtime s[74:75]")
            out.append("s_waitcnt lgkmcnt(0)")
            if cfg.get("probe2"): out.append("s_memtime s[76:77]")
            out.append("s_barrier")
            if cfg.get("probe2"): out.append("s_memtime s[78:79]")
            out.extend(prd(2, SZ) + prd(3, SZ + 12) + prd(4, BF))
            out.append("s_waitcnt lgkmcnt(6)")
            out.extend(psum(acc(0, 2), SZ, RAW))
            out.append("s_waitcnt lgkmcnt(3)")
            out.extend(psum(acc(0, 3), SZ + 12, RAW + 2))
            out.append(f"buffer_store_dwordx4 {vr(RAW)}, v{VST+1}, s[36:39], 0 offen{stf}")
            out.append("s_waitcnt lgkmcnt(0)")
            out.extend(psum(acc(0, 4), BF, RAW + 4))
            out.append(f"buffer_store_dwordx2 {vr(RAW+4,2)}, v{VST+2}, s[36:39], 0 offen{stf}")
            if cfg.get("probe2"): out.append("s_memtime s[80:81]")
        else:
            for s in range(11):
                bar(2 * s)
                if s == 0:
                    out.extend(rdtab(0))
                    out.append("s_waitcnt lgkmcnt(0)")
                rr = rdraw(s); rv = rdv(s)
                out.extend(rr[:2] + rv + rr[2:])
                out.extend(kappa(s + 1))
                out.append("s_waitcnt lgkmcnt(10)")
                out.extend(deq(0))
                out.append("s_waitcnt lgkmcnt(0)")
                out.extend(ilv(deq(1), mf(s, 0)))
                bar(2 * s + 1)
                out.extend(mf(s, 1))
                out.extend(rdtab(s + 1))
                out.append("s_waitcnt lgkmcnt(0)")
            s = 11
            bar(22)
            rr = rdraw(s)
            out.extend(rr[:2] + rdv(s))
            out.append("s_waitcnt lgkmcnt(8)")
            out.extend(deq(0))
            out.append("s_waitcnt lgkmcnt(0)")
            out.append("s_nop 0")
            out.extend(mf(s, 0, LO))
            bar(23)
            out.extend(rr[2:])
            out.append("s_nop 2")
            out.extend(pw(0))
            out.append("s_waitcnt lgkmcnt(3)")
            out.extend(deq(1))
            out.append("s_nop 1")
            out.extend(mf(s, 1, LO))
            out.append("s_nop 4")
            out.extend(pw(1))
            out.append("s_waitcnt lgkmcnt(0)")
            out.append("s_barrier")
            out.extend(prd(0, SZ) + prd(1, SZ + 12))
            out.append("s_waitcnt lgkmcnt(3)")
            out.extend(psum(acc(0, 0), SZ, RAW))
            out.append("s_waitcnt lgkmcnt(0)")
            out.extend(psum(acc(0, 1), SZ + 12, RAW + 2))
            out.append(f"buffer_store_dwordx4 {vr(RAW)}, v{VST}, s[36:39], 0 offen{stf}")
        for x in out:
            if cfg.get("b_nocomp") and (x.startswith("v_") or x.startswith("ds_")): continue
            a.I(x)
        fin(a, cfg, 12, 19)
    gen_wave(False)
    a.L("L_k1b_x")
    gen_wave(True)

def gen_k2(a, cfg):
    K = "quip_s2_kernel"
    a.lines.append(f".globl {K}\n.p2align 8\n.type {K},@function")
    a.L(K)
    a.I("s_cmp_ge_u32 s2, 256")
    a.I("s_cbranch_scc1 L_k2_exit")
    stamp_begin(a, cfg)
    a.I("s_load_dwordx2 s[4:5], s[0:1], 48")
    a.I("s_load_dwordx2 s[6:7], s[0:1], 64")
    a.I("s_and_b32 s20, s2, 7")
    a.I("s_lshr_b32 s21, s2, 3")
    a.I("s_lshr_b32 s22, s20, 1")
    a.I("s_and_b32 s23, s20, 1")
    a.I("s_and_b32 s25, s21, 3")
    a.I("s_lshl_b32 s26, s22, 2")
    a.I("s_add_u32 s25, s25, s26")
    a.I("s_lshr_b32 s26, s21, 2")
    a.I("s_lshl_b32 s27, s23, 3")
    a.I("s_add_u32 s26, s26, s27")
    a.I("v_and_b32 v1, 63, v0")
    a.I("v_lshrrev_b32 v2, 6, v0")
    a.I("s_nop 0")
    a.I("v_readfirstlane_b32 s24, v2")
    a.I("v_lshlrev_b32 v3, 4, v1")
    if cfg.get("cpf2", 1):
        a.I("s_getpc_b64 s[40:41]")
        a.L("L_k2_pc")
        a.I("v_subrev_u32 v4, 192, v0")
        a.I("v_lshlrev_b32 v5, 7, v4")
        a.I("v_cmp_gt_u32 vcc, 64, v4")
        a.I("s_mov_b32 s42, L_code_end-L_k2_pc")
        a.I("v_cmp_gt_u32 s[44:45], s42, v5")
        a.I("s_and_b64 exec, vcc, s[44:45]")
        a.I("global_load_dword v13, v5, s[40:41]")
        a.I("s_mov_b64 exec, -1")
    a.I("s_lshl_b32 s40, s25, 3")
    a.I("s_lshl_b32 s41, s24, 1")
    a.I("s_add_u32 s40, s40, s41")
    a.I("s_mul_i32 s41, s40, 20480")
    if XR_OFF:
        a.I(f"s_add_u32 s41, s41, {XR_OFF}")
    a.I("v_add_u32 v4, s41, v3")
    a.I("v_add_u32 v5, 20480, v4")
    ph = cfg.get("k2_ph", 1)
    if ph:
        a.I("s_and_b32 s42, s24, 1")
        a.I("s_mul_i32 s42, s42, 40")
        a.I("s_lshr_b32 s43, s24, 1")
        a.I("s_add_u32 s42, s42, s43")
        a.I("s_lshl_b32 s42, s42, 10")
        a.I("v_add_u32 v6, s42, v3")
        a.I(f"v_add_u32 v11, {20480-1024}, v6")
        a.I("s_and_b32 s42, s24, 1")
        a.I("s_mul_i32 s42, s42, 20")
        a.I("s_add_u32 s42, s42, s43")
        a.I("s_lshl_b32 s42, s42, 10")
        a.I("s_add_u32 s42, s42, 81920")
        a.I("v_add_u32 v12, s42, v3")
        a.I("s_lshl_b32 s50, s24, 10")
        a.I("s_lshl_b32 s42, s24, 11")
        a.I("s_mul_i32 s43, s26, 122880")
        a.I(f"s_add_u32 s43, s43, {TT_OFF}")
        a.I("s_mov_b32 s49, s43")
    else:
        a.I("s_and_b32 s42, s24, 1")
        a.I("s_mul_i32 s42, s42, 60")
        a.I("s_lshr_b32 s43, s24, 1")
        a.I("s_add_u32 s42, s42, s43")
        a.I("s_lshl_b32 s42, s42, 10")
        a.I("v_add_u32 v6, s42, v3")
        a.I("v_add_u32 v11, 20480, v6")
        a.I("v_add_u32 v12, 40960, v6")
        a.I("s_mul_i32 s42, s24, 3072")
        a.I("s_mul_i32 s43, s26, 122880")
        a.I(f"s_add_u32 s43, s43, {TT_OFF}")
    a.I("v_add_u32 v8, 61440, v3")
    a.I("v_and_b32 v9, 15, v1")
    a.I("s_lshl_b32 s41, s40, 4")
    a.I("v_add_u32 v9, s41, v9")
    a.I("s_movk_i32 s41, 3072")
    a.I("v_mul_lo_u32 v9, v9, s41")
    a.I("v_bfe_u32 v10, v1, 4, 1")
    a.I("v_lshl_add_u32 v9, v10, 5, v9")
    a.I("v_lshrrev_b32 v10, 5, v1")
    a.I("v_lshl_add_u32 v9, v10, 4, v9")
    a.I("s_mul_i32 s41, s26, 192")
    a.I("v_add_u32 v9, s41, v9")
    a.I("v_add_u32 v10, 49152, v9")
    for n in range(1, 5):
        a.I(f"s_movk_i32 s{44+n}, {4096*n}")
    a.I("s_waitcnt lgkmcnt(0)")
    srd(a, 28, 6, WS_BYTES)
    srd(a, 32, 4, 6291456)
    ACC = 16; RING = 64; NR = 12
    NCH = 10
    def load_groups(c):
        g = []
        g.append([f"s_add_u32 m0, s42, {c*12288}", "s_nop 0",
                  "buffer_load_dwordx4 v6, s[28:31], s43 offen lds"])
        g.append([f"s_add_u32 m0, s42, {c*12288+1024}", "s_nop 0", "buffer_load_dwordx4 v11, s[28:31], s43 offen lds"])
        g.append([f"s_add_u32 m0, s42, {c*12288+2048}", "s_nop 0", "buffer_load_dwordx4 v12, s[28:31], s43 offen lds", "s_add_u32 s43, s43, 2048"])
        for pp in range(2):
            p = 2 * c + pp
            so = "0" if p < 4 else f"s{44 + p // 4}"
            for u in range(2):
                g.append([f"buffer_load_dwordx4 {vr(8*p+4*u, 4, 'a')}, v{4+u}, s[28:31], {so} offen offset:{(p % 4) * 1024}"])
        return g
    if ph:
        gen_k2_phased(a, cfg, ACC, RING, NR)
    else:
        UP = cfg.get("k2_up", 3)
        DEPTH = 8
        for c in range(UP):
            for g in load_groups(c):
                for x in g:
                    a.I(x)
        items = []
        for p in range(20):
            for t in range(6):
                it = {}
                def reads(reg, p=p, t=t):
                    off = (p * 6 + t) * 1024
                    if off >= 61440:
                        return [f"ds_read_b128 {vr(reg)}, v8 offset:{off-61440}"]
                    return [f"ds_read_b128 {vr(reg)}, v3 offset:{off}"]
                def mfma(reg, p=p, t=t):
                    out = []
                    for u in range(2):
                        acc = ACC + 4 * (t * 2 + u)
                        cc = "0" if p == 0 else vr(acc)
                        out.append(f"v_mfma_f32_16x16x32_bf16 {vr(acc)}, {vr(reg)}, {vr(8*p+4*u,4,'a')}, {cc}")
                    return out
                it["reads"] = reads; it["mfma"] = mfma
                items.append(it)
        pos = [0, 2, 3, 5, 7, 8, 10]
        issue_at = {}
        n_up = 7 * UP
        for c in range(NCH):
            if c + UP < NCH:
                for k, g in enumerate(load_groups(c + UP)):
                    it = items[12 * c + pos[k]]
                    it.setdefault("post", []).extend(g)
                    issue_at[7 * (c + UP) + k] = 12 * c + pos[k]
        for c in range(NCH):
            kproc = max(0, 12 * c - DEPTH + 1)
            issued = n_up + sum(1 for v, at in issue_at.items() if at < kproc)
            need = 7 * (c + 1)
            assert issued >= need
            g = [f"s_waitcnt vmcnt({issued - need})", "s_barrier"]
            if cfg.get("stamp2"):
                g += [f"s_memtime s[{56+2*c}:{57+2*c}]"]
            items[12 * c]["gate"] = g
        rolling(a, items, depth=DEPTH, slots=[RING + 4*i for i in range(NR)])
        a.I("s_nop 7")
        O = RING
        k = 0
        for u in range(2):
            for s in range(3):
                o = O + 4 * k; k += 1
                a0 = ACC + 4 * ((2*s) * 2 + u); a1 = ACC + 4 * ((2*s+1) * 2 + u)
                a.I(f"v_cvt_pk_bf16_f32 v{o}, v{a0}, v{a0+1}")
                a.I(f"v_cvt_pk_bf16_f32 v{o+1}, v{a0+2}, v{a0+3}")
                a.I(f"v_cvt_pk_bf16_f32 v{o+2}, v{a1}, v{a1+1}")
                a.I(f"v_cvt_pk_bf16_f32 v{o+3}, v{a1+2}, v{a1+3}")
                a.I("s_nop 1")
                a.I(f"v_permlane16_swap_b32 v{o}, v{o+2}")
                a.I(f"v_permlane16_swap_b32 v{o+1}, v{o+3}")
                a.I(f"buffer_store_dwordx4 {vr(o)}, v{9+u}, s[32:35], 0 offen offset:{64*s}" + FL[cfg.get("st2f", 2)])
    stamp_end(a, cfg, 1, 6, 24)
    if cfg.get("stamp2"):
        a.I("s_lshl_b32 s88, s2, 2")
        a.I("s_add_u32 s88, s88, s24")
        a.I("s_lshl_b32 s88, s88, 6")
        a.I(f"s_add_u32 s88, s88, {STAMP_OFF + 0x80000}")
        a.I("v_mov_b32 v0, s88")
        for c in range(10):
            a.I(f"s_sub_u32 s89, s{56+2*c}, s82")
            a.I(f"v_mov_b32 v2, s89")
            a.I(f"global_store_dword v0, v2, s[6:7] offset:{4*c}")
        a.I(f"s_sub_u32 s89, s86, s82")
        a.I(f"v_mov_b32 v2, s89")
        a.I(f"global_store_dword v0, v2, s[6:7] offset:40")
    a.L("L_k2_exit")
    a.I("s_endpgm")
    a.L("L_code_end")

def gen_k2_phased(a, cfg, ACC, RING, NR):
    UP = cfg.get("k2_up", 4)
    DEPTH = cfg.get("k2_depth", 5)
    stf = FL[cfg.get("st2f", 2)]
    Q = cfg.get("k2_q", 5)
    G2 = cfg.get("k2_g2", 2)
    att = {}
    for m in range(Q):
        c = max(m, ((m + 1) * 10) // Q - 1) if cfg.get("k2_late", 0) else max(m, (m * 10) // Q)
        att.setdefault(c, []).append(m)
    rest = list(range(Q, 10))
    G2 = min(G2, len(rest))
    for g in range(G2):
        att[10 + g] = rest[(g * len(rest)) // G2:((g + 1) * len(rest)) // G2]
    def load_groups(c):
        g = []
        if c < 10:
            g.append([f"s_add_u32 m0, s42, {c*8192}", "s_nop 0", "buffer_load_dwordx4 v6, s[28:31], s43 offen lds"])
            g.append(["buffer_load_dwordx4 v11, s[28:31], s43 offen offset:1024 lds", "s_add_u32 s43, s43, 2048"])
        for m in att.get(c, []):
            g.append([f"s_add_u32 m0, s50, {81920 + m*4096}", "s_nop 0", "buffer_load_dwordx4 v12, s[28:31], s49 offen lds", "s_add_u32 s49, s49, 2048"])
        if c < 10:
            for pp in range(2):
                p = 2 * c + pp
                so = "0" if p < 4 else f"s{44 + p // 4}"
                for u in range(2):
                    g.append([f"buffer_load_dwordx4 {vr(8*p+4*u, 4, 'a')}, v{4+u}, s[28:31], {so} offen offset:{(p % 4) * 1024}"])
        return g
    NCH = 10 + G2
    LG = [load_groups(c) for c in range(NCH)]
    for c in range(UP):
        for g in LG[c]:
            for x in g:
                a.I(x)
    items = []; first = []
    def add(p, t):
        it = {}
        off = (p * 4 + t) * 1024 if t < 4 else 81920 + (p * 2 + t - 4) * 1024
        def reads(reg, off=off):
            if off >= 61440:
                return [f"ds_read_b128 {vr(reg)}, v8 offset:{off-61440}"]
            return [f"ds_read_b128 {vr(reg)}, v3 offset:{off}"]
        def mfma(reg, p=p, t=t):
            out = []
            for u in range(2):
                acc = ACC + 4 * (t * 2 + u)
                cc = "0" if p == 0 else vr(acc)
                out.append(f"v_mfma_f32_16x16x32_bf16 {vr(acc)}, {vr(reg)}, {vr(8*p+4*u,4,'a')}, {cc}")
            return out
        it["reads"] = reads; it["mfma"] = mfma
        items.append(it)
    p1end = None
    for c in range(NCH):
        first.append(len(items))
        if c < 10:
            for p in (2 * c, 2 * c + 1):
                for t in range(4):
                    add(p, t)
            if c == 9: p1end = len(items)
        for m in att.get(c, []):
            for p in (2 * m, 2 * m + 1):
                for t in (4, 5):
                    add(p, t)
    first.append(len(items))
    vm = [(-1, c) for c in range(UP) for _ in LG[c]]
    for c in range(UP, NCH):
        host = min(c - UP, 9)
        lo, hi = first[host], first[host + 1]
        if c - UP >= 9 or c == NCH - 1:
            pass
        gs = LG[c]
        if c - UP > 9:
            lo = hi - 1
        for k, g in enumerate(gs):
            at = lo + (k * (hi - lo)) // len(gs)
            items[at].setdefault("post", []).extend(g)
            vm.append((at, c))
    def store(u, s, o):
        a0 = ACC + 4 * ((2*s) * 2 + u); a1 = ACC + 4 * ((2*s+1) * 2 + u)
        return [f"v_cvt_pk_bf16_f32 v{o}, v{a0}, v{a0+1}", f"v_cvt_pk_bf16_f32 v{o+1}, v{a0+2}, v{a0+3}",
                f"v_cvt_pk_bf16_f32 v{o+2}, v{a1}, v{a1+1}", f"v_cvt_pk_bf16_f32 v{o+3}, v{a1+2}, v{a1+3}",
                "s_nop 1", f"v_permlane16_swap_b32 v{o}, v{o+2}", f"v_permlane16_swap_b32 v{o+1}, v{o+3}",
                f"buffer_store_dwordx4 {vr(o)}, v{9+u}, s[32:35], 0 offen offset:{64*s}{stf}"]
    k = 0
    for s_ in range(2):
        for u in range(2):
            at = p1end + 1 + k * cfg.get('k2_sp', 1)
            items[at].setdefault("post", []).extend(store(u, s_, 112 + 4 * k))
            vm.append((at, 99))
            k += 1
    assert vm == sorted(vm, key=lambda x: x[0]), vm
    for c in range(NCH):
        kproc = max(0, first[c] - DEPTH + 1)
        issued = [x for x in vm if x[0] < kproc]
        idx = [i for i, x in enumerate(issued) if x[1] <= c]
        assert len(idx) == sum(len(LG[cc]) for cc in range(c + 1)), (c, len(idx))
        g = [f"s_waitcnt vmcnt({len(issued) - 1 - idx[-1]})", "s_barrier"]
        sl = {0: 0, 3: 1, 6: 2, 9: 3, 10: 4, 11: 5}.get(c) if cfg.get("probe3") else (c if c < 10 else None)
        if cfg.get("stamp2") and sl is not None:
            g += [f"s_memtime s[{56+2*sl}:{57+2*sl}]"]
        items[first[c]]["gate"] = g
    if cfg.get("probe3"):
        items[p1end + 1 + 3 * cfg.get('k2_sp', 1)].setdefault("post", []).append("s_memtime s[68:69]")
    rolling(a, items, depth=DEPTH, slots=[RING + 4*i for i in range(NR)])
    a.I("s_nop 7")
    if cfg.get("probe3"):
        a.I("s_memtime s[70:71]")
        a.I("s_waitcnt vmcnt(0)")
        a.I("s_memtime s[72:73]")
    for u in range(2):
        for x in store(u, 2, RING + 4 * u):
            a.I(x)
    if cfg.get("probe3"):
        a.I("s_memtime s[74:75]")

def kd(name, nfv, acc_off, sgpr=96, extra=""):
    return f""".p2align 6
.amdhsa_kernel {name}
{extra}  .amdhsa_next_free_vgpr {nfv}
  .amdhsa_next_free_sgpr {sgpr}
  .amdhsa_accum_offset {acc_off}
  .amdhsa_group_segment_fixed_size 0
  .amdhsa_kernarg_size 72
  .amdhsa_user_sgpr_count 2
  .amdhsa_user_sgpr_kernarg_segment_ptr 1
  .amdhsa_system_sgpr_workgroup_id_x 1
.end_amdhsa_kernel
"""

def gen(cfg):
    a = Asm()
    out = HEADER
    out += "; @launch kernel=quip_s1_kernel grid=(256,1,1) block=(576,1,1) lds=163840\n"
    out += "; @launch kernel=quip_s2_kernel grid=(256,1,1) block=(256,1,1) lds=122880\n"
    out += '.amdgcn_target "amdgcn-amd-amdhsa--gfx950"\n.text\n'
    gen_k1(a, cfg)
    gen_k2(a, cfg)
    out += a.text()
    out += '.section .rodata,"a"\n'
    out += kd("quip_s1_kernel", 168, 168, 100, "  .amdhsa_float_denorm_mode_32 3\n")
    out += kd("quip_s2_kernel", 288, 128)
    return out

if __name__ == "__main__":
    cfg = {}
    outp = sys.argv[1] if len(sys.argv) > 1 else "standalone__weight_only_int_quip__prompt.s"
    for kv in sys.argv[2:]:
        k, v = kv.split("=")
        cfg[k] = int(v)
    open(outp, "w").write(gen(cfg))
```

```python
import sys
src, dst, which, M = sys.argv[1], sys.argv[2], sys.argv[3], int(sys.argv[4])
kind, g = which.split(":"); g = int(g)
a = open(src).read()
l2 = a[a.index("; @launch kernel=quip_s2_kernel"):].split("\n")[0] + "\n"
a = a.replace(l2, l2 + "; @launch kernel=quip_e_kernel grid=(1,1,1) block=(64,1,1) lds=0\n")
c = [".globl quip_e_kernel", ".p2align 8", ".type quip_e_kernel,@function", "quip_e_kernel:"]
I = lambda s: c.append("    " + s)
I("s_cmp_ge_u32 s2, 1")
I("s_cbranch_scc1 L_e_exit")
I("s_load_dwordx2 s[4:5], s[0:1], 64")
if kind == "k2":
    I("v_and_b32 v2, 3, v0")
    I("v_lshl_add_u32 v1, v0, 2, v2")
    I("v_lshlrev_b32 v1, 8, v1")
    I(f"v_add_u32 v1, {0x680000 + 4*g}, v1")
else:
    I("v_lshrrev_b32 v1, 1, v0")
    I("v_lshlrev_b32 v1, 3, v1")
    I("v_and_b32 v2, 1, v0")
    if kind == "a":
        I("v_add_u32 v1, v1, v2"); I("v_add_u32 v1, 6, v1")
    else:
        I("v_mul_u32_u24 v2, 3, v2"); I("v_add_u32 v1, v1, v2"); I("v_add_u32 v1, 1, v1")
    I("v_lshlrev_b32 v1, 9, v1")
    I(f"v_add_u32 v1, {0x700000 + 4*g + (256 if kind == 'l' else 0)}, v1")
I("s_waitcnt lgkmcnt(0)")
I("global_load_dword v10, v1, s[4:5]")
I("s_waitcnt vmcnt(0)")
I("s_mov_b32 s10, 0")
for l in range(64):
    I(f"v_readlane_b32 s14, v10, {l}")
    I("s_add_u32 s10, s10, s14")
I("s_lshr_b32 s20, s10, 10")
I(f"s_mul_i32 s20, s20, {M}")
I("s_min_u32 s20, s20, 50000")
I("s_memrealtime s[8:9]")
I("s_waitcnt lgkmcnt(0)")
c.append("L_e_loop:")
I("s_memrealtime s[22:23]")
I("s_waitcnt lgkmcnt(0)")
I("s_sub_u32 s24, s22, s8")
I("s_cmp_lt_u32 s24, s20")
I("s_cbranch_scc1 L_e_loop")
c.append("L_e_exit:")
I("s_endpgm")
a = a.replace(".globl quip_s1_kernel", "\n".join(c) + "\n.globl quip_s1_kernel", 1)
a = a.rstrip() + """
.p2align 6
.amdhsa_kernel quip_e_kernel
  .amdhsa_next_free_vgpr 80
  .amdhsa_next_free_sgpr 32
  .amdhsa_accum_offset 80
  .amdhsa_group_segment_fixed_size 0
  .amdhsa_kernarg_size 72
  .amdhsa_user_sgpr_count 2
  .amdhsa_user_sgpr_kernarg_segment_ptr 1
  .amdhsa_system_sgpr_workgroup_id_x 1
.end_amdhsa_kernel
"""
open(dst, "w").write(a)
```

```python
import sys, re, math

HEADER = open("standalone__weight_only_int_quip__prompt.s.ref").read().split("; Override launch")[0]
KNAME = "standalone__weight_only_int_quip__prompt_kernel"

XR_OFF = 0
TT_OFF = 0x300000
STAMP_OFF = 0x600000
WQ_OFF = 0x800000
FLAG_OFF = 0x9E0000
WS_BYTES = 0xA10000
FSH = 9

NS = 10
AREA = NS * 4096
RED = 114688
LDS_BYTES = 163840

def vr(b, n=4, p="v"):
    return f"{p}[{b}:{b+n-1}]" if n > 1 else f"{p}{b}"
def R(x, n=4):
    if isinstance(x, tuple): return vr(x[1], n, x[0])
    return vr(x, n)

FL = ["", " sc1", " nt", " sc0 sc1", " sc0"]

VW = 1; L16 = 4
VV = 5; VBV = 9; VP = 13; VXP = 17; VTP = 18; VONE = 19; VPA = 20; VPB = 24; VVAL = 28; VST = 29; VQ = 30
VXR = 5; VY = 7; VT = 9; VL2 = 12
ACC = 32; XO = 64
FR = 96; NFR = 80
TMP = 176
VX = 224; VU = 228; XB = 232; UB = 240
RT2 = 96; WR = 120; NWR = 34
ACC3 = 208; TR = 176; NTR = 8; YT = 120

class Prog:
    def __init__(self, cfg, name):
        self.cfg = cfg; self.name = name
        self.out = []; self.vmq = []; self.lgq = []; self.issued = set(); self.lgissued = set()
        self.val = {}; self.slow = []; self.nst = 0; self.stn = []; self.nl = 0
        self.marks = set(); self.nchk = 0; self.chkn = []
        self.slot = [None] * NS
        self.slot_of = {}; self.age = 0
    def I(self, s): self.out.append(s)
    def L(self, s): self.out.append(s + ":")
    def vm(self, s, tag):
        self.out.append(s); self.vmq.append(tag); self.issued.add(tag)
        assert len(self.vmq) <= 63, "vm overflow"
    def need_vm(self, *tags):
        k = -1
        for t in tags:
            assert t in self.issued, ("not issued", t)
            for i, x in enumerate(self.vmq):
                if x == t: k = max(k, i)
        if k >= 0:
            n = len(self.vmq) - 1 - k
            self.I(f"s_waitcnt vmcnt({n})")
            self.vmq = self.vmq[k + 1:]
    def ds(self, s, tag):
        if len(self.lgq) >= 15:
            self.wait_lg(14)
        self.out.append(s); self.lgq.append(tag); self.lgissued.add(tag)
    def wait_lg(self, n):
        self.I(f"s_waitcnt lgkmcnt({n})")
        self.lgq = self.lgq[len(self.lgq) - n:] if n else []
    def need_lg(self, *tags):
        k = -1
        for t in tags:
            assert t in self.lgissued, ("lg not issued", t)
            for i, x in enumerate(self.lgq):
                if x == t: k = max(k, i)
        if k >= 0: self.wait_lg(len(self.lgq) - 1 - k)
    def setv(self, key, tag): self.val[key] = tag
    def chk(self, key, tag): assert self.val.get(key) == tag, (key, tag, self.val.get(key))
    def alloc(self, tag, shared):
        best = None
        for i, s in enumerate(self.slot):
            if s is None: c = (0, 0)
            elif s[1]: continue
            elif s[2] is None: continue
            else: c = (1 if any(x in self.lgq for x in s[2]) else 0, s[3])
            if best is None or c < best[0]: best = (c, i)
        assert best is not None, ("no free slot", tag, self.slot)
        i = best[1]
        if self.slot[i] is not None: self.need_lg(*self.slot[i][2])
        self.slot[i] = [tag, shared, None, 0]; self.slot_of[tag] = i
        return i
    def done(self, tag, lgtags):
        s = self.slot[self.slot_of[tag]]; assert s[0] == tag
        self.age += 1
        s[2] = list(lgtags); s[3] = self.age
    def barrier(self, drain=True):
        for i, s in enumerate(self.slot):
            if s is not None and s[1] and s[2] is not None:
                if drain: self.need_lg(*s[2])
                if not any(x in self.lgq for x in s[2]): self.slot[i] = None
        self.I("s_barrier")
    def stamp(self, name):
        if not self.cfg.get("stamp"): return
        k = self.nst
        if k >= 3:
            self.I(f"v_writelane_b32 v{VST}, s{94 + 2*((k-3) % 4)}, {k-3+4}")
        self.I(f"s_memtime s[{94 + 2*(k % 4)}:{95 + 2*(k % 4)}]")
        self.stn.append(name); self.nst += 1
        assert self.nst < 58
    def stamp_end(self):
        if not self.cfg.get("stamp"): return
        self.I("s_waitcnt vmcnt(0)")
        self.stamp("end")
        self.I("s_memrealtime s[56:57]")
        self.I("s_getreg_b32 s58, hwreg(HW_REG_XCC_ID)")
        self.I("s_waitcnt lgkmcnt(0)")
        for k in range(max(0, self.nst - 3), self.nst):
            self.I(f"v_writelane_b32 v{VST}, s{94 + 2*(k % 4)}, {k+4}")
        self.I(f"v_writelane_b32 v{VST}, s56, 1")
        self.I(f"v_writelane_b32 v{VST}, s58, 2")
        self.I(f"v_writelane_b32 v{VST}, s93, 3")
        self.I("s_lshl_b32 s56, s2, 2")
        self.I("s_add_u32 s56, s56, s3")
        self.I("s_lshl_b32 s56, s56, 8")
        self.I(f"s_add_u32 s56, s56, {STAMP_OFF}")
        self.I(f"v_lshrrev_b32 v0, 2, v{L16}")
        self.I(f"buffer_store_dword v{VST}, v0, s[36:39], s56 offen")
    def vload(self, d):
        name, vd, txt, ex, n = d
        return [f"s_mov_b64 exec, {hex(ex)}", txt, "s_mov_b64 exec, -1"]
    def poll_issue(self, d):
        o = self.vload(d)
        self.I(o[0]); self.vm(o[1], ("poll", d[0])); self.I(o[2])
        self.setv(("v", d[1]), ("poll", d[0]))
    def poll_check(self, d):
        self.nl += 1
        Ls = f"L_{self.name}_sl{self.nl}"; Lb = f"L_{self.name}_bk{self.nl}"
        v = d[1]
        self.chk(("v", v), ("poll", d[0]))
        red = []
        if d[4] == 4:
            red = [f"v_min3_u32 v{v}, v{v}, v{v+1}, v{v+2}", f"v_min_u32 v{v}, v{v}, v{v+3}"]
        red += [f"v_cmp_ne_u32 vcc, 1, v{v}", f"s_and_b32 s52, vcc_lo, {hex(d[3])}"]
        self.need_vm(("poll", d[0]))
        for x in red: self.I(x)
        self.I(f"s_cbranch_scc1 {Ls}")
        self.L(Lb)
        sl = [Ls + ":", "s_mov_b32 s54, 0", Ls + "l:", "s_add_u32 s54, s54, 1"]
        if self.cfg.get("stamp"): sl.append(f"s_add_u32 s93, s93, {1 << (4 * self.nchk)}")
        sl += [f"s_cmp_gt_u32 s54, {self.cfg.get('cap', 30000)}", f"s_cbranch_scc1 {Lb}"] + self.vload(d) + ["s_waitcnt vmcnt(0)"] + red + \
              [f"s_cbranch_scc1 {Ls}l", f"s_branch {Lb}"]
        self.slow.extend(sl)
        self.nchk += 1; self.chkn.append(d[0])
        self.marks.add(("ok", d[0]))
    def flag(self, kind):
        assert ("ok", "v") in self.marks
        self.barrier(False)
        self.nl += 1
        Ln = f"L_{self.name}_f{self.nl}"
        self.I(f"s_cmp_lg_u32 s3, {kind}")
        self.I(f"s_cbranch_scc1 {Ln}")
        self.I("s_mov_b64 exec, 1")
        self.I(f"buffer_store_dword v{VONE}, v{L16}, s[36:39], s5 offen offset:{128*kind} sc1")
        self.I("s_mov_b64 exec, -1")
        self.L(Ln)

def srd_const(p, d, nbytes):
    p.I(f"s_mov_b32 s{d+2}, {nbytes}")
    p.I(f"s_mov_b32 s{d+3}, 0x00020000")
def srd_base(p, d, base):
    p.I(f"s_mov_b32 s{d}, s{base}")
    p.I(f"s_and_b32 s{d+1}, s{base+1}, 0xffff")

def mfma(d, a, b, first):
    return f"v_mfma_f32_16x16x32_bf16 {R(d)}, {R(a)}, {R(b)}, {'0' if first else R(d)}"

def psum(p, A, Rg, O):
    for u in range(2):
        p.I(f"v_pk_add_f32 {vr(A+2*u,2)}, {vr(A+2*u,2)}, {vr(Rg+2*u,2)}")
        p.I(f"v_pk_add_f32 {vr(Rg+4+2*u,2)}, {vr(Rg+4+2*u,2)}, {vr(Rg+8+2*u,2)}")
    for u in range(2):
        p.I(f"v_pk_add_f32 {vr(A+2*u,2)}, {vr(A+2*u,2)}, {vr(Rg+4+2*u,2)}")
    for u in range(2):
        p.I(f"v_cvt_pk_bf16_f32 v{O+u}, v{A+2*u}, v{A+2*u+1}")

class Sched:
    def __init__(self, p):
        self.p = p; self.stream = []; self.cons = []; self.pos = {}; self.stores = []
    def load(self, tag, fn):
        self.pos[tag] = len(self.stream); self.stream.append(fn)
    def at(self, trig, fn):
        self.cons.append((trig, len(self.cons), fn)); return trig
    def store(self, trig, lat):
        self.stores.append((trig, lat))
    def rdy(self, pos, L):
        if not isinstance(pos, (int, float)): pos = self.pos[pos]
        t = pos + L
        for s, lat in self.stores:
            if s < pos: t = max(t, s + lat)
        return t
    def run(self):
        cons = sorted(self.cons, key=lambda x: (x[0], x[1]))
        ci = 0
        while ci < len(cons) and cons[ci][0] < 0:
            cons[ci][2](); ci += 1
        for n, fn in enumerate(self.stream):
            fn()
            while ci < len(cons) and cons[ci][0] < n + 1:
                cons[ci][2](); ci += 1
        while ci < len(cons):
            cons[ci][2](); ci += 1

def common_head(p, cfg):
    I = p.I
    I("s_cmp_ge_u32 s2, 256")
    I("s_cbranch_scc1 L_exit")
    if cfg.get("stamp"):
        I("s_memrealtime s[90:91]")
    p.stamp("begin")
    I("s_load_dwordx8 s[4:11], s[0:1], 0")
    I("s_load_dwordx8 s[12:19], s[0:1], 32")
    I("s_load_dwordx2 s[20:21], s[0:1], 64")
    I("s_lshr_b32 s56, s2, 3")
    I("v_and_b32 v1, 63, v0")
    I("v_lshrrev_b32 v2, 6, v0")
    I("v_and_b32 v3, 15, v1")
    I("v_readfirstlane_b32 s3, v2")
    I("v_lshrrev_b32 v2, 4, v1")
    if cfg.get("cpf", 1):
        I("s_getpc_b64 s[60:61]")
        p.L("L_pc")
        I("v_subrev_u32 v5, 64, v0")
        I("v_lshl_add_u32 v6, s56, 4, v5")
        I("v_lshlrev_b32 v6, 7, v6")
        I("v_cmp_gt_u32 vcc, 16, v5")
        I("s_mov_b32 s62, L_code_end-L_pc")
        I("v_cmp_gt_u32 s[64:65], s62, v6")
        I("s_and_b64 exec, vcc, s[64:65]")
        I(f"global_load_dword v95, v6, s[60:61]")
        I("s_mov_b64 exec, -1")
    I("s_bfe_u32 s22, s2, 0x20001")
    I("s_and_b32 s23, s2, 1")
    I("s_mul_i32 s57, s56, 52")
    I("s_lshr_b32 s57, s57, 8")
    I("s_mul_i32 s58, s57, 5")
    I("s_sub_u32 s58, s56, s58")
    I("s_sub_u32 s59, s56, 24")
    I("s_cmp_ge_u32 s56, 30")
    I("s_cselect_b32 s57, s59, s57")
    I("s_cselect_b32 s58, 0, s58")
    I(f"v_lshlrev_b32 v{L16}, 4, v1")
    I("s_mul_i32 s59, s23, 5")
    I("s_add_u32 s59, s59, s58")
    I(f"s_mul_i32 s92, s3, {AREA}")
    I("s_lshl_b32 s67, s22, 3")
    I("s_add_u32 s67, s67, s57")
    I("s_add_u32 s62, s57, s58")
    I("s_mul_i32 s63, s62, 52")
    I("s_lshr_b32 s63, s63, 8")
    I("s_mul_i32 s63, s63, 5")
    I("s_sub_u32 s62, s62, s63")
    I("s_lshl_b32 s63, s67, 2")
    I("s_add_u32 s63, s63, s3")
    I("s_mul_i32 s63, s63, 20480")
    I("s_mul_i32 s64, s3, 40960")
    I("s_lshl_b32 s65, s59, 7")
    I("s_add_u32 s64, s64, s65")
    for g in range(5):
        if g:
            I("s_add_u32 s62, s62, 1")
            I("s_cmp_eq_u32 s62, 5")
            I("s_cselect_b32 s62, 0, s62")
        I(f"s_lshl_b32 s65, s62, 8")
        I(f"s_add_u32 s{76+g}, s65, s63")
        I(f"s_mul_i32 s65, s62, 163840")
        I(f"s_add_u32 s{81+g}, s65, s64")
    I("v_lshrrev_b32 v5, 3, v1")
    I("v_bfe_u32 v6, v1, 1, 2")
    I("v_xor_b32 v6, v6, v2")
    I("v_lshlrev_b32 v6, 5, v6")
    I("v_and_b32 v7, 1, v1")
    I("v_lshl_add_u32 v6, v7, 4, v6")
    I(f"v_mul_u32_u24 v{VU}, 1280, v5")
    I(f"v_add_u32 v{VU}, v{VU}, v6")
    I(f"v_xor_b32 v7, 64, v{VU}")
    I(f"v_add_u32 v{VU+1}, {10240-1024}, v7")
    I(f"v_add_u32 v{VU+2}, {2*(10240-1024)}, v{VU}")
    I(f"v_add_u32 v{VU+3}, {3*(10240-1024)}, v7")
    I(f"v_xor_b32 v0, v3, v2")
    I(f"v_mul_u32_u24 v{VX}, 1280, v2")
    I(f"v_lshl_add_u32 v{VX}, v0, 4, v{VX}")
    for b in range(1, 4):
        I(f"v_xor_b32 v7, {64*b}, v{VX}")
        I(f"v_add_u32 v{VX+b}, {b*(5120-1024)}, v7")
    srd_const(p, 24, 2621440)
    srd_const(p, 28, 819200)
    srd_const(p, 36, WS_BYTES)
    I("s_cmp_ge_u32 s56, 30")
    I("s_cbranch_scc1 L_special")

def setup_rest(p, cfg, special):
    I = p.I
    I("v_xor_b32 v0, v3, v2")
    I("v_lshlrev_b32 v0, 4, v0")
    I("v_lshl_add_u32 v0, v3, 8, v0")
    I("s_lshr_b32 s64, s3, 1")
    I(f"s_mul_i32 s64, s64, {2*AREA}")
    I(f"v_add_u32 v{XB}, s64, v0")
    for j in range(1, 4):
        I(f"v_xor_b32 v{XB+j}, {64*j}, v{XB}")
    for j in range(4):
        I(f"v_add_u32 v{XB+4+j}, {AREA}, v{XB+j}")
    A = UB + 15
    I("v_lshrrev_b32 v0, 3, v3")
    I(f"v_and_b32 v{A}, 1, v2")
    I(f"v_lshl_or_b32 v0, v{A}, 1, v0")
    I(f"v_lshrrev_b32 v{A}, 2, v3")
    I(f"v_lshl_add_u32 v0, v{A}, 2, v0")
    I("v_lshl_add_u32 v0, v2, 5, v0")
    I(f"v_lshlrev_b32 v{A}, 5, v0")
    I("v_and_b32 v0, 3, v3")
    I(f"v_lshl_add_u32 v0, v0, 3, v{A}")
    I("s_and_b32 s64, s3, 1")
    I("s_lshl_b32 s64, s64, 6")
    I(f"v_xor_b32 v{UB}, s64, v0")
    for u in range(1, 4):
        I(f"v_xor_b32 v{UB+u}, {32*u}, v{UB}")
    for j in range(1, 4):
        for u in range(4):
            I(f"v_add_u32 v{UB+4*j+u}, {j*AREA}, v{UB+u}")
    if not special:
        I("s_lshl_b32 s64, s3, 5")
        I(f"v_xor_b32 v0, s64, v0")
        I(f"v_add_u32 v{VBV}, s92, v0")
        for t in range(1, 4):
            I(f"v_xor_b32 v{VBV+t}, {32*t}, v{VBV}")
    I(f"v_mov_b32 v{VONE}, 1")

def setup_ids(p, cfg, special):
    I = p.I
    srd_base(p, 40, 16)
    srd_const(p, 40, 6291456)
    I("s_lshl_b32 s64, s67, 2")
    I("s_and_b32 s65, s3, 2")
    I("s_add_u32 s64, s64, s65")
    I("s_mul_i32 s64, s64, 10")
    I("s_add_u32 s64, s64, s59")
    I("s_lshl_b32 s64, s64, 1")
    I("s_and_b32 s65, s3, 1")
    I("s_add_u32 s64, s64, s65")
    I("s_lshl_b32 s4, s64, 10")
    if XR_OFF: I(f"s_add_u32 s4, s4, {XR_OFF}")
    I("s_add_u32 s10, s4, 20480")
    I("s_lshl_b32 s64, s59, 5")
    I("s_add_u32 s64, s64, s67")
    I(f"s_lshl_b32 s5, s64, {FSH}")
    I(f"s_add_u32 s5, s5, {FLAG_OFF}")
    I("s_and_b32 s64, s56, 3")
    I("s_lshl_b32 s6, s22, 2")
    I("s_add_u32 s6, s6, s64")
    I("s_lshr_b32 s65, s56, 2")
    I("s_lshl_b32 s7, s23, 3")
    I("s_add_u32 s7, s7, s65")
    I(f"s_lshl_b32 s14, s6, {FSH+1}")
    I(f"s_add_u32 s14, s14, {FLAG_OFF}")
    I("s_mul_i32 s15, s7, 3")
    I("s_lshr_b32 s15, s15, 1")
    for r, ad in ((68, 0), (69, 1)):
        I(f"s_add_u32 s{r}, s15, {ad}")
        I(f"s_mul_i32 s13, s{r}, 43")
        I("s_lshr_b32 s13, s13, 8")
        I("s_lshl_b32 s13, s13, 1")
        I(f"s_add_u32 s{r}, s{r}, s13")
    I("s_sub_u32 s13, s69, s68")
    I(f"s_lshl_b32 s13, s13, {FSH}")
    I(f"s_lshl_b32 s15, s68, {FSH}")
    I(f"s_add_u32 s15, s15, {FLAG_OFF}")
    I(f"s_mul_i32 s68, s64, {cfg.get('rm', 3)}")
    I("s_add_u32 s68, s68, s65")
    I("s_mul_i32 s69, s68, 52")
    I("s_lshr_b32 s69, s69, 8")
    I("s_mul_i32 s69, s69, 5")
    I("s_sub_u32 s69, s68, s69")
    I("s_mul_i32 s69, s69, 3")
    I(f"s_lshr_b32 s12, {sum(v << (3*i) for i, v in enumerate([0,1,2,3,4,0,1,2,3]))}, s69")
    I(f"v_and_b32 v{VTP}, 1, v1")
    I(f"v_lshrrev_b32 v{VXP}, 1, v1")
    I(f"v_lshl_add_u32 v{VXP}, v{VXP}, 5, v{VTP}")
    I(f"v_lshlrev_b32 v{VXP}, {FSH}, v{VXP}")
    I(f"v_mul_u32_u24 v{VTP}, s13, v2")
    I(f"v_lshl_add_u32 v{VTP}, v3, {FSH+5}, v{VTP}")
    I(f"v_lshlrev_b32 v{VW}, {FSH}, v1")
    p.marks.add("ids")

def vp_setup(p):
    I = p.I
    for t in range(4):
        I(f"s_xor_b32 s64, s3, {t}")
        I(f"s_mul_i32 s64, s64, 12288")
        I(f"s_add_u32 s64, s64, {RED + max(t-1, 0)*4096}")
        I(f"v_add_u32 v{VP+t}, s64, v{L16}")

def p3_setup(p):
    I = p.I
    I("s_lshl_b32 s54, s6, 3")
    I("s_lshl_b32 s55, s3, 1")
    I("s_add_u32 s54, s54, s55")
    I("s_mul_i32 s55, s54, 20480")
    if XR_OFF: I(f"s_add_u32 s55, s55, {XR_OFF}")
    I(f"v_add_u32 v{VXR}, s55, v{L16}")
    I(f"v_add_u32 v{VXR+1}, 20480, v{VXR}")
    I("s_lshl_b32 s54, s54, 4")
    I(f"v_add_u32 v{VY}, s54, v3")
    I(f"v_mul_u32_u24 v{VY}, 3072, v{VY}")
    I(f"v_and_b32 v{VY+1}, 1, v2")
    I(f"v_lshl_add_u32 v{VY}, v{VY+1}, 5, v{VY}")
    I(f"v_lshrrev_b32 v{VY+1}, 1, v2")
    I(f"v_lshl_add_u32 v{VY}, v{VY+1}, 4, v{VY}")
    I("s_mul_i32 s54, s7, 192")
    I(f"v_add_u32 v{VY}, s54, v{VY}")
    I(f"v_add_u32 v{VY+1}, 49152, v{VY}")
    I("s_and_b32 s54, s3, 1")
    I("s_mul_i32 s54, s54, 3")
    I("s_mul_i32 s55, s7, 6")
    I("s_add_u32 s54, s54, s55")
    I("s_mul_i32 s54, s54, 20480")
    I("s_lshr_b32 s55, s3, 1")
    I("s_lshl_b32 s55, s55, 11")
    I("s_add_u32 s54, s54, s55")
    I(f"s_add_u32 s54, s54, {TT_OFF}")
    I(f"v_add_u32 v{VT}, s54, v{L16}")
    I(f"v_add_u32 v{VT+1}, {20480-1024}, v{VT}")
    I(f"v_add_u32 v{VT+2}, {2*(20480-1024)}, v{VT}")
    I(f"v_add_u32 v{VL2}, 61440, v{L16}")
    I("s_mul_i32 s22, s3, 3072")
    p.marks.add("p3setup")

def add_fill(p, S, tagf, vreg, srdn, soff, shared, pre=()):
    for b in range(4):
        def fn(b=b):
            if b == 0:
                sl = p.alloc(tagf, shared)
                p.I(f"s_add_u32 m0, s92, {sl * 4096}")
                if pre:
                    for x in pre: p.I(x)
                else:
                    p.I("s_nop 0")
            p.vm(f"buffer_load_dwordx4 v{vreg+b}, s[{srdn}:{srdn+3}], {soff} offen offset:{b*1024} lds", (tagf, b))
        S.load((tagf, b), fn)

def p1_cons(p, S, cfg, tile, t_min, xf, uf, nuf, acc, L):
    d1 = cfg.get("d1", 1.0); dm = cfg.get("dm", 1.5)
    t = t_min
    for g in range(5):
        tu = ("U", tile, g); tx = ("X", g)
        tg = S.rdy((tu, 3), L)
        if tile == 0: tg = max(tg, S.rdy((tx, 3), L))
        tg = max(tg, t)
        def gate(tu=tu, tx=tx, g=g):
            p.need_vm(*[(tu, b) for b in range(4)])
            if tile == 0: p.need_vm(*[(tx, b) for b in range(4)])
            p.barrier(cfg.get("drain", 0))
            if cfg.get("fst") and (p.name == "r" or tile == 0 or g == 0): p.stamp(f"G{tile}{g}")
        S.at(tg, gate)
        for j in range(4):
            n = (tile * 5 + g) * 4 + j
            def rd(g=g, j=j, n=n, tu=tu, tx=tx):
                assert n < nuf or ("m1", n - nuf) in p.marks
                if len(p.lgq) > 9: p.wait_lg(9)
                if tile == 0:
                    so = p.slot_of[tx] * 4096
                    for i in range(2):
                        p.ds(f"ds_read_b128 {R(xf(g, j, i))}, v{XB+4*i+j} offset:{so}", ("r1", n))
                        p.setv(xf(g, j, i), ("x", g, j, i))
                so = p.slot_of[tu] * 4096
                for tl in range(2):
                    d = uf(n % nuf, tl)
                    for hb in range(2):
                        p.ds(f"ds_read_b64_tr_b16 {vr(d+2*hb, 2)}, v{UB + 4*j + (tl ^ (2*hb))} offset:{so + 512*hb}", ("r1", n))
                    p.setv(("v", d), ("u", n, tl))
                if j == 3:
                    tags = [("r1", n - k) for k in range(4)]
                    p.done(tu, tags)
                    if tile == 0: p.done(tx, tags)
            tr_ = max(tg + j * d1, S.lastm.get(n - nuf, 0))
            S.at(tr_, rd)
            def mm(g=g, j=j, n=n):
                p.need_lg(("r1", n))
                for i in range(2):
                    for tl in range(2):
                        p.chk(xf(g, j, i), ("x", g, j, i)); p.chk(("v", uf(n % nuf, tl)), ("u", n, tl))
                        p.I(mfma(acc + 8 * i + 4 * tl, uf(n % nuf, tl), xf(g, j, i), g == 0 and j == 0))
                p.marks.add(("m1", n))
            tm = max(tr_ + dm, S.lastm.get(n - 1, 0))
            S.at(tm, mm); S.lastm[n] = tm
        t = tr_
    return tm

def xr_store(p, tile, acc):
    def fn():
        for i in range(2):
            for k in range(4):
                p.I(f"v_cvt_pk_bf16_f32 v{XO+4*i+k}, v{acc+8*i+2*k}, v{acc+8*i+2*k+1}")
            p.vm(f"buffer_store_dwordx4 {vr(XO+4*i)}, v{L16}, s[36:39], s{10 if i else 4} offen sc1", ("xst", tile))
        p.stamp(f"xst{tile}")
    return fn

XMAP = {}
VALID = ("v", VVAL, f"global_load_dword v{VVAL}, v{L16}, s[18:19] sc1", 0x1f, 1)
WLOADS = ("w", VPA, f"buffer_load_dword v{VPA}, v{VW}, s[36:39], s9 offen sc1", 0x3f3f3f3f, 1)
XLOADS = ("x", VPB, f"buffer_load_dword v{VPB}, v{VXP}, s[36:39], s14 offen offset:128 sc1", 0xfffff, 1)
def tloads(h):
    v = (VPA, VPB)[h]
    return (f"t{h}", v, f"buffer_load_dword v{v}, v{VTP}, s[36:39], s15 offen offset:{256+128*h} sc1", 0x3ff03ff, 1)

def p3_stream(p, S, cfg, xreg, D):
    tf = FL[cfg.get("tf", 1)]
    def xr(pos):
        h = pos // 10; k = pos % 10
        for u in range(2):
            def fn(u=u):
                assert "p3setup" in p.marks
                if u == 0:
                    if pos == 0:
                        p.stamp("xa")
                        p.poll_check(XLOADS)
                        p.stamp("xb")
                    p.I(f"s_bfe_u32 s55, s12, {hex(0x30000 + 3*(k // 2))}")
                    p.I("s_lshl_b32 s55, s55, 12")
                d = xreg(pos, u)
                p.setv(d, ("xr", pos, u))
                p.vm(f"buffer_load_dwordx4 {R(d)}, v{VXR+u}, s[36:39], s55 offen offset:{h*1024 + (k % 2)*2048} sc1", ("xr", pos, u))
            S.load(("xr", pos, u), fn)
    def tl(c):
        h = c // 5
        for jj in range(3):
            def fn(jj=jj):
                if jj == 0:
                    assert "ringfree" in p.marks
                    if c >= 9: assert "redfree" in p.marks
                    if c in (0, 5):
                        assert ("tfl", h) in p.marks
                        p.stamp(f"t{h}a")
                        p.poll_check(tloads(h))
                        p.stamp(f"t{h}b")
                    p.I(f"s_bfe_u32 s91, s12, {hex(0x30000 + 3*(c % 5))}")
                    p.I(f"s_add_u32 m0, s22, {c*12288}")
                    p.I("s_lshl_b32 s91, s91, 12")
                    if h: p.I("s_add_u32 s91, s91, 1024")
                p.vm(f"buffer_load_dwordx4 v{VT+jj}, s[36:39], s91 offen offset:{jj*1024}{tf} lds", ("t", c))
            S.load(("t", c, jj), fn)
    for k in range(20): XMAP[k] = k
    for k in range(min(D, 20)): xr(k)
    per = cfg.get("xper", 2)
    k = D
    for c in range(10):
        tl(c)
        for _ in range(per if c < 4 else 20):
            if k < 20: xr(k); k += 1

def p3_cons(p, S, cfg, t_min, xreg):
    L3 = cfg.get("L3", 10)
    DEPTH = cfg.get("depth", 5)
    Q = cfg.get("Q", 6)
    stf = FL[cfg.get("yf", 2)]
    items = []
    for pos in range(20):
        for t in range(6):
            if pos >= 20 - Q and t >= 4: continue
            items.append((pos, t))
    n1 = len(items)
    for pos in range(20 - Q, 20):
        for t in (4, 5): items.append((pos, t))
    first = {}
    for k, (pos, t) in enumerate(items):
        first.setdefault(pos // 2, k)
    G = {}
    prev = t_min
    for c in range(10):
        G[c] = max(S.rdy(("t", c, 2), L3), S.rdy(("xr", 2*c+1, 1), L3), prev); prev = G[c] + cfg.get("gd", 0.5)
    G[10] = G[9] + 8
    gate_at = {first[c]: c for c in range(10)}
    def rd(k):
        pos, t = items[k]
        if k in gate_at:
            c = gate_at[k]
            assert "wqdone" in p.marks
            p.need_vm(("t", c))
            p.barrier()
            if "red1read" in p.marks: p.marks.add("redfree")
            p.stamp(f"g{c}")
        off = pos * 6144 + t * 1024
        reg = TR + 4 * (k % NTR)
        if off >= 61440: p.ds(f"ds_read_b128 {vr(reg)}, v{VL2} offset:{off-61440}", ("tq", k))
        else: p.ds(f"ds_read_b128 {vr(reg)}, v{L16} offset:{off}", ("tq", k))
    def mm(k):
        pos, t = items[k]
        p.need_lg(("tq", k))
        for u in range(2):
            p.need_vm(("xr", pos, u))
            p.chk(xreg(pos, u), ("xr", pos, u))
            p.I(mfma(ACC3 + 4 * (t * 2 + u), TR + 4 * (k % NTR), xreg(pos, u), pos == 0))
    def store(u, s, o):
        a0 = ACC3 + 4 * ((2*s) * 2 + u); a1 = ACC3 + 4 * ((2*s+1) * 2 + u)
        for x in [f"v_cvt_pk_bf16_f32 v{o}, v{a0}, v{a0+1}", f"v_cvt_pk_bf16_f32 v{o+1}, v{a0+2}, v{a0+3}",
                  f"v_cvt_pk_bf16_f32 v{o+2}, v{a1}, v{a1+1}", f"v_cvt_pk_bf16_f32 v{o+3}, v{a1+2}, v{a1+3}",
                  f"v_permlane16_swap_b32 v{o}, v{o+2}", f"v_permlane16_swap_b32 v{o+1}, v{o+3}"]:
            p.I(x)
        p.vm(f"buffer_store_dwordx4 {vr(o)}, v{VY+u}, s[40:43], 0 offen offset:{64*s}{stf}", "y")
    n = len(items)
    def trig(j):
        jj = min(j, n - 1)
        c = max(cc for cc in range(10) if first[cc] <= jj)
        lo = first[c]; hi = first.get(c + 1, n)
        return G[c] + min(G[c + 1] - G[c], cfg.get("gspan", 6)) * (jj - lo) / (hi - lo) * 0.999
    sts = [(u, s) for s in range(2) for u in range(2)]
    for j in range(n + DEPTH):
        def fn(j=j):
            if j - DEPTH >= 0: mm(j - DEPTH)
            if j < n: rd(j)
            k = j - DEPTH - n1 - 1
            if Q and 0 <= k < 4:
                store(sts[k][0], sts[k][1], YT + 4 * k)
        S.at(trig(j), fn)
    def tail():
        p.stamp("mend")
        if not Q:
            for k in range(4): store(sts[k][0], sts[k][1], YT + 4 * k)
        for u in range(2): store(u, 2, YT + 16 + 4 * u)
    S.at(trig(n + DEPTH) + 1, tail)
    return G

def gen_regular(cfg):
    p = Prog(cfg, "r"); I = p.I
    common_head(p, cfg)
    I("s_mul_i32 s60, s22, 6")
    I("s_add_u32 s60, s60, s57")
    I("s_lshl_b32 s61, s59, 2")
    I("s_add_u32 s61, s61, s3")
    I("s_mul_i32 s70, s61, 98304")
    I("s_lshl_b32 s71, s60, 8")
    I("s_add_u32 s70, s70, s71")
    I("s_lshr_b32 s71, s61, 1")
    I("s_mul_i32 s71, s71, 3072")
    I("s_lshl_b32 s72, s60, 7")
    I("s_add_u32 s71, s71, s72")
    I(f"v_mul_u32_u24 v0, 3072, v5")
    I(f"v_add_u32 v{VV+2}, v0, v6")
    I(f"v_bfe_u32 v6, v5, 1, 1")
    I(f"v_and_or_b32 v6, v5, 4, v6")
    I(f"v_and_b32 v0, 7, v1")
    I(f"v_xor_b32 v6, v6, v0")
    I(f"v_mul_u32_u24 v{VQ}, 6144, v5")
    I(f"v_lshl_add_u32 v{VQ}, v6, 4, v{VQ}")
    I(f"v_mov_b32 v{VV}, v{VV+2}")
    I(f"v_xor_b32 v0, 64, v{VV}")
    I(f"v_add_u32 v{VV+1}, {24576-1024}, v0")
    I(f"v_add_u32 v{VV+2}, {2*(24576-1024)}, v{VV}")
    I(f"v_add_u32 v{VV+3}, {3*(24576-1024)}, v0")
    I("s_mov_b32 m0, s92")
    I(f"v_lshlrev_b32 v{VP}, 4, v2")
    for r, n in ((44, 3932160), (48, 61440), (52, 61440), (32, 4718592)):
        srd_const(p, r, n)
    I("s_cmp_lt_u32 s2, 5")
    I("s_cselect_b32 s73, s3, 0")
    I(f"s_lshl_b32 s74, s2, {FSH+6}")
    I(f"s_add_u32 s74, s74, {FLAG_OFF}")
    I(f"v_lshlrev_b32 v{VP+1}, {FSH}, v1")
    I(f"s_mul_i32 s64, s58, {cfg.get('ve', 5)}")
    I(f"s_mul_i32 s65, s57, {cfg.get('vm', 2)}")
    I("s_add_u32 s64, s64, s65")
    I("s_mul_i32 s65, s3, 12")
    I("s_add_u32 s64, s64, s65")
    I("s_cmp_ge_u32 s64, 48")
    I("s_cselect_b32 s65, 48, 0")
    I("s_sub_u32 s64, s64, s65")
    I("s_lshl_b32 s86, s64, 11")
    I("s_mul_i32 s87, s64, 98304")
    I("s_lshl_b32 s65, s60, 7")
    I("s_add_u32 s87, s87, s65")
    I("s_waitcnt lgkmcnt(0)")
    if cfg.get("stamp"):
        I(f"v_mov_b32 v{VST}, s90")
        I("s_mov_b32 s93, 0")
    srd_base(p, 44, 6)
    p.stamp("ka")
    Q = TMP; SZ = TMP + 16; SF = TMP + 32; ZF = TMP + 40
    assert p.alloc("q", False) == 0
    for n in range(4):
        if n:
            I(f"s_add_u32 m0, s92, {n*1024}")
            I(f"s_add_u32 s72, s70, {(n // 2) * 128 + (n % 2) * 49152}")
        p.vm(f"buffer_load_dwordx4 v{VQ}, s[44:47], {'s72' if n else 's70'} offen lds", "qd")
    for d, b in ((48, 8), (52, 10), (36, 20), (24, 4), (28, 12), (32, 14)):
        srd_base(p, d, b)
    I("s_cmp_lg_u32 s73, 3")
    I("s_cbranch_scc1 L_r_nz")
    I(f"v_mov_b32 v{ACC}, 0")
    for k in range(4):
        I(f"buffer_store_dword v{ACC}, v{VP+1}, s[36:39], s74 offen offset:{128*k} sc1")
    p.L("L_r_nz")
    nz0 = len(p.vmq)
    for kk in range(2):
        p.vm(f"buffer_load_dwordx4 {vr(SZ + 8*kk)}, v{VP}, s[48:51], s71 offen offset:{kk*64}", ("q", kk))
        p.vm(f"buffer_load_dwordx4 {vr(SZ + 8*kk + 4)}, v{VP}, s[52:55], s71 offen offset:{kk*64}", ("q", kk))
    S = Sched(p); S.lastm = {}
    nv = [0]
    def Vf():
        i = nv[0]; nv[0] += 1
        pre = [] if i == 0 else ["s_add_u32 s87, s87, 98304", "s_cmp_ge_u32 s87, 4718592", "s_cselect_b32 s55, 4718592, 0", "s_sub_u32 s87, s87, s55"]
        add_fill(p, S, ("V", i), VV, 32, "s87", False, pre)
    ORD = {0: "0 1 2 3 4", 1: "0 V 1 2 3 4", 2: "0 V V 1 2 3 4", 3: "V V 0 1 2 3 4", 4: "0 V 1 V 2 3 4", 5: "0 V 1 V 2 V 3 V 4"}[cfg.get("ord", 0)]
    for u in ORD.split():
        if u == "V": Vf()
        else:
            g = int(u)
            add_fill(p, S, ("U", 0, g), VU, 28, f"s{81+g}", True)
            add_fill(p, S, ("X", g), VX, 24, f"s{76+g}", True)
    while nv[0] < 12: Vf()
    nB = len(S.stream)
    for h in range(2):
        for i in range(12):
            for dt in range(2):
                n = (h * 12 + i) * 2 + dt
                def fn(h=h, i=i, dt=dt, n=n):
                    if n == 0:
                        p.stamp("wa")
                        p.poll_check(WLOADS)
                        p.stamp("wb")
                    if dt == 0:
                        if i == 0:
                            I("s_mov_b32 s91, s86")
                        else:
                            I("s_add_u32 s91, s91, 2048")
                            I("s_cmp_ge_u32 s91, 98304")
                            I("s_cselect_b32 s91, 0, s91")
                        I(f"s_add_u32 s90, s91, s{88+h}")
                    reg = WR + 4 * (n % NWR)
                    assert n < NWR and "p1done" in p.marks or ("wdone", n - NWR) in p.marks, n
                    p.setv(("v", reg), ("w", n))
                    p.vm(f"buffer_load_dwordx4 {vr(reg)}, v{L16}, s[36:39], s90 offen offset:{dt*1024} sc1", ("w", n))
                S.load(("w", n), fn)
    def xreg(pos, u):
        k = XMAP[pos]
        if k >= 8: assert ("vfree", (k - 8) // 2) in p.marks, pos
        return ("a", 192 + 8 * k + 4 * u) if k < 8 else ("a", 8 * (k - 8) + 4 * u)
    p3_stream(p, S, cfg, xreg, cfg.get("D", 12))
    pre = cfg.get("pre", 16)
    LS = cfg.get("LS", 20); LF = cfg.get("LF", 16)
    def rest():
        setup_rest(p, cfg, False)
        I("v_bfe_u32 v0, v3, 1, 1")
        I("v_and_or_b32 v0, v3, 4, v0")
        I(f"v_lshlrev_b32 v{VQ+1}, 1, v2")
        I(f"v_xor_b32 v0, v0, v{VQ+1}")
        I("v_lshl_add_u32 v0, v3, 3, v0")
        I(f"v_lshl_add_u32 v{VQ}, v0, 4, s92")
        I(f"v_xor_b32 v{VQ+1}, 16, v{VQ}")
    def rest2():
        setup_ids(p, cfg, False)
        I("s_lshr_b32 s64, s61, 1")
        I("s_mul_i32 s64, s64, 48")
        I("s_lshl_b32 s65, s60, 1")
        I("s_add_u32 s64, s64, s65")
        I("s_lshl_b32 s64, s64, 1")
        I("s_and_b32 s65, s3, 1")
        I("s_add_u32 s64, s64, s65")
        I("s_lshl_b32 s8, s64, 10")
        I(f"s_add_u32 s8, s8, {WQ_OFF}")
        I(f"s_lshl_b32 s9, s59, {FSH+5}")
        I(f"s_add_u32 s9, s9, {FLAG_OFF}")
        I("s_lshl_b32 s64, s60, 2")
        I("s_add_u32 s64, s64, s3")
        I("s_mul_i32 s64, s64, 10")
        I("s_add_u32 s64, s64, s59")
        I("s_lshl_b32 s11, s64, 11")
        I(f"s_add_u32 s11, s11, {TT_OFF}")
        I("s_mul_i32 s88, s59, 196608")
        I(f"s_add_u32 s88, s88, {WQ_OFF}")
        I("s_add_u32 s89, s88, 98304")
        vp_setup(p)
        I("s_cmp_lg_u32 s73, 3")
        I("s_cbranch_scc1 L_r_nv")
        I(f"s_waitcnt vmcnt({len(p.vmq) - nz0})")
        I("s_lshl_b64 exec, 1, s2")
        I(f"global_store_dword v{L16}, v{VONE}, s[18:19] sc1")
        I("s_mov_b64 exec, -1")
        p.L("L_r_nv")
    S.at(cfg.get("r1", 7), rest)
    S.at(cfg.get("r2", 11), rest2)
    def pack(kk):
        def fn():
            if kk == 0:
                p.need_vm("qd")
                p.stamp("q")
                for k2 in range(2):
                    p.ds(f"ds_read_b128 {vr(Q + 8*k2)}, v{VQ} offset:{k2*2048}", ("qr", k2))
                    p.ds(f"ds_read_b128 {vr(Q + 8*k2 + 4)}, v{VQ+1} offset:{k2*2048}", ("qr", k2))
                p.done("q", [("qr", 0), ("qr", 1)])
            p.need_vm(("q", kk))
            r = SZ + 8 * kk; q = Q + 8 * kk
            for k in range(4):
                I(f"v_lshlrev_b32 v{ZF+2*k}, 16, v{r+4+k}")
                I(f"v_and_b32 v{ZF+2*k+1}, 0xffff0000, v{r+4+k}")
            for k in range(4):
                I(f"v_lshlrev_b32 v{SF+2*k}, 16, v{r+k}")
                I(f"v_and_b32 v{SF+2*k+1}, 0xffff0000, v{r+k}")
            p.need_lg(("qr", kk))
            for k in range(8):
                I(f"v_cvt_f32_i32 v{q+k}, v{q+k}")
            for k in range(4):
                I(f"v_pk_add_f32 {vr(q+2*k,2)}, {vr(q+2*k,2)}, {vr(ZF+2*k,2)} neg_lo:[0,1] neg_hi:[0,1]")
            for k in range(4):
                I(f"v_cvt_pk_bf16_f32 v{ZF+k}, v{q+2*k}, v{q+2*k+1}")
            for k in range(4):
                I(f"v_lshlrev_b32 v{q+2*k}, 16, v{ZF+k}")
                I(f"v_and_b32 v{q+2*k+1}, 0xffff0000, v{ZF+k}")
            for k in range(4):
                I(f"v_pk_mul_f32 {vr(q+2*k,2)}, {vr(q+2*k,2)}, {vr(SF+2*k,2)}")
            for k in range(4):
                I(f"v_cvt_pk_bf16_f32 v{r+k}, v{q+2*k}, v{q+2*k+1}")
            p.vm(f"buffer_store_dwordx4 {vr(r)}, v{L16}, s[36:39], s8 offen offset:{kk*2048} sc1", "wst")
            if kk: p.stamp("wst")
        return fn
    S.at(pre - 1, pack(0))
    tws = S.at(pre - 1 + cfg.get("pk", 3), pack(1))
    S.store(pre - 1, LS + cfg.get("pk", 3))
    ackw = cfg.get("ackw", LS)
    S.at(tws + ackw - cfg.get("vl", 10), lambda: p.poll_issue(VALID))
    def wack():
        p.need_vm("wst")
        p.stamp("wack")
        p.poll_check(VALID)
        p.flag(0)
        p.stamp("wfl")
    tw = S.at(tws + ackw, wack)
    S.store(tw, LF)
    xf = lambda g, j, i: ("v", FR + 16 * ((g * 4 + j) % 5) + 4 * i)
    uf = lambda n, tl: FR + 16 * n + 8 + 4 * tl
    t = p1_cons(p, S, cfg, 0, cfg.get("r2", 11), xf, uf, 5, ACC, cfg.get("L1", 10))
    t = S.at(t + 1, xr_store(p, 0, ACC))
    S.at(t, lambda: p.marks.add("p1done"))
    S.store(t, LS)
    def xack():
        p.need_vm(("xst", 0))
        p.flag(1)
        p.stamp("xfl")
    tx = S.at(t + cfg.get("ackx", LS), xack)
    S.store(tx, LF)
    LV = cfg.get("LV", 10)
    for i in range(12):
        def tr(i=i):
            tagf = ("V", i)
            p.need_vm(*[(tagf, b) for b in range(4)])
            if cfg.get("fst"): p.stamp(f"V{i}")
            so = p.slot_of[tagf] * 4096
            if len(p.lgq) > 7: p.wait_lg(7)
            for t_ in range(4):
                for hb in range(2):
                    p.ds(f"ds_read_b64_tr_b16 {vr(16*i + 4*t_ + 2*hb, 2, 'a')}, v{VBV + (t_ ^ (2*hb))} offset:{so + 512*hb}", ("tr", tagf))
                p.setv(("a", 16 * i + 4 * t_), (tagf, t_))
            p.done(tagf, [("tr", tagf)])
            if i == 11: p3_setup(p)
        tv = S.at(max(S.rdy((("V", i), 3), LV), cfg.get("r2", 11)), tr)
    def vbar():
        p.need_lg(("tr", ("V", 11)))
        p.barrier()
        p.marks.add("ringfree")
    S.at(tv + cfg.get("vb", 6), vbar)
    S.at(S.pos[("w", 0)] - 1 - cfg.get("wl", 14), lambda: p.poll_issue(WLOADS))
    L2 = cfg.get("L2", 10)
    def acc2(h, dt, t_): return ACC + 32 * (1 - h) + 16 * dt + 4 * t_
    def red_w(h):
        def fn():
            p.stamp(f"p2m{h}")
            assert "ringfree" in p.marks
            for dt in range(2):
                for t_ in range(1, 4):
                    p.ds(f"ds_write_b128 v{VP+t_}, {vr(acc2(h, dt, t_))} offset:{(2*h+dt)*1024}", ("rw2", h))
        return fn
    def bar2(h):
        def fn():
            p.need_lg(("rw2", h))
            p.barrier()
            for dt in range(2):
                for s in range(3):
                    p.ds(f"ds_read_b128 {vr(RT2 + 12*dt + 4*s)}, v{VP} offset:{s*4096 + (2*h+dt)*1024}", ("rr2", h, dt))
        return fn
    def red_f(h):
        def fn():
            for dt in range(2):
                p.need_lg(("rr2", h, dt))
                psum(p, acc2(h, dt, 0), RT2 + 12 * dt, RT2 + 2 * dt)
            p.vm(f"buffer_store_dwordx4 {vr(RT2)}, v{L16}, s[36:39], s11 offen offset:{h*1024} sc1", ("tst", h))
            p.stamp(f"tst{h}")
            if h: p.marks.add("red1read")
        return fn
    def tack(h):
        def fn():
            p.need_vm(("tst", h))
            p.flag(2 + h)
            p.stamp(f"tfl{h}")
            p.marks.add(("tfl", h))
        return fn
    rd2 = cfg.get("rd2", 2)
    LT = cfg.get("LT", 16)
    tprev = tv
    tfl = {}
    for h in range(2):
        for i in range(12):
            for dt in range(2):
                n = (h * 12 + i) * 2 + dt
                def fn(h=h, i=i, dt=dt, n=n):
                    p.need_vm(("w", n))
                    p.need_lg(("tr", ("V", i)))
                    if n == 0: p.stamp("w0")
                    reg = WR + 4 * (n % NWR)
                    p.chk(("v", reg), ("w", n))
                    order = (1, 2, 3, 0) if i == 11 else (0, 1, 2, 3)
                    for t_ in order:
                        p.chk(("a", 16 * i + 4 * t_), (("V", i), t_))
                        I(mfma(acc2(h, dt, t_), reg, ("a", 16 * i + 4 * t_), i == 0))
                    p.marks.add(("wdone", n))
                    if h == 1 and dt == 1: p.marks.add(("vfree", i))
                    if n == 47: p.marks.add("wqdone")
                tprev = S.at(max(S.rdy(("w", n), L2), tprev + cfg.get("m2", 0.5)), fn)
        t = S.at(tprev + 1, red_w(h))
        t = S.at(t + rd2, bar2(h))
        t = S.at(max(t + 2, S.pos[("w", 47)] - cfg.get("te", 48)), red_f(h))
        S.store(t, LT)
        tend = t
        tfl[h] = S.at(t + cfg.get("ackt", LT), tack(h))
        S.store(tfl[h], LF)
    S.at(S.pos[("xr", 0, 0)] - 1 - cfg.get("xl", 14), lambda: p.poll_issue(XLOADS))
    S.at(S.pos[("t", 0, 0)] - 1 - cfg.get("tl0", 10), lambda: p.poll_issue(tloads(0)))
    S.at(S.pos[("t", 5, 0)] - 1 - cfg.get("tl1", 10), lambda: p.poll_issue(tloads(1)))
    p3_cons(p, S, cfg, tend, xreg)
    S.run()
    p.stamp_end()
    I("s_endpgm")
    return p

def gen_special(cfg):
    p = Prog(cfg, "s"); I = p.I
    p.nst = 1; p.stn = ["begin"]
    p.L("L_special")
    I("s_waitcnt lgkmcnt(0)")
    if cfg.get("stamp"):
        I(f"v_mov_b32 v{VST}, s90")
        I("s_mov_b32 s93, 0")
    for d, b in ((28, 12), (24, 4), (36, 20)):
        srd_base(p, d, b)
    p.stamp("ka")
    S = Sched(p); S.lastm = {}
    for g in range(5):
        add_fill(p, S, ("X", g), VX, 24, f"s{76+g}", True)
        add_fill(p, S, ("U", 0, g), VU, 28, f"s{81+g}", True)
    for tile in range(1, 5):
        for g in range(5):
            add_fill(p, S, ("U", tile, g), VU, 28, f"s{81+g}", True, [f"s_add_u32 s{81+g}, s{81+g}, 128"])
    nU = len(S.stream)
    def xreg(pos, u):
        k = XMAP[pos]
        if k >= 12: assert "p1done" in p.marks
        return ("a", 160 + 8 * k + 4 * u) if k < 12 else ("a", 8 * (k - 12) + 4 * u)
    p3_stream(p, S, cfg, xreg, cfg.get("Ds", 20))
    S.at(7, lambda: setup_rest(p, cfg, True))
    S.at(11, lambda: (setup_ids(p, cfg, True), p3_setup(p)))
    S.at(cfg.get("vs", 44), lambda: p.poll_issue(VALID))
    LS = cfg.get("LSs", 16); LF = cfg.get("LFs", 12)
    xf = lambda g, j, i: ("a", 32 * g + 8 * j + 4 * i)
    uf = lambda n, tl: FR + 8 * n + 4 * tl
    t = 11
    for tile in range(5):
        acc = ACC + 16 * (tile & 1)
        tm = p1_cons(p, S, cfg, tile, t, xf, uf, 10, acc, cfg.get("L1s", 10))
        t = tm - cfg.get("dm", 1.5)
        def st(tile=tile, acc=acc):
            xr_store(p, tile, acc)()
            I("s_add_u32 s4, s4, 2048")
            I("s_add_u32 s10, s10, 2048")
            if tile == 4: p.marks.add("p1done")
        ts = S.at(tm + 1, st)
        S.store(ts, LS)
        def ack(tile=tile):
            p.need_vm(("xst", tile))
            if tile == 0: p.poll_check(VALID)
            p.flag(1)
            I(f"s_add_u32 s5, s5, {32 << FSH}")
            p.stamp(f"xfl{tile}")
            p.marks.add(("xfl", tile))
        ta = S.at(ts + LS, ack)
        S.store(ta, LF)
    S.cons = [(nU - 1 + 0.5 * (1 - 1 / (2 + tr - nU)) if tr > nU - 1 else tr, k, fn) for tr, k, fn in S.cons]
    S.stores = []
    def fin():
        p.barrier()
        p.marks.update(["ringfree", "redfree", "wqdone", ("tfl", 0), ("tfl", 1)])
        p.poll_issue(XLOADS)
    S.at(nU - 0.3, fin)
    S.at(S.pos[("t", 0, 0)] - 1 - cfg.get("tl0s", 4), lambda: p.poll_issue(tloads(0)))
    S.at(S.pos[("t", 5, 0)] - 1 - cfg.get("tl1", 10), lambda: p.poll_issue(tloads(1)))
    p3_cons(p, S, cfg, nU, xreg)
    S.run()
    p.stamp_end()
    I("s_endpgm")
    return p

REG = re.compile(r"\b([va])(?:\[(\d+):(\d+)\]|(\d+))")
def regs(s):
    o = set()
    for m in REG.finditer(s):
        if m.group(4) is not None: o.add((m.group(1), int(m.group(4))))
        else: o.update((m.group(1), k) for k in range(int(m.group(2)), int(m.group(3)) + 1))
    return o

def hazards(lines):
    out = []
    hist = []
    st = 0
    for ln in lines:
        if ln.endswith(":"):
            out.append(ln); continue
        op = ln.split()[0]
        args = ln[len(op):].split(",")
        need = 0
        ism = op.startswith("v_mfma")
        isv = op.startswith("v_") and not ism
        if ism:
            wr = regs(args[0]); rd = regs(",".join(args[1:3])); rc = regs(args[3])
        elif isv:
            if op.startswith("v_cmp") or op.startswith("v_readfirst"): wr = set(); rd = regs(",".join(args[1:]))
            elif op.startswith("v_permlane"): wr = regs(ln); rd = wr
            elif op.startswith("v_writelane"): wr = regs(args[0]); rd = wr
            else: wr = regs(args[0]); rd = regs(",".join(args[1:]))
        elif op.startswith("ds_read"): wr = regs(args[0]); rd = regs(",".join(args[1:]))
        elif op.startswith("ds_write") or "store" in op: wr = set(); rd = regs(ln)
        elif "load" in op and not op.startswith("s_"):
            if ln.rstrip().endswith("lds"): wr = set(); rd = regs(ln)
            else: wr = regs(args[0]); rd = regs(",".join(args[1:]))
        else: wr = set(); rd = set()
        for kind, rg, s0 in hist:
            d = st - s0 - 1
            if kind == "mD":
                if ism:
                    if rg & rd: need = max(need, 8 - d)
                    if rg & rc and rg != rc: need = max(need, 6 - d)
                    if rg & wr and not rc: need = max(need, 8 - d)
                elif rg & (rd | wr): need = max(need, 8 - d)
            elif kind == "mC" and isv and rg & wr: need = max(need, 3 - d)
            elif kind == "vW":
                if ism and rg & (rd | rc): need = max(need, 2 - d)
                if op.startswith("v_permlane") and rg & rd: need = max(need, 2 - d)
                if op.startswith("v_readfirst") and rg & rd: need = max(need, 1 - d)
            elif kind == "st" and rg & wr: need = max(need, 2 - d)
        if need > 0:
            out.append(f"s_nop {need-1}"); st += need
        out.append(ln)
        if ism:
            hist.append(("mD", wr, st))
            if rc: hist.append(("mC", rc, st))
        elif isv: hist.append(("vW", wr, st))
        elif "store" in op: hist.append(("st", regs(args[0]) | regs(args[1]), st))
        st += int(ln.split()[1]) + 1 if op == "s_nop" else 1
        hist = [h for h in hist if st - h[2] < 12]
    return out

def gen(cfg):
    out = HEADER
    out += f"; @launch grid=(256,1,1) block=(256,1,1) lds={LDS_BYTES}\n"
    out += '.amdgcn_target "amdgcn-amd-amdhsa--gfx950"\n.text\n'
    out += f".globl {KNAME}\n.p2align 8\n.type {KNAME},@function\n{KNAME}:\n"
    r = gen_regular(cfg); s = gen_special(cfg)
    lines = hazards(r.out) + r.slow + hazards(s.out) + s.slow + ["L_exit:", "s_endpgm", "L_code_end:"]
    out += "".join((x if x.endswith(":") else "    " + x) + "\n" for x in lines)
    if cfg.get("stamp"):
        out += "; STAMPS_R " + " ".join(r.stn) + "\n; STAMPS_S " + " ".join(s.stn) + "\n; CHK_R " + " ".join(r.chkn) + "\n; CHK_S " + " ".join(s.chkn) + "\n"
    out += f""".section .rodata,"a"
.p2align 6
.amdhsa_kernel {KNAME}
  .amdhsa_float_denorm_mode_32 3
  .amdhsa_next_free_vgpr 512
  .amdhsa_next_free_sgpr 102
  .amdhsa_accum_offset 256
  .amdhsa_group_segment_fixed_size 0
  .amdhsa_kernarg_size 72
  .amdhsa_user_sgpr_count 2
  .amdhsa_user_sgpr_kernarg_segment_ptr 1
  .amdhsa_system_sgpr_workgroup_id_x 1
.end_amdhsa_kernel
"""
    return out

if __name__ == "__main__":
    cfg = {}
    outp = sys.argv[1]
    for kv in sys.argv[2:]:
        k, v = kv.split("=")
        cfg[k] = float(v) if "." in v else int(v)
    open(outp, "w").write(gen(cfg))
```

```python
import sys, re
src, dst, which, M = sys.argv[1], sys.argv[2], sys.argv[3], int(sys.argv[4])
kind, nm = which.split(":")
a = open(src).read()
names = re.search(r"; STAMPS_%s (.*)" % kind, a).group(1).split()
NR = int(re.search(r"; NREG (\d+)", a).group(1))
g = names.index(nm) if nm != 'rt' else -3
KN = "standalone__weight_only_int_quip__prompt_kernel"
m = re.search(r"; @launch grid=(.*)\n", a)
a = a.replace(m.group(0), f"; @launch kernel={KN} grid={m.group(1)}\n; @launch kernel=quip_e_kernel grid=(1,1,1) block=(64,1,1) lds=0\n")
c = [".globl quip_e_kernel", ".p2align 8", ".type quip_e_kernel,@function", "quip_e_kernel:"]
I = lambda s: c.append("    " + s)
I("s_cmp_ge_u32 s2, 1")
I("s_cbranch_scc1 L_e_exit")
I("s_load_dwordx2 s[4:5], s[0:1], 64")
if kind == "R":
    I("v_mul_u32_u24 v1, 3, v0")
    base = 0
else:
    I("v_mov_b32 v1, v0") if NR == 192 else I("v_and_b32 v1, 15, v0")
    base = NR
I("v_lshlrev_b32 v1, 10, v1")
I("v_and_b32 v2, 3, v0")
I("v_lshl_add_u32 v1, v2, 8, v1")
I(f"v_add_u32 v1, {0x600000 + base*1024}, v1")
I("s_waitcnt lgkmcnt(0)")
I(f"global_load_dword v10, v1, s[4:5] offset:{16 + 4*g}")
I(f"global_load_dword v11, v1, s[4:5] offset:{16 if nm != 'rt' else 0}")
I("s_waitcnt vmcnt(0)")
I("v_sub_u32 v10, v10, v11")
I("s_mov_b32 s10, 0")
I("s_nop 4")
for l in range(64):
    I(f"v_readlane_b32 s14, v10, {l}")
    I("s_add_u32 s10, s10, s14")
I(f"s_mul_i32 s20, s10, {M}")
I("s_lshr_b32 s20, s20, 10")
I("s_min_u32 s20, s20, 50000")
I("s_memrealtime s[8:9]")
I("s_waitcnt lgkmcnt(0)")
c.append("L_e_loop:")
I("s_memrealtime s[22:23]")
I("s_waitcnt lgkmcnt(0)")
I("s_sub_u32 s24, s22, s8")
I("s_cmp_lt_u32 s24, s20")
I("s_cbranch_scc1 L_e_loop")
c.append("L_e_exit:")
I("s_endpgm")
a = a.replace("; STAMPS_R", "\n".join(c) + "\n; STAMPS_R", 1)
a = a.rstrip() + """
.p2align 6
.amdhsa_kernel quip_e_kernel
  .amdhsa_next_free_vgpr 80
  .amdhsa_next_free_sgpr 32
  .amdhsa_accum_offset 80
  .amdhsa_group_segment_fixed_size 0
  .amdhsa_kernarg_size 72
  .amdhsa_user_sgpr_count 2
  .amdhsa_user_sgpr_kernarg_segment_ptr 1
  .amdhsa_system_sgpr_workgroup_id_x 1
.end_amdhsa_kernel
"""
open(dst, "w").write(a)
```

```python
import sys, re
src, dst, stat, M = sys.argv[1], sys.argv[2], sys.argv[3], int(sys.argv[4])
cfg = dict(kv.split("=") for kv in sys.argv[5:])
a = open(src).read()
KN = "standalone__weight_only_int_quip__prompt_kernel"
m = re.search(r"; @launch grid=(.*)\n", a)
a = a.replace(m.group(0), f"; @launch kernel=quip_p_kernel grid=(256,1,1) block=(256,1,1) lds=100000\n; @launch kernel={KN} grid={m.group(1)}\n; @launch kernel=quip_e_kernel grid=(1,1,1) block=(64,1,1) lds=0\n")
c = []
I = lambda s: c.append("    " + s)
PO = 0x4000000
c += [".globl quip_p_kernel", ".p2align 8", ".type quip_p_kernel,@function", "quip_p_kernel:"]
I("s_cmp_ge_u32 s2, 256")
I("s_cbranch_scc1 L_p_exit")
I("s_load_dwordx8 s[4:11], s[0:1], 0")
I("s_load_dwordx8 s[12:19], s[0:1], 32")
I("s_load_dwordx2 s[20:21], s[0:1], 64")
I("v_and_b32 v1, 63, v0")
I("v_lshrrev_b32 v2, 6, v0")
I("v_lshlrev_b32 v5, 4, v1")
I("v_readfirstlane_b32 s3, v2")
I("s_waitcnt lgkmcnt(0)")
T = {"x": (4, 2621440), "q": (6, 3932160), "U": (12, 819200), "V": (14, 4718592), "w": (20, 0x8000000)}
for n, k in enumerate("xqUVw"):
    d = 24 + 4 * n
    I(f"s_mov_b32 s{d}, s{T[k][0]}"); I(f"s_and_b32 s{d+1}, s{T[k][0]+1}, 0xffff"); I(f"s_mov_b32 s{d+2}, {T[k][1]}"); I(f"s_mov_b32 s{d+3}, 0x20000")
I("s_memtime s[60:61]")
r = 0
for sp in cfg.get("seq", "q1d.V1d.x1d.U1d").split("."):
    k, sh, f = sp[0], int(sp[1]), {"d": "", "n": " nt", "s": " sc1", "b": " sc0 sc1"}[sp[2]]
    d = 24 + 4 * "xqUVw".index(k)
    size = T[k][1] if k != "w" else 2097152
    per = size // 1024 * sh
    I(f"s_lshr_b32 s50, s2, {sh.bit_length() - 1}")
    I("s_lshl_b32 s50, s50, 2")
    I("s_add_u32 s50, s50, s3")
    I(f"s_mul_i32 s50, s50, {per}")
    if k == "w": I(f"s_add_u32 s50, s50, {int(sp[3:] or 0) << 20}")
    o = 0
    while o < per:
        n = min(1024, per - o)
        if n < 1024: I(f"s_bfm_b64 exec, {n // 16}, 0")
        if k == "w": I(f"buffer_store_dwordx4 v[8:11], v5, s[{d}:{d+3}], s50 offen{f}")
        else: I(f"buffer_load_dwordx4 v[{12+4*r}:{15+4*r}], v5, s[{d}:{d+3}], s50 offen{f}")
        r = (r + 1) % 24
        if n < 1024: I("s_mov_b64 exec, -1")
        I("s_add_u32 s50, s50, 1024")
        o += 1024
I("s_waitcnt vmcnt(0)")
I("s_memtime s[62:63]")
I("s_lshl_b32 s50, s2, 2")
I("s_add_u32 s50, s50, s3")
I("s_lshl_b32 s50, s50, 2")
I(f"s_add_u32 s50, s50, {PO}")
I("s_waitcnt lgkmcnt(0)")
I("s_sub_u32 s62, s62, s60")
I("v_mov_b32 v6, s62")
I("s_mov_b64 exec, 1")
I("buffer_store_dword v6, v5, s[40:43], s50 offen")
c.append("L_p_exit:")
I("s_endpgm")
c += [".globl quip_e_kernel", ".p2align 8", ".type quip_e_kernel,@function", "quip_e_kernel:"]
I("s_cmp_ge_u32 s2, 1")
I("s_cbranch_scc1 L_e_exit")
I("s_load_dwordx2 s[4:5], s[0:1], 64")
I("v_lshlrev_b32 v1, 6, v0")
I(f"v_add_u32 v1, {PO}, v1")
I("s_waitcnt lgkmcnt(0)")
for k in range(4): I(f"global_load_dwordx4 v[{10+4*k}:{13+4*k}], v1, s[4:5] offset:{16*k}")
I("s_waitcnt vmcnt(0)")
op = "v_add_u32" if stat == "mean" else "v_max_u32"
for k in range(1, 16): I(f"{op} v10, v10, v{10+k}")
I("s_mov_b32 s10, 0")
I("s_nop 4")
for l in range(64):
    I(f"v_readlane_b32 s14, v10, {l}")
    I("s_add_u32 s10, s10, s14" if stat == "mean" else "s_max_u32 s10, s10, s14")
if stat == "mean": I("s_lshr_b32 s10, s10, 10")
I(f"s_mul_i32 s20, s10, {M}")
I("s_lshr_b32 s20, s20, 4")
I("s_min_u32 s20, s20, 50000")
I("s_memrealtime s[8:9]")
I("s_waitcnt lgkmcnt(0)")
c.append("L_e_loop:")
I("s_memrealtime s[22:23]")
I("s_waitcnt lgkmcnt(0)")
I("s_sub_u32 s24, s22, s8")
I("s_cmp_lt_u32 s24, s20")
I("s_cbranch_scc1 L_e_loop")
c.append("L_e_exit:")
I("s_endpgm")
a = a.replace('.section .rodata,"a"', "\n".join(c) + '\n.section .rodata,"a"', 1)
for kn in ("quip_p_kernel", "quip_e_kernel"):
    a = a.rstrip() + f"""
.p2align 6
.amdhsa_kernel {kn}
  .amdhsa_next_free_vgpr 128
  .amdhsa_next_free_sgpr 80
  .amdhsa_accum_offset 128
  .amdhsa_group_segment_fixed_size 0
  .amdhsa_kernarg_size 72
  .amdhsa_user_sgpr_count 2
  .amdhsa_user_sgpr_kernarg_segment_ptr 1
  .amdhsa_system_sgpr_workgroup_id_x 1
.end_amdhsa_kernel
"""
open(dst, "w").write(a)
```

```python
import sys, re
src, dst, which, M = sys.argv[1], sys.argv[2], sys.argv[3], int(sys.argv[4])
kind, nm = which.split(":")
mx = nm.endswith("^"); nm = nm.rstrip("^")
a = open(src).read()
sub = kind[1:]; kind = kind[0]
names = re.search(r"; STAMPS_%s (.*)" % kind, a).group(1).split()
NR = int(re.search(r"; NREG (\d+)", a).group(1))
g = names.index(nm) if nm != 'rt' else -3
KN = "standalone__weight_only_int_quip__prompt_kernel"
m = re.search(r"; @launch grid=(.*)\n", a)
a = a.replace(m.group(0), f"; @launch kernel={KN} grid={m.group(1)}\n; @launch kernel=quip_e_kernel grid=(1,1,1) block=(64,1,1) lds=0\n")
c = [".globl quip_e_kernel", ".p2align 8", ".type quip_e_kernel,@function", "quip_e_kernel:"]
I = lambda s: c.append("    " + s)
I("s_cmp_ge_u32 s2, 1")
I("s_cbranch_scc1 L_e_exit")
I("s_load_dwordx2 s[4:5], s[0:1], 64")
if kind == "R":
    I("v_mul_u32_u24 v1, 3, v0")
    if sub:
        I("v_mul_u32_u24 v1, 5, v0")
        I("v_lshrrev_b32 v1, 1, v1")
    if sub == "c":
        I("v_and_b32 v0, 2, v0")
        I("v_lshrrev_b32 v1, 1, v0")
        I("v_add_u32 v1, 160, v1")
    base = 0
else:
    I("v_mov_b32 v1, v0") if NR == 192 else I("v_and_b32 v1, 15, v0")
    if sub: I("v_bfe_u32 v1, v0, 2, 1")
    sub = ""
    base = NR
I("v_and_b32 v2, 3, v0")
if sub:
    I("v_lshrrev_b32 v2, 3, v1")
    I("v_and_b32 v2, 2, v2")
    I("v_and_or_b32 v2, v0, 1, v2")
    if sub == "t": I("v_xor_b32 v2, 2, v2")
I("v_lshlrev_b32 v1, 10, v1")
I("v_lshl_add_u32 v1, v2, 8, v1")
I(f"v_add_u32 v1, {0x600000 + base*1024}, v1")
I("s_waitcnt lgkmcnt(0)")
I(f"global_load_dword v10, v1, s[4:5] offset:{16 + 4*g}")
I(f"global_load_dword v11, v1, s[4:5] offset:{16 if nm != 'rt' else 0}")
I("s_waitcnt vmcnt(0)")
I("v_sub_u32 v10, v10, v11")
I("s_mov_b32 s10, 0")
I("s_nop 4")
for l in range(64):
    I(f"v_readlane_b32 s14, v10, {l}")
    I("s_max_u32 s10, s10, s14" if mx else "s_add_u32 s10, s10, s14")
if mx: I("s_lshl_b32 s10, s10, 6")
I(f"s_mul_i32 s20, s10, {M}")
I("s_lshr_b32 s20, s20, 10")
I("s_min_u32 s20, s20, 50000")
I("s_memrealtime s[8:9]")
I("s_waitcnt lgkmcnt(0)")
c.append("L_e_loop:")
I("s_memrealtime s[22:23]")
I("s_waitcnt lgkmcnt(0)")
I("s_sub_u32 s24, s22, s8")
I("s_cmp_lt_u32 s24, s20")
I("s_cbranch_scc1 L_e_loop")
c.append("L_e_exit:")
I("s_endpgm")
a = a.replace("; STAMPS_R", "\n".join(c) + "\n; STAMPS_R", 1)
a = a.rstrip() + """
.p2align 6
.amdhsa_kernel quip_e_kernel
  .amdhsa_next_free_vgpr 80
  .amdhsa_next_free_sgpr 32
  .amdhsa_accum_offset 80
  .amdhsa_group_segment_fixed_size 0
  .amdhsa_kernarg_size 72
  .amdhsa_user_sgpr_count 2
  .amdhsa_user_sgpr_kernarg_segment_ptr 1
  .amdhsa_system_sgpr_workgroup_id_x 1
.end_amdhsa_kernel
"""
open(dst, "w").write(a)
```
